```python
import torch

def _softmax(x, axis=-1):
    return torch.softmax(x, dim=axis)

def _gelu(x):
    return torch.nn.functional.gelu(x, approximate='tanh')

def _silu(x):
    return torch.nn.functional.silu(x)

def _sigmoid(x):
    return torch.sigmoid(x)

def _layernorm(x, axis=-1, eps=1e-05):
    m = x.mean(dim=axis, keepdim=True)
    v = x.var(dim=axis, keepdim=True, unbiased=False)
    return (x - m) / torch.sqrt(v + eps)

def _scatter_add(tgt, idx, src, axis=0):
    return tgt.clone().index_add_(axis, idx, src)

def _segment_sum(src, seg, n):
    out = torch.zeros((n,) + src.shape[1:], dtype=src.dtype)
    return out.index_add_(0, seg, src)

def _pad(x, pw):
    flat = tuple((v for pair in reversed(pw) for v in pair))
    return torch.nn.functional.pad(x, flat)
kernel_name = 'sequential_preLN__ssm_conv_s4__mixer_gmlp__prompt'

def setup_inputs():

    _w = lambda a: (lambda t: t.to(torch.bfloat16) if t.is_floating_point() else t)(torch.as_tensor(a))

    def _A_setup():
        B, L, D, N = (1, 2048, 640, 192)
        A_re = -(lambda _x: torch.exp(torch.as_tensor(_x)))((lambda *s: torch.randn(*s, dtype=torch.bfloat16) * 3.2)(D, N))
        A_im = torch.pi * (lambda *s: torch.randn(*s, dtype=torch.bfloat16) * 0.05)(D, N)
        B_re = (lambda *s: torch.randn(*s, dtype=torch.bfloat16) * 0.1)(D, N)
        B_im = (lambda *s: torch.randn(*s, dtype=torch.bfloat16) * 0.05)(D, N)
        C_re = (lambda *s: torch.randn(*s, dtype=torch.bfloat16) * 0.05)(D, N)
        C_im = (lambda *s: torch.randn(*s, dtype=torch.bfloat16) * 0.05)(D, N)
        log_dt = (lambda *s: torch.randn(*s, dtype=torch.bfloat16) * 0.05)(D) * 0.5 - 4.0
        Dskip = (lambda *s: torch.randn(*s, dtype=torch.bfloat16) * 0.05)(D)
        return {'u': _w((lambda *s: torch.randn(*s, dtype=torch.bfloat16) * 0.05)(B, L, D)), 'A_re': _w(A_re), 'A_im': _w(A_im), 'B_re': _w(B_re), 'B_im': _w(B_im), 'C_re': _w(C_re), 'C_im': _w(C_im), 'log_dt': _w(log_dt), 'Dskip': _w(Dskip)}
    _A_in = _A_setup()

    def _B_setup():
        B, S, D, F = (1, 2048, 640, 1536)
        Fh = F // 2
        return {'x': _w((lambda *s: torch.randn(*s, dtype=torch.bfloat16) * 0.05)(B, S, D)), 'w_in': _w((lambda *s: torch.randn(*s, dtype=torch.bfloat16) * 0.4)(D, 2 * Fh)), 'w_sp': _w(0.01 * (lambda *s: torch.randn(*s, dtype=torch.bfloat16) * 0.4)(S, S)), 'b_sp': _w(1.0 + 0.01 * (lambda *s: torch.randn(*s, dtype=torch.bfloat16) * 0.05)(S)), 'w_out': _w((lambda *s: torch.randn(*s, dtype=torch.bfloat16) * 0.05)(Fh, D))}
    _B_in = _B_setup()
    return {'A_u': _A_in['u'], 'A_A_re': _A_in['A_re'], 'A_A_im': _A_in['A_im'], 'A_B_re': _A_in['B_re'], 'A_B_im': _A_in['B_im'], 'A_C_re': _A_in['C_re'], 'A_C_im': _A_in['C_im'], 'A_log_dt': _A_in['log_dt'], 'A_Dskip': _A_in['Dskip'], 'B_x': _B_in['x'], 'B_w_in': _B_in['w_in'], 'B_w_sp': _B_in['w_sp'], 'B_b_sp': _B_in['b_sp'], 'B_w_out': _B_in['w_out']}

def reference(A_u, A_A_re, A_A_im, A_B_re, A_B_im, A_C_re, A_C_im, A_log_dt, A_Dskip, B_x, B_w_in, B_w_sp, B_b_sp, B_w_out):

    def _A_ref(u, A_re, A_im, B_re, B_im, C_re, C_im, log_dt, Dskip):
        Bsz, L, D = u.shape
        dt = torch.exp(log_dt)[:, None]
        A = A_re + 1j * A_im
        Bc = B_re + 1j * B_im
        Cc = C_re + 1j * C_im
        logdA = dt * A
        dB = dt * Bc
        l = (lambda x, dt: x.to(dt))(torch.arange(L), A_re.dtype)
        P = torch.exp(logdA[:, :, None] * l[None, None, :])
        K = torch.einsum('dn,dnl,dn->dl', Cc, P, dB).real
        L2 = 2 * L
        Kp = _pad(K, ((0, 0), (0, L)))
        up = (lambda x, *d: x.permute(*d))(u, 0, 2, 1)
        up = _pad(up, ((0, 0), (0, 0), (0, L)))
        Kf = (lambda x, axes=(-2, -1): torch.fft.rfft2(x.float(), dim=axes))(Kp[:, None, :], axes=(-2, -1))
        Uf = (lambda x, axes=(-2, -1): torch.fft.rfft2(x.float(), dim=axes))(up[:, :, None, :], axes=(-2, -1))
        Yf = Uf * Kf[None, :, :, :]
        y = (lambda x, s, axes=(-2, -1): torch.fft.irfft2(x, s=s, dim=axes).to(torch.bfloat16))(Yf, (1, L2), axes=(-2, -1))[:, :, 0, :L]
        y = (lambda x, *d: x.permute(*d))(y, 0, 2, 1) + u * Dskip[None, None, :]
        return y

    def _B_ref(x, w_in, w_sp, b_sp, w_out):
        B, S, D = x.shape
        F = w_in.shape[-1]
        Fh = F // 2
        z = _gelu(torch.einsum('bsd,df->bsf', x, w_in))
        z1 = z[..., :Fh].clone()
        z2 = _layernorm(z[..., Fh:], axis=-1)
        g = torch.einsum('ts,bsf->btf', w_sp, z2) + b_sp[None, :, None]
        return torch.einsum('bsf,fd->bsd', z1 * g, w_out)
    x = A_u
    h = x + _A_ref(_layernorm(x, axis=-1), A_A_re, A_A_im, A_B_re, A_B_im, A_C_re, A_C_im, A_log_dt, A_Dskip)
    h2 = h + _B_ref(_layernorm(h, axis=-1), B_w_in, B_w_sp, B_b_sp, B_w_out)
    return h2
```

```python
class Asm:
    def __init__(self):
        self.lines = []
        self.launches = []
        self.kernels = []
        self._lab = 0
    def __call__(self, s=""):
        for l in s.split("\n"):
            self.lines.append(l)
    def label(self, base="L"):
        self._lab += 1
        return f"{base}_{self._lab}"
    def begin_kernel(self, name, grid, block, lds, vgpr, sgpr=102, accum=None, launches=1):
        self.cur = dict(name=name, vgpr=vgpr, sgpr=sgpr, accum=accum)
        for _ in range(launches):
            self.launches.append((name, grid, block, lds))
        self(f".text\n.globl {name}\n.p2align 8\n.type {name},@function\n{name}:")
    def end_kernel(self):
        self.kernels.append(self.cur)
    def text(self, header="", single=False):
        out = []
        for l in header.split("\n"):
            if l.strip(): out.append("; " + l)
        for (n, g, b, lds) in self.launches:
            if single: out.append(f"; @launch grid=({g},1,1) block=({b},1,1) lds={lds}")
            else: out.append(f"; @launch kernel={n} grid=({g},1,1) block=({b},1,1) lds={lds}")
        out.append('.amdgcn_target "amdgcn-amd-amdhsa--gfx950"')
        out += self.lines
        out.append('.section .rodata,"a"')
        for k in self.kernels:
            acc = k["accum"] if k["accum"] is not None else min(256, (k["vgpr"] + 3) // 4 * 4)
            out.append(".p2align 6")
            out.append(f".amdhsa_kernel {k['name']}")
            out.append(f"  .amdhsa_next_free_vgpr {k['vgpr']}")
            out.append(f"  .amdhsa_next_free_sgpr {k['sgpr']}")
            out.append(f"  .amdhsa_accum_offset {acc}")
            out.append("  .amdhsa_group_segment_fixed_size 0")
            out.append("  .amdhsa_kernarg_size 136")
            out.append("  .amdhsa_user_sgpr_count 2")
            out.append("  .amdhsa_user_sgpr_kernarg_segment_ptr 1")
            out.append("  .amdhsa_system_sgpr_workgroup_id_x 1")
            out.append("  .amdhsa_float_denorm_mode_32 3")
            out.append(".end_amdhsa_kernel")
        return "\n".join(out) + "\n"
```

```python
import re
TRANS = ("v_exp_", "v_log_", "v_rcp_", "v_rsq_", "v_sqrt_", "v_sin_", "v_cos_")
def regs_of(op):
    op = op.strip()
    op = re.sub(r"^(-|neg\()?(abs\(|\|)?", "", op).rstrip(")|")
    m = re.fullmatch(r"([vas])(\d+)", op)
    if m: return {(m.group(1), int(m.group(2)))}
    m = re.fullmatch(r"([vas])\[(\d+):(\d+)\]", op)
    if m: return {(m.group(1), i) for i in range(int(m.group(2)), int(m.group(3)) + 1)}
    if op in ("vcc", "vcc_lo", "vcc_hi"): return {("s", "vcc")}
    if op in ("exec", "exec_lo", "exec_hi"): return {("s", "exec")}
    if op == "m0": return {("s", "m0")}
    return set()
class I:
    def __init__(self, text):
        self.text = text
        t = text.split(";")[0].strip()
        p = t.split(None, 1)
        self.mn = p[0]
        rest = p[1] if len(p) > 1 else ""
        ops, cur, d = [], "", 0
        for ch in rest:
            if ch in "[(": d += 1
            if ch in "])": d -= 1
            if ch == "," and d == 0: ops.append(cur.strip()); cur = ""
            else: cur += ch
        if cur.strip(): ops.append(cur.strip())
        mods = ""
        if ops:
            q = ops[-1].split(None, 1)
            ops[-1] = q[0]; mods = q[1] if len(q) > 1 else ""
        self.ops, self.mods = ops, mods
        mn = self.mn
        R = [regs_of(o) for o in ops]
        self.valu = mn.startswith("v_") and not mn.startswith("v_mfma")
        self.mfma = mn.startswith("v_mfma")
        self.salu = mn.startswith("s_")
        self.ds = mn.startswith("ds_")
        self.vmem = mn.startswith(("buffer_", "global_", "flat_"))
        self.trans = mn.startswith(TRANS)
        self.dot = mn.startswith("v_dot")
        self.dpp = "_dpp" in mn or "row_" in mods or "quad_perm" in mods or "wave_" in mods
        self.perml = mn.startswith("v_permlane")
        self.rdlane = mn.startswith(("v_readlane", "v_readfirstlane", "v_writelane"))
        self.ldsdma = self.vmem and (re.search(r"\blds\b", mods) is not None or "_lds_" in mn)
        w, r = set(), set()
        U = lambda xs: set().union(*xs) if xs else set()
        self.wide_store = False; self.store_data = set()
        if self.mfma:
            w = R[0]; r = U(R[1:]); self.srcC = R[3]; self.srcAB = R[1] | R[2]
            self.passes = 8 if "32x32" in mn else 4
        elif self.valu:
            if mn in ("v_nop",): pass
            elif mn.startswith(("v_swap", "v_permlane16_swap", "v_permlane32_swap")):
                w = R[0] | R[1]; r = set(w)
            else:
                w = set(R[0]); r = U(R[1:])
                if mn.startswith(("v_add_co", "v_sub_co", "v_addc_co", "v_subb_co", "v_subrev_co", "v_mad_u64", "v_div_scale")):
                    w |= R[1]; r = U(R[2:])
                if mn.startswith(("v_fmac", "v_dot2c", "v_pk_fmac", "v_writelane")) or self.dpp or "sdwa" in mn: r |= R[0]
                if mn.startswith("v_cmpx"): w |= {("s", "exec")}
                if mn.startswith("v_cndmask") and len(ops) == 3: r |= {("s", "vcc")}
        elif self.ds:
            if mn.startswith(("ds_read", "ds_bpermute", "ds_permute", "ds_swizzle")) or "_rtn" in mn: w = R[0]; r = U(R[1:])
            else: r = U(R)
        elif self.vmem:
            if "load" in mn and not self.ldsdma: w = R[0]; r = U(R[1:])
            elif "atomic" in mn and re.search(r"\bsc0\b", mods):
                w = R[0]; r = U(R)
            else:
                r = U(R)
                if "store" in mn and mn.endswith(("x3", "x4")):
                    self.wide_store = True
                    self.store_data = R[0] if mn.startswith("buffer") else R[1]
        elif self.salu:
            if mn.startswith(("s_cmp", "s_cbranch", "s_branch", "s_waitcnt", "s_nop", "s_barrier", "s_endpgm", "s_sleep", "s_setprio", "s_bitcmp")): r = U(R)
            else:
                w = set(R[0]) if R else set(); r = U(R[1:])
                if "saveexec" in mn: w |= {("s", "exec")}
        self.w, self.r = w, r
        self.states = 1
        if mn == "s_nop": self.states = int(ops[0], 0) + 1
def need(p, c):
    n = 0
    vw = {x for x in p.w if x[0] in "va"}; sw = {x for x in p.w if x[0] == "s"}
    if p.valu:
        if c.mfma and vw & c.r: n = max(n, 3 if p.dot else 2)
        if c.valu and c.dpp and vw & c.r: n = max(n, 2)
        if c.perml and vw & c.r: n = max(n, 2)
        if c.rdlane and vw & c.r: n = max(n, 1)
        if p.trans and (c.valu or c.mfma or c.ds or c.vmem) and vw & c.r: n = max(n, 1)
        if c.vmem and sw & c.r: n = max(n, 5)
        if c.valu and sw & c.r: n = max(n, 4 if c.rdlane else 2)
        if c.salu and sw & c.r: n = max(n, 1)
        if ("s", "exec") in sw:
            if c.mfma or c.perml or c.rdlane: n = max(n, 4)
            if c.valu and c.dpp: n = max(n, 5)
        if p.dot and vw & (c.r | c.w):
            if c.mn == p.mn:
                srcab = regs_of(c.ops[1]) | regs_of(c.ops[2])
                if vw & srcab: n = max(n, 3)
            else: n = max(n, 3)
    if p.mfma:
        big = {4: 8, 8: 12}[p.passes]
        if c.mfma:
            if p.w & c.srcAB: n = max(n, big)
            if p.w & c.srcC and not (p.w == c.srcC and p.passes == c.passes): n = max(n, big - 2)
            if p.w & c.w and not (p.w == c.srcC): n = max(n, big - 2)
        elif c.valu or c.ds or c.vmem:
            if p.w & (c.r | c.w): n = max(n, big)
            if c.valu and p.srcC & c.w: n = max(n, {4: 3, 8: 7}[p.passes])
    if p.salu and ("s", "m0") in sw and (c.ldsdma or "addtid" in c.mn): n = max(n, 1)
    if p.wide_store and p.store_data & c.w: n = max(n, 2 if (c.valu or c.mfma) else 1)
    return n
WIN = 14
def fix(lines, verbose=False):
    items = []
    for l in lines:
        s = l.split(";")[0].strip()
        if not s or s.startswith("."): items.append(("x", l))
        elif s.endswith(":"): items.append(("l", l, s[:-1]))
        else: items.append(("i", l, I(s)))
    incoming = {}
    out = None
    for it in range(4):
        out = []; wins = [[]]; newinc = {}; nins = 0
        for e in items:
            if e[0] == "x": out.append(e[1]); continue
            if e[0] == "l":
                wins = wins + [list(w) for w in incoming.get(e[2], [])]
                out.append(e[1]); continue
            c = e[2]
            pad = 0
            for w in wins:
                d = 0
                for p in reversed(w):
                    k = need(p, c) - d
                    if k > pad: pad = k
                    d += p.states
                    if d >= WIN: break
            if pad > 0:
                nins += 1
                nop = I(f"s_nop {pad-1}")
                out.append(f"    s_nop {pad-1}")
                for w in wins: w.append(nop)
            out.append(e[1])
            for w in wins: w.append(c)
            tw = []
            for w in wins:
                w = w[-WIN:]
                if not any(len(w) == len(o) and all(a is b for a, b in zip(w, o)) for o in tw): tw.append(w)
            wins = tw
            if c.mn.startswith(("s_cbranch", "s_branch")):
                newinc.setdefault(c.ops[0], []).extend([list(w) for w in wins])
            if c.mn in ("s_branch", "s_endpgm"): wins = [[]]
        incoming = newinc
    if verbose: print("hazard nops inserted:", nins)
    return out
```

```python
import sys, math, struct
from asmgen import Asm
import hazard

WS_U, WS_X, WS_K, WS_H = 0x0, 0x280000, 0x500000, 0xA80000
WS_WIN, WS_WOUT, WS_CS, WS_ST = 0xD00000, 0xF00000, 0xFF0000, 0xFF8000
WS_Z2, WS_Z1, WS_P = 0x1000000, 0x1300000, 0x1600000
WS_SIZE = 0x1900000
KCH = 8320
def f2u(x): return "0x%08x" % struct.unpack("<I", struct.pack("<f", x))[0]
LOG2E = 1.4426950408889634

def srd(a, r, lo, size):
    a(f"    s_mov_b32 s{r}, s{lo}")
    a(f"    s_and_b32 s{r+1}, s{lo+1}, 0xffff")
    a(f"    s_mov_b32 s{r+2}, {hex(size)}")
    a(f"    s_mov_b32 s{r+3}, 0x20000")
def vr(b, n): return f"v[{b}:{b+n-1}]" if n > 1 else f"v{b}"
def cmul(a, d, x, y):
    a(f"    v_pk_mul_f32 {vr(d,2)}, {vr(x,2)}, {vr(y,2)} op_sel:[0,0] op_sel_hi:[0,1]")
    a(f"    v_pk_fma_f32 {vr(d,2)}, {vr(x,2)}, {vr(y,2)}, {vr(d,2)} op_sel:[1,1,0] op_sel_hi:[1,0,1] neg_lo:[0,1,0]")
def rbf(a, d, s):
    a(f"    v_cvt_pk_bf16_f32 v{d}, v{s}, v{s}")
    a(f"    v_lshlrev_b32 v{d}, 16, v{d}")
def ln_scalars(a, vs, vq, n, vm, vrs, t):
    a(f"    v_mul_f32 v{vm}, {f2u(1.0/n)}, v{vs}")
    a(f"    v_mul_f32 v{t}, {f2u(1.0/n)}, v{vq}")
    a(f"    v_fma_f32 v{t}, -v{vm}, v{vm}, v{t}")
    a(f"    v_max_f32 v{t}, 0, v{t}")
    rbf(a, t, t)
    a(f"    v_add_f32 v{t}, {f2u(1e-5)}, v{t}")
    rbf(a, t, t)
    a(f"    v_sqrt_f32 v{t}, v{t}")
    rbf(a, vm, vm)
    rbf(a, t, t)
    a(f"    v_rcp_f32 v{vrs}, v{t}")

def prologue(a, nwg, endl):
    a(f"""    s_cmp_ge_u32 s2, {nwg}
    s_cbranch_scc1 {endl}
    s_load_dwordx2 s[4:5], s[0:1], 128
    v_lshrrev_b32 v1, 6, v0
    v_and_b32 v0, 63, v0
    v_readfirstlane_b32 s20, v1""")

def k1(a):
    a.begin_kernel("k1_kernel", 288, 256, 69632, 128)
    prologue(a, 288, "K1_end")
    a("""    s_load_dwordx16 s[36:51], s[0:1], 0
    s_waitcnt lgkmcnt(0)""")
    srd(a, 8, 4, WS_SIZE)
    a("""    s_cmp_ge_u32 s2, 160
    s_cbranch_scc1 K1_ln""")
    P = 8
    a("""    s_lshl_b32 s21, s2, 2
    s_add_u32 s21, s21, s20            ; d
    s_mul_i32 s22, s21, 384
    v_lshl_add_u32 v2, v0, 1, s22
    s_lshl_b32 s22, s21, 1
    v_mov_b32 v3, s22
    v_mov_b32 v4, 0""")
    for i in range(18): a(f"    v_mov_b32 v{P+i}, 0")
    a("    global_load_short_d16_hi v4, v3, s[50:51]")
    for c in range(3):
        for k in range(6):
            a(f"    global_load_short_d16_hi v{P+6*c+k}, v2, s[{38+2*k}:{39+2*k}] offset:{128*c}")
    RS = 272
    a(f"""    s_mul_i32 s22, s20, {64*RS}
    v_lshl_add_u32 v5, v0, 2, s22
    v_and_b32 v6, 31, v0
    v_mul_u32_u24 v6, {RS}, v6
    v_lshrrev_b32 v7, 5, v0
    v_lshl_add_u32 v6, v7, 4, v6
    v_add_u32 v6, s22, v6
    v_mov_b32 v7, 0x3f80
    ds_write_b32 v5, v7 offset:{32*RS}""")
    ACC = 96
    for i in range(16): a(f"    v_mov_b32 v{ACC+i}, 0")
    a(f"""    s_mov_b32 s23, 3
    s_waitcnt vmcnt(12)
    v_mul_f32 v4, {f2u(LOG2E)}, v4
    v_exp_f32 v4, v4""")
    rbf(a, 4, 4)
    a("K1_round:")
    Z1, Z8, Z256, CB, T = 28, 30, 32, 34, 36
    a(f"""    v_mul_f32 v{T}, v4, v{P}
    v_mul_f32 v{T+1}, v4, v{P+1}
    v_mul_f32 v{T}, {f2u(LOG2E)}, v{T}
    v_mul_f32 v{T+1}, 0.15915494, v{T+1}""")
    for z, e in ((Z1, 1), (Z8, 8), (Z256, 256)):
        if e == 1:
            a(f"    v_exp_f32 v{T+2}, v{T}\n    v_fract_f32 v{T+3}, v{T+1}")
        else:
            a(f"    v_mul_f32 v{T+2}, {f2u(float(e))}, v{T}\n    v_mul_f32 v{T+3}, {f2u(float(e))}, v{T+1}")
            a(f"    v_exp_f32 v{T+2}, v{T+2}\n    v_fract_f32 v{T+3}, v{T+3}")
        a(f"    v_cos_f32 v{z}, v{T+3}\n    v_sin_f32 v{z+1}, v{T+3}")
        a(f"    v_pk_mul_f32 {vr(z,2)}, {vr(z,2)}, {vr(T+2,2)} op_sel_hi:[1,0]")
    cmul(a, CB, P+2, P+4)
    a(f"    v_pk_mul_f32 {vr(CB,2)}, {vr(CB,2)}, v[4:5] op_sel_hi:[1,0]")
    row = lambda rho, h: 8 * (rho >> 2) + 4 * h + (rho & 3)
    e1, e2 = [], []
    X = 40
    def emit1(reg, rows):
        s = [f"    v_cvt_pk_bf16_f32 v26, v{reg}, -v{reg+1}"]
        s += [f"    ds_write_b32 v5, v26 offset:{r*RS}" for r in rows]
        return s
    def cm(d, x, y):
        t = []
        cmul(t.append, d, x, y); return t
    e1.append(([], emit1(CB, [row(0, 0)])))
    prev = CB; B0 = {0: CB}
    for k in range(1, 9):
        d = X + 2 * k; e1.append((cm(d, prev, Z1), emit1(d, [row(k, 0)]))); prev = d; B0[k] = d
    Y = 60
    pat = [0, 0, 2, 4, 4, 4, 6, 8, 8]
    cur = {}
    for n, off in enumerate([0, 2, 4, 6, 8]):
        d = Y + 2 * n; cur[off] = d
        e1.append((cm(d, B0[off], Z256), emit1(d, [row(r, 1) for r in range(9) if pat[r] == off])))
    alt = {0: 70, 4: 72, 8: 74}
    for (blk, offs) in ((2, [0, 4, 8]), (3, [0, 4, 8]), (4, [0, 8]), (5, [0, 8]), (6, [0, 8]), (7, [0, 8])):
        base = {2: 9, 3: 9, 4: 12, 5: 12, 6: 14, 7: 14}[blk]
        for n, off in enumerate(offs):
            d = alt[off]; alt[off] = cur[off]
            e1.append((cm(d, cur[off], Z256), emit1(d, [row(base + n, blk & 1)])))
            cur[off] = d
    def emit2(reg, j):
        return [f"    v_cvt_pk_bf16_f32 v27, v{reg}, v{reg+1}", f"    ds_write_b32 v5, v27 offset:{(32+j)*RS}"]
    e2.append(([], emit2(Z8, 1)))
    prev = Z8
    for j in range(2, 32):
        d = 76 + 2 * (j & 1); e2.append((cm(d, prev, Z8), emit2(d, j))); prev = d
    for n in range(max(len(e1), len(e2))):
        A_ = e1[n] if n < len(e1) else ([], []); B_ = e2[n] if n < len(e2) else ([], [])
        for k in range(2):
            if k < len(A_[0]): a(A_[0][k])
            if k < len(B_[0]): a(B_[0][k])
        if A_[1]: a(A_[1][0])
        if B_[1]: a(B_[1][0])
        for s in A_[1][1:] + B_[1][1:]: a(s)
    F = 28
    for kk in range(8):
        a(f"    ds_read_b128 {vr(F+8*kk,4)}, v6 offset:{32*kk}")
        a(f"    ds_read_b128 {vr(F+8*kk+4,4)}, v6 offset:{32*kk+32*RS}")
        if kk == 3:
            a("    s_waitcnt vmcnt(0)")
            for i in range(12): a(f"    v_mov_b32 v{P+i}, v{P+6+i}")
    for kk in range(8):
        a(f"    s_waitcnt lgkmcnt({14-2*kk})")
        a(f"    v_mfma_f32_32x32x16_bf16 {vr(ACC,16)}, {vr(F+8*kk,4)}, {vr(F+8*kk+4,4)}, {vr(ACC,16)}")
    a("""    s_sub_u32 s23, s23, 1
    s_cmp_lg_u32 s23, 0
    s_cbranch_scc1 K1_round""")
    V = lambda r: ACC + r
    a(f"""    v_and_b32 v2, 1, v0
    v_cmp_eq_u32 vcc, 1, v2
    v_lshlrev_b32 v2, 4, v0
    v_sub_u32 v2, 1008, v2              ; 1008 - 16*lane
    s_mul_i32 s22, s21, {KCH}
    s_add_u32 s22, s22, {WS_K}
    s_add_u32 s24, s22, 4160
    v_cndmask_b32 v26, v{V(12)}, v{V(13)}, vcc
    v_cndmask_b32 v27, v{V(14)}, v{V(15)}, vcc""")
    emap = [[V(k) for k in range(9)],
            [V(9)] * 3 + [V(10)] * 3 + [V(11)] * 3,
            [V(12)] * 4 + [26] + [V(13)] * 4,
            [V(14)] * 4 + [27] + [V(15)] * 4]
    for G in range(4):
        e = emap[G]
        o = 28 + 8 * G
        for k in range(4): a(f"    v_cvt_pk_bf16_f32 v{o+k}, v{e[7-2*k]}, v{e[6-2*k]}")
        for k in range(4): a(f"    v_cvt_pk_bf16_f32 v{o+4+k}, v{e[8-2*k]}, v{e[7-2*k]}")
        a(f"    buffer_store_dwordx4 {vr(o,4)}, v2, s[8:11], s22 offen offset:{3072-1024*G}")
        a(f"    buffer_store_dwordx4 {vr(o+4,4)}, v2, s[8:11], s24 offen offset:{3072-1024*G}")
    a(f"""    v_mov_b32 v61, 0
    v_cvt_pk_bf16_f32 v64, v{V(0)}, v61
    v_cmp_eq_u32 vcc, 0, v0
    v_mov_b32 v62, 0
    v_mov_b32 v63, 0
    v_cndmask_b32 v60, v61, v64, vcc
    v_lshlrev_b32 v2, 4, v0
    v_add_u32 v3, {4160+4096}, v2
    v_add_u32 v2, {4096-64}, v2
    v_cmp_gt_u32 vcc, 4, v0
    v_cndmask_b32 v2, v2, v3, vcc
    s_mov_b64 exec, 0xff
    buffer_store_dwordx4 v[60:63], v2, s[8:11], s22 offen
    s_endpgm""")
    RS = 1344
    XR = 8
    a(f"""K1_ln:
    s_sub_u32 s21, s2, 160              ; blk
    s_lshl_b32 s22, s21, 4
    s_lshl_b32 s23, s20, 2
    s_add_u32 s22, s22, s23
    v_lshrrev_b32 v1, 4, v0
    v_add_u32 v2, s22, v1
    v_mul_u32_u24 v2, 1280, v2
    v_and_b32 v3, 15, v0
    v_lshl_add_u32 v2, v3, 4, v2""")
    for q in range(5): a(f"    global_load_dwordx4 {vr(XR+4*q,4)}, v2, s[36:37] offset:{256*q}")
    a(f"""    v_add_u32 v4, s23, v1
    v_mul_u32_u24 v4, {RS}, v4
    v_lshl_add_u32 v4, v3, 4, v4
    v_lshrrev_b32 v5, 5, v0             ; half
    v_bfe_u32 v6, v0, 2, 2              ; r
    v_lshl_add_u32 v6, v5, 3, v6
    v_mul_u32_u24 v6, {RS}, v6
    v_bfe_u32 v7, v0, 4, 1              ; sub
    v_lshl_add_u32 v6, v7, 5, v6
    v_and_b32 v7, 3, v0
    v_lshl_add_u32 v6, v7, 3, v6
    s_mul_i32 s24, s20, 320
    v_add_u32 v6, s24, v6
    v_and_b32 v7, 31, v0
    v_lshlrev_b32 v7, 5, v7
    v_lshl_add_u32 v7, v5, 4, v7
    s_mul_i32 s24, s21, 20480
    s_mul_i32 s25, s20, 5120
    s_add_u32 s24, s24, s25
    s_add_u32 s25, s24, {WS_X}
    s_add_u32 s26, s24, 4096
    s_add_u32 s27, s25, 4096
    v_mov_b32 v30, 0
    v_mov_b32 v31, 0
    v_mov_b32 v32, 0
    v_mov_b32 v33, 0
    s_lshl_b32 s28, s22, 3
    s_add_u32 s28, s28, {WS_ST}
    v_lshlrev_b32 v29, 2, v0
    s_mov_b64 exec, 0xff
    buffer_store_dword v30, v29, s[8:11], s28 offen
    s_mov_b64 exec, -1
    v_mov_b32 v28, 0x3f803f80""")
    for q in range(5):
        a(f"    s_waitcnt vmcnt({5-q})")
        a(f"    ds_write_b128 v4, {vr(XR+4*q,4)} offset:{16*RS+256*q}")
        for k in range(4):
            r = XR + 4 * q + k
            a(f"    v_dot2_f32_bf16 v{30+(k&1)}, v{r}, v28, v{30+(k&1)}")
            a(f"    v_dot2_f32_bf16 v{32+(k&1)}, v{r}, v{r}, v{32+(k&1)}")
    a("    v_add_f32 v30, v30, v31\n    v_add_f32 v32, v32, v33")
    for sh in (8, 4, 2, 1):
        a(f"    v_add_f32_dpp v30, v30, v30 row_ror:{sh} row_mask:0xf bank_mask:0xf")
        a(f"    v_add_f32_dpp v32, v32, v32 row_ror:{sh} row_mask:0xf bank_mask:0xf")
    ln_scalars(a, 30, 32, 640, 34, 36, 31)
    for q in range(5):
        for k in range(4):
            r = XR + 4 * q + k; t = 40 + 2 * k
            a(f"    v_lshlrev_b32 v{t}, 16, v{r}")
            a(f"    v_and_b32 v{t+1}, 0xffff0000, v{r}")
        for k in range(4):
            t = 40 + 2 * k
            a(f"    v_pk_add_f32 {vr(t,2)}, {vr(t,2)}, v[34:35] op_sel_hi:[1,0] neg_lo:[0,1] neg_hi:[0,1]")
        for k in range(4):
            t = 40 + 2 * k
            a(f"    v_pk_mul_f32 {vr(t,2)}, {vr(t,2)}, v[36:37] op_sel_hi:[1,0]")
        o = 48 + 4 * q
        for k in range(4):
            t = 40 + 2 * k
            a(f"    v_cvt_pk_bf16_f32 v{o+k}, v{t}, v{t+1}")
        a(f"    ds_write_b128 v4, {vr(o,4)} offset:{256*q}")
    a("    s_waitcnt lgkmcnt(0)\n    s_barrier")
    for arr in range(2):
        for q in range(5):
            o = 8 + 20 * arr + 4 * q
            a(f"    ds_read_b64_tr_b16 {vr(o,2)}, v6 offset:{arr*16*RS+64*q}")
            a(f"    ds_read_b64_tr_b16 {vr(o+2,2)}, v6 offset:{arr*16*RS+64*q+4*RS}")
        if arr == 0: continue
    n = 0
    for arr in range(2):
        for q in range(5):
            o = 8 + 20 * arr + 4 * q
            n += 2
            a(f"    s_waitcnt lgkmcnt({min(15, 20-n)})")
            if q < 4: a(f"    buffer_store_dwordx4 {vr(o,4)}, v7, s[8:11], s{24+arr} offen offset:{1024*q}")
            else: a(f"    buffer_store_dwordx4 {vr(o,4)}, v7, s[8:11], s{26+arr} offen")
    a("K1_end:\n    s_endpgm")
    a.end_kernel()

def k2(a):
    a.begin_kernel("k2_kernel", 256, 256, 68608, 256)
    prologue(a, 256, "K2_end")
    a("""    s_load_dwordx2 s[6:7], s[0:1], 64        ; Dskip
    s_load_dwordx2 s[16:17], s[0:1], 80      ; w_in
    s_load_dwordx2 s[18:19], s[0:1], 104     ; w_out
    s_waitcnt lgkmcnt(0)""")
    srd(a, 8, 4, WS_SIZE)
    a("""    s_cmp_ge_u32 s2, 160
    s_cbranch_scc1 K2_help""")
    WL = KCH + 4608
    TB = 4 * WL
    a(f"""    s_lshl_b32 s21, s2, 2
    s_add_u32 s21, s21, s20            ; d
    s_mul_i32 s22, s20, {WL}
    s_add_u32 s23, s22, {KCH}
    v_lshlrev_b32 v2, 4, v0
    v_lshrrev_b32 v3, 1, v0
    v_mul_u32_u24 v3, 20480, v3
    v_and_b32 v4, 1, v0
    v_lshl_add_u32 v3, v4, 4, v3
    s_lshl_b32 s24, s21, 5             ; d*32
    s_add_u32 m0, s23, 512""")
    for q in range(4):
        a(f"    buffer_load_dwordx4 v3, s[8:11], s24 offen lds")
        if q < 3: a(f"    s_add_u32 m0, m0, 1024\n    s_add_u32 s24, s24, {32*20480}")
    a(f"""    s_mul_i32 s25, s21, {KCH}
    s_add_u32 s25, s25, {WS_K}
    s_mov_b32 m0, s22""")
    for h in range(2):
        for q in range(4): a(f"    buffer_load_dwordx4 v2, s[8:11], s25 offen offset:{1024*q} lds")
        a("    s_add_u32 m0, m0, 4096\n    s_add_u32 s25, s25, 4096")
    a(f"""    s_mov_b64 exec, 0xff
    buffer_load_dwordx4 v2, s[8:11], s25 offen lds
    s_mov_b64 exec, -1
    v_and_b32 v5, 15, v0               ; a / b
    v_lshrrev_b32 v6, 4, v0            ; g
    v_mul_u32_u24 v7, 20480, v5
    v_lshl_add_u32 v7, v6, 3, v7
    s_lshl_b32 s24, s21, 5
    s_add_u32 s24, s24, {WS_X}""")
    XR = 200
    for J in range(8):
        a(f"    buffer_load_dwordx2 {vr(XR+2*J,2)}, v7, s[8:11], s24 offen")
        if J < 7: a(f"    s_add_u32 s24, s24, {16*20480}")
    a(f"""    s_lshl_b32 s24, s21, 1
    v_mov_b32 v7, s24
    v_mov_b32 v216, 0
    global_load_short_d16_hi v216, v7, s[6:7]
    v_mov_b32 v8, 0
    v_mov_b32 v9, 0
    v_lshl_add_u32 v7, v0, 3, s23
    ds_write_b64 v7, v[8:9]
    ; A addresses v10..v13
    v_add_u32 v8, 1, v5
    v_lshrrev_b32 v8, 1, v8
    v_lshlrev_b32 v8, 2, v8            ; 4*((b+1)>>1)
    v_lshl_add_u32 v8, v6, 4, v8       ; + 16 g
    v_and_b32 v9, 1, v5
    v_mul_u32_u24 v9, 4160, v9
    v_add_u32 v8, v8, v9
    s_add_u32 s24, s22, {4160 + 4112 - 512 - 64}
    v_sub_u32 v10, s24, v8
    v_subrev_u32 v11, 1024, v10
    v_subrev_u32 v12, 2048, v10
    v_subrev_u32 v13, 3072, v10
    ; B address v14
    v_lshlrev_b32 v14, 5, v5
    v_lshlrev_b32 v9, 4, v6
    v_sub_u32 v14, v14, v9
    s_add_u32 s24, s23, {512 + 16 - 64}
    v_add_u32 v14, s24, v14""")
    ACC = 16
    SET = [48, 112]
    for i in range(32): a(f"    v_mov_b32 v{ACC+i}, 0")
    def reads(st, rr):
        L = []
        for p in range(8):
            o = (128 if p % 2 == 0 else 0) + 16 * rr
            d = SET[st] + 4 * p
            L.append((f"    ds_read2_b32 {vr(d,2)}, v{10+p//2} offset0:{o} offset1:{o+1}",
                      f"    ds_read2_b32 {vr(d+2,2)}, v{10+p//2} offset0:{o+2} offset1:{o+3}",
                      f"    ds_read_b128 {vr(d+32,4)}, v14 offset:{512*p+64*rr}"))
        return [x for t in L for x in t]
    def mf(st):
        L = []
        for p in range(8):
            for q in range(8 - p):
                c = ACC + 4 * (p + q)
                L.append(f"    v_mfma_f32_16x16x32_bf16 {vr(c,4)}, {vr(SET[st]+4*p,4)}, {vr(SET[st]+32+4*q,4)}, {vr(c,4)}")
        return L
    a("    s_waitcnt vmcnt(9)")
    for s in reads(0, 1): a(s)
    a("    s_mov_b32 s26, 4\nK2_loop:")
    def block(st, rd, pre=()):
        a("    s_waitcnt lgkmcnt(0)")
        rd = list(pre) + rd
        for n, m in enumerate(mf(st)):
            a(m)
            if n < len(rd): a(rd[n])
    block(0, reads(1, 0))
    block(1, reads(0, 1), [f"    v_subrev_u32 v{r}, 128, v{r}" for r in range(10, 15)])
    a("""    s_sub_u32 s26, s26, 1
    s_cmp_lg_u32 s26, 0
    s_cbranch_scc1 K2_loop""")
    UR = 48
    a(f"""    s_waitcnt lgkmcnt(0)
    v_lshlrev_b32 v7, 5, v5
    v_lshl_add_u32 v7, v6, 3, v7
    s_add_u32 s24, s23, 512
    v_add_u32 v7, s24, v7""")
    for J in range(8): a(f"    ds_read_b64 {vr(UR+2*J,2)}, v7 offset:{512*J}")
    a(f"""    v_lshlrev_b32 v7, 4, v5
    v_lshl_add_u32 v7, v6, 2, v7
    s_mul_i32 s24, s20, 2112
    s_add_u32 s24, s24, {TB}
    v_add_u32 v7, s24, v7
    s_waitcnt vmcnt(0)""")
    for J in range(8):
        t = 64 + 8 * (J & 1); c = ACC + 4 * J
        a(f"    s_waitcnt lgkmcnt({7-J + J})" if False else "")
        if J == 0: a("    s_waitcnt lgkmcnt(0)")
        for k in range(2):
            a(f"    v_lshlrev_b32 v{t+2*k}, 16, v{XR+2*J+k}")
            a(f"    v_and_b32 v{t+2*k+1}, 0xffff0000, v{XR+2*J+k}")
            a(f"    v_lshlrev_b32 v{t+4+2*k}, 16, v{UR+2*J+k}")
            a(f"    v_and_b32 v{t+4+2*k+1}, 0xffff0000, v{UR+2*J+k}")
        for k in range(2):
            a(f"    v_pk_fma_f32 {vr(c+2*k,2)}, {vr(t+4+2*k,2)}, v[216:217], {vr(c+2*k,2)} op_sel_hi:[1,0,1]")
        for k in range(2):
            a(f"    v_pk_add_f32 {vr(c+2*k,2)}, {vr(c+2*k,2)}, {vr(t+2*k,2)}")
        a(f"    v_cvt_pk_bf16_f32 v{c}, v{c}, v{c+2}")
        a(f"    v_cvt_pk_bf16_f32 v{c+1}, v{c+1}, v{c+3}")
        a(f"    ds_write2st64_b32 v7, v{c}, v{c+1} offset0:{J} offset1:{33+J}")
    a(f"""    v_bfe_u32 v8, v0, 2, 2
    v_mul_u32_u24 v8, 2112, v8
    v_lshl_add_u32 v8, v6, 5, v8
    v_and_b32 v9, 3, v0
    v_lshl_add_u32 v8, v9, 3, v8
    s_lshl_b32 s24, s20, 9
    s_add_u32 s24, s24, {TB}
    v_add_u32 v8, s24, v8
    s_lshl_b32 s24, s2, 14
    s_lshl_b32 s25, s20, 12
    s_add_u32 s24, s24, s25
    s_add_u32 s24, s24, {WS_H}
    s_waitcnt lgkmcnt(0)
    s_barrier""")
    for q in range(4):
        a(f"    ds_read_b64_tr_b16 {vr(48+4*q,2)}, v8 offset:{128*q}")
        a(f"    ds_read_b64_tr_b16 {vr(50+4*q,2)}, v8 offset:{128*q+8448}")
    for q in range(4):
        a(f"    s_waitcnt lgkmcnt({6-2*q})")
        a(f"    buffer_store_dwordx4 {vr(48+4*q,4)}, v2, s[8:11], s24 offen offset:{1024*q}")
    a("    s_endpgm")
    a("""K2_help:
    v_lshlrev_b32 v2, 4, v0
    s_cmp_ge_u32 s2, 208
    s_cbranch_scc1 K2_hout""")
    srd(a, 12, 16, 640 * 1536 * 2)
    a(f"""    s_sub_u32 s21, s2, 160
    s_lshr_b32 s22, s21, 1             ; cg
    s_and_b32 s23, s21, 1              ; kh
    v_lshrrev_b32 v3, 3, v0
    v_mul_u32_u24 v3, 3072, v3
    v_and_b32 v4, 7, v0
    v_lshl_add_u32 v3, v4, 4, v3
    s_mul_i32 s24, s23, {320*3072}
    s_mul_i32 s25, s20, {80*3072}
    s_add_u32 s24, s24, s25
    s_lshl_b32 s25, s22, 7
    s_add_u32 s24, s24, s25
    s_mul_i32 m0, s20, 10240""")
    for q in range(10):
        a("    buffer_load_dwordx4 v3, s[12:15], s24 offen lds")
        if q < 9: a(f"    s_add_u32 m0, m0, 1024\n    s_add_u32 s24, s24, {8*3072}")
    a(f"""    v_lshrrev_b32 v5, 4, v0            ; g
    v_bfe_u32 v6, v0, 2, 2
    v_lshl_add_u32 v6, v5, 3, v6
    v_lshlrev_b32 v6, 7, v6
    v_and_b32 v7, 3, v0
    v_lshl_add_u32 v6, v7, 3, v6
    s_lshl_b32 s25, s20, 5
    v_add_u32 v6, s25, v6
    s_lshl_b32 s26, s22, 2
    s_add_u32 s26, s26, s20            ; T
    s_cmp_ge_u32 s26, 48
    s_cselect_b32 s27, 48, 0
    s_cselect_b32 s28, 0, 3
    s_sub_u32 s27, s26, s27            ; T'
    s_mul_i32 s29, s27, 43691
    s_lshr_b32 s29, s29, 17            ; cb
    s_mul_i32 s30, s29, 3
    s_sub_u32 s30, s27, s30
    s_add_u32 s30, s30, s28            ; slot
    s_mul_i32 s29, s29, 120
    s_mul_i32 s31, s23, 60
    s_add_u32 s29, s29, s31
    s_add_u32 s29, s29, s30
    s_lshl_b32 s29, s29, 10
    s_add_u32 s29, s29, {WS_WIN}
    v_mov_b32 v8, 0
    v_mov_b32 v9, 0
    v_mov_b32 v10, 0x3f803f80
    s_waitcnt vmcnt(0)
    s_barrier""")
    for ks in range(10):
        a(f"    ds_read_b64_tr_b16 {vr(16+4*ks,2)}, v6 offset:{4096*ks}")
        a(f"    ds_read_b64_tr_b16 {vr(18+4*ks,2)}, v6 offset:{4096*ks+512}")
    for ks in range(10):
        a(f"    s_waitcnt lgkmcnt({min(15,18-2*ks)})")
        a(f"    buffer_store_dwordx4 {vr(16+4*ks,4)}, v2, s[8:11], s29 offen")
        a(f"    s_add_u32 s29, s29, 6144")
        for k in range(4): a(f"    v_dot2_f32_bf16 v{8+(k&1)}, v{16+4*ks+k}, v10, v{8+(k&1)}")
    a(f"""    v_add_f32 v8, v8, v9
    v_mov_b32 v9, v8
    v_permlane16_swap_b32 v8, v9
    v_add_f32 v8, v8, v9
    v_mov_b32 v9, v8
    v_permlane32_swap_b32 v8, v9
    v_add_f32 v8, v8, v9
    s_lshl_b32 s26, s26, 6
    s_mul_i32 s27, s23, 6144
    s_add_u32 s26, s26, s27
    s_add_u32 s26, s26, {WS_CS}
    v_lshlrev_b32 v3, 2, v0
    s_mov_b64 exec, 0xffff
    buffer_store_dword v8, v3, s[8:11], s26 offen
    s_endpgm
K2_hout:""")
    srd(a, 12, 18, 768 * 640 * 2)
    a(f"""    s_sub_u32 s21, s2, 208
    s_and_b32 s22, s21, 7              ; db
    s_lshr_b32 s23, s21, 3
    s_lshl_b32 s23, s23, 2
    s_add_u32 s23, s23, s20            ; ks
    s_mul_i32 s24, s23, {32*1280}
    s_mul_i32 s25, s22, 160
    s_add_u32 s24, s24, s25
    s_mul_i32 s26, s20, 5120
    s_mov_b32 m0, s26""")
    for q in range(5):
        a(f"""    v_add_u32 v3, {64*q}, v0
    v_mul_u32_u24 v4, 6554, v3
    v_lshrrev_b32 v4, 16, v4
    v_mul_u32_u24 v4, 1120, v4
    v_lshl_add_u32 v3, v3, 4, v4
    buffer_load_dwordx4 v3, s[12:15], s24 offen lds""")
        if q < 4: a("    s_add_u32 m0, m0, 1024")
    a(f"""    v_lshrrev_b32 v6, 2, v0            ; 4g + r
    v_mul_u32_u24 v6, 160, v6
    v_add_u32 v6, s26, v6
    v_and_b32 v7, 3, v0
    v_lshl_add_u32 v5, v7, 3, v6
    v_lshl_add_u32 v6, v7, 4, v6
    s_mul_i32 s27, s22, 24
    s_add_u32 s27, s27, s23
    s_mul_i32 s27, s27, 5120
    s_add_u32 s27, s27, {WS_WOUT}
    s_add_u32 s28, s27, 4096
    s_waitcnt vmcnt(0)""")
    for t in range(5):
        ad, o = (6, 64 * (t >> 1) + 8 * (t & 1)) if t < 4 else (5, 128)
        a(f"    ds_read_b64_tr_b16 {vr(16+4*t,2)}, v{ad} offset:{o}")
        a(f"    ds_read_b64_tr_b16 {vr(18+4*t,2)}, v{ad} offset:{o+16*160}")
    for t in range(5):
        a(f"    s_waitcnt lgkmcnt({8-2*t})")
        if t < 4: a(f"    buffer_store_dwordx4 {vr(16+4*t,4)}, v2, s[8:11], s27 offen offset:{1024*t}")
        else: a(f"    buffer_store_dwordx4 {vr(16+4*t,4)}, v2, s[8:11], s28 offen")
    a("K2_end:\n    s_endpgm")
    a.end_kernel()

def allreduce_g(a, v, t):
    a(f"""    v_mov_b32 v{t}, v{v}
    v_permlane16_swap_b32 v{v}, v{t}
    v_add_f32 v{v}, v{v}, v{t}
    v_mov_b32 v{t}, v{v}
    v_permlane32_swap_b32 v{v}, v{t}
    v_add_f32 v{v}, v{v}, v{t}""")

def gelu_block(a, regs, T, KK):
    ts = [T + 2 * n for n in range(len(regs))]
    for x, t in zip(regs, ts): a(f"    v_pk_mul_f32 {vr(t,2)}, {vr(x,2)}, {vr(x,2)}")
    for x, t in zip(regs, ts): a(f"    v_pk_fma_f32 {vr(t,2)}, {vr(t,2)}, {vr(KK,2)}, {vr(KK,2)} op_sel:[0,1,0] op_sel_hi:[1,1,0]")
    for x, t in zip(regs, ts): a(f"    v_pk_mul_f32 {vr(t,2)}, {vr(t,2)}, {vr(x,2)}")
    for x, t in zip(regs, ts): a(f"    v_exp_f32 v{t}, v{t}\n    v_exp_f32 v{t+1}, v{t+1}")
    for x, t in zip(regs, ts): a(f"    v_pk_add_f32 {vr(t,2)}, {vr(t,2)}, 1.0 op_sel_hi:[1,0]")
    for x, t in zip(regs, ts): a(f"    v_rcp_f32 v{t}, v{t}\n    v_rcp_f32 v{t+1}, v{t+1}")
    for x, t in zip(regs, ts): a(f"    v_pk_mul_f32 {vr(x,2)}, {vr(x,2)}, {vr(t,2)}")

def k3(a):
    a.begin_kernel("k3_kernel", 256, 256, 122880 + 1024, 256)
    prologue(a, 256, "K3_end")
    a(f"""    s_and_b32 s21, s2, 7
    s_lshr_b32 s22, s2, 3
    s_lshr_b32 s23, s21, 1
    s_lshl_b32 s23, s23, 2
    s_lshr_b32 s24, s22, 3
    s_add_u32 s23, s23, s24            ; rb
    s_and_b32 s24, s21, 1
    s_lshl_b32 s24, s24, 3
    s_and_b32 s25, s22, 7
    s_add_u32 s24, s24, s25            ; cb
    s_lshl_b32 s25, s23, 2
    s_add_u32 s25, s25, s20
    v_and_b32 v5, 15, v0
    v_lshrrev_b32 v6, 4, v0
    v_lshlrev_b32 v2, 4, v0
    v_lshlrev_b32 v3, 15, v6
    v_lshl_add_u32 v3, v5, 4, v3
    v_add_u32 v4, 16384, v3
    s_lshl_b32 s26, s25, 8
    s_add_u32 s26, s26, {WS_H}         ; A soffset
    s_mul_i32 s27, s24, 122880
    s_mul_i32 s28, s20, 6144
    s_add_u32 s27, s27, s28
    s_add_u32 s27, s27, {WS_WIN}
    s_waitcnt lgkmcnt(0)""")
    srd(a, 8, 4, WS_SIZE)
    RING = 12
    AB = 8
    ACC = 132
    BF = [180, 204]
    ST = 228
    CS2 = 234
    def aload(s):
        b = AB + 10 * (s % RING)
        a(f"    buffer_load_dwordx4 {vr(b+6,4)}, v3, s[8:11], s26 offen")
        a(f"    buffer_load_dwordx4 {vr(b+2,4)}, v4, s[8:11], s26 offen")
        a(f"    s_add_u32 s26, s26, {8*16384}")
    def bload(grp):
        a(f"    s_add_u32 m0, s28, {grp*24576}")
        for q in range(4): a(f"    buffer_load_dwordx4 v2, s[8:11], s27 offen offset:{1024*q} lds")
        a(f"    s_add_u32 m0, m0, 4096\n    s_add_u32 s29, s27, 4096")
        for q in range(2): a(f"    buffer_load_dwordx4 v2, s[8:11], s29 offen offset:{1024*q} lds")
        a(f"    s_add_u32 s27, s27, 24576")
    for grp in range(3):
        bload(grp)
        for s in range(4 * grp, 4 * grp + 4): aload(s)
    for i in range(48): a(f"    v_mov_b32 v{ACC+i}, 0")
    for i in range(4): a(f"    v_mov_b32 v{ST+i}, 0")
    a(f"    v_mov_b32 v{ST+4}, 0x3f803f80")
    def breads(s): return [f"    ds_read_b128 {vr(BF[s&1]+4*t,4)}, v7 offset:{(s%10)*6144+1024*t}" for t in range(6)]
    a("    v_mov_b32 v7, v2")
    issued = 42
    done_mark = {g: 14 * (g + 1) for g in range(5)}
    for s in range(20):
        grp = s // 4
        b = AB + 10 * (s % RING)
        if s % 4 == 0:
            a(f"    s_waitcnt vmcnt({issued - done_mark[grp]})")
            a("    s_barrier")
            if s == 0:
                for x in breads(0): a(x)
        nxt_same_group = (s % 4 != 3)
        val = []
        val.append(f"    v_pk_mov_b32 {vr(b+10,2)}, {vr(b+4,2)}, {vr(b+4,2)} op_sel:[0,1]")
        val.append(f"    v_pk_mov_b32 {vr(b,2)}, {vr(b+6,2)}, {vr(b+6,2)} op_sel:[0,1]")
        for x in val: a(x)
        if s % 4 == 0 and s > 0:
            if s == 10 + 2: pass
            for x in breads(s): a(x)
        dots = []
        for k in range(2):
            for base in (b + 2, b + 6):
                dots.append(f"    v_dot2_f32_bf16 v{ST}, v{base+k}, v{ST+4}, v{ST}")
                dots.append(f"    v_dot2_f32_bf16 v{ST+1}, v{base+k}, v{base+k}, v{ST+1}")
                dots.append(f"    v_dot2_f32_bf16 v{ST+2}, v{base+2+k}, v{ST+4}, v{ST+2}")
                dots.append(f"    v_dot2_f32_bf16 v{ST+3}, v{base+2+k}, v{base+2+k}, v{ST+3}")
        rd = []
        if nxt_same_group:
            if s + 1 == 10: rd.append("    v_add_u32 v7, 61440, v7")
            rd += breads(s + 1)
        a("    s_waitcnt lgkmcnt(0)")
        fill = rd + dots
        n = 0
        for par in (1, 0):
            af = vr(b + 8, 4) if par else vr(b, 4)
            for t in range(6):
                c = vr(ACC + 8 * t + 4 * par, 4); bf_ = vr(BF[s & 1] + 4 * t, 4)
                if t < 3: a(f"    v_mfma_f32_16x16x32_bf16 {c}, {af}, {bf_}, {c}")
                else: a(f"    v_mfma_f32_16x16x32_bf16 {c}, {bf_}, {af}, {c}")
                for _ in range(2):
                    if n < len(fill): a(fill[n]); n += 1
        assert n == len(fill)
        if s % 4 == 3 and grp + 3 < 5:
            bload(grp + 3)
            for s2_ in range(4 * (grp + 3), 4 * (grp + 3) + 4): aload(s2_)
            issued += 14
        if s == 11:
            a(f"""    s_mul_i32 s29, s24, 192
    s_add_u32 s29, s29, {WS_CS}
    s_add_u32 s30, s29, 3072
    s_add_u32 s31, s29, 6144
    s_add_u32 s32, s30, 6144
    v_lshlrev_b32 v240, 2, v5
    v_lshlrev_b32 v241, 4, v6""")
            for t in range(3):
                a(f"    buffer_load_dword v{CS2+t}, v240, s[8:11], s30 offen offset:{64*t}")
                a(f"    buffer_load_dword v{CS2+3+t}, v240, s[8:11], s32 offen offset:{64*t}")
                a(f"    buffer_load_dwordx4 {vr(92+4*t,4)}, v241, s[8:11], s29 offen offset:{64*t}")
                a(f"    buffer_load_dwordx4 {vr(104+4*t,4)}, v241, s[8:11], s31 offen offset:{64*t}")
            issued += 12
    for i in range(4): allreduce_g(a, ST + i, 8 + i)
    RE, ME, RO, MO = 12, 14, 16, 18
    ln_scalars(a, ST, ST + 1, 640, ME, RE, 8)
    ln_scalars(a, ST + 2, ST + 3, 640, MO, RO, 9)
    a(f"""    v_mul_f32 v{ME}, v{ME}, v{RE}
    v_mul_f32 v{MO}, v{MO}, v{RO}
    s_lshl_b32 s29, s20, 8
    s_add_u32 s29, s29, 122880
    v_add_u32 v8, s29, v240
    v_add_u32 v9, s29, v241
    ds_write2_b32 v8, v{RE}, v{RO} offset0:0 offset1:16
    ds_write2_b32 v8, v{ME}, v{MO} offset0:32 offset1:48""")
    RR = 20
    for k in range(4): a(f"    ds_read_b128 {vr(RR+4*k,4)}, v9 offset:{64*k}")
    KK = 10
    c0 = -2.0 * math.sqrt(2.0 / math.pi) * LOG2E
    a(f"""    v_mov_b32 v{KK}, {f2u(c0)}
    v_mov_b32 v{KK+1}, {f2u(c0*0.044715)}
    s_waitcnt vmcnt(0)""")
    for t in range(3):
        a(f"    v_add_f32 v{36+2*t}, v{CS2+t}, v{CS2+3+t}")
        for k in range(2): a(f"    v_pk_add_f32 {vr(92+4*t+2*k,2)}, {vr(92+4*t+2*k,2)}, {vr(104+4*t+2*k,2)}")
    a(f"""    s_mul_i32 s29, s24, 64
    s_add_u32 s29, s29, s25
    s_mul_i32 s29, s29, 3072
    s_add_u32 s30, s29, {WS_Z1}
    s_add_u32 s29, s29, {WS_Z2}
    s_waitcnt lgkmcnt(0)""")
    SS, QQ = 44, 52
    for t in range(3):
        prs = [ACC + 8 * t + 2 * k for k in range(4)]
        for k, x in enumerate(prs): a(f"    v_pk_mul_f32 {vr(x,2)}, {vr(x,2)}, {vr(RR+2*k,2)}")
        for k, x in enumerate(prs): a(f"    v_pk_fma_f32 {vr(x,2)}, {vr(RR+8+2*k,2)}, {vr(36+2*t,2)}, {vr(x,2)} op_sel_hi:[1,0,1] neg_lo:[1,0,0] neg_hi:[1,0,0]")
        gelu_block(a, prs, 60, KK)
        for k, x in enumerate(prs):
            if t == 0:
                a(f"    v_pk_mul_f32 {vr(QQ+2*k,2)}, {vr(x,2)}, {vr(x,2)}")
            else:
                a(f"    v_pk_add_f32 {vr(SS+2*k,2)}, {vr(x,2)}, {vr(SS+2*k if t == 2 else ACC+2*k,2)}")
                a(f"    v_pk_fma_f32 {vr(QQ+2*k,2)}, {vr(x,2)}, {vr(x,2)}, {vr(QQ+2*k,2)}")
        o = 68 + 4 * t
        for r in range(4): a(f"    v_cvt_pk_bf16_f32 v{o+r}, v{ACC+8*t+r}, v{ACC+8*t+4+r}")
        a(f"    buffer_store_dwordx4 {vr(o,4)}, v2, s[8:11], s29 offen offset:{1024*t}")
    for k in range(8):
        a(f"    v_add_f32_dpp v{SS+k}, v{SS+k}, v{SS+k} row_ror:8 row_mask:0xf bank_mask:0x3")
    for k in range(8):
        a(f"    v_add_f32_dpp v{SS+k}, v{QQ+k}, v{QQ+k} row_ror:8 row_mask:0xf bank_mask:0xc")
    for k in range(4):
        a(f"    v_add_f32_dpp v{SS+k}, v{SS+k}, v{SS+k} row_half_mirror row_mask:0xf bank_mask:0x5")
    for k in range(4):
        a(f"    v_add_f32_dpp v{SS+k}, v{SS+4+k}, v{SS+4+k} row_half_mirror row_mask:0xf bank_mask:0xa")
    for k in range(4):
        a(f"    v_add_f32_dpp v{SS+k}, v{SS+k}, v{SS+k} quad_perm:[2,3,0,1] row_mask:0xf bank_mask:0xf")
    for k in range(4):
        a(f"    v_add_f32_dpp v{SS+k}, v{SS+k}, v{SS+k} quad_perm:[1,0,3,2] row_mask:0xf bank_mask:0xf")
    a(f"""    v_and_b32 v8, 3, v0
    v_cmp_eq_u32 vcc, 1, v8
    v_cndmask_b32 v{SS}, v{SS}, v{SS+1}, vcc
    v_cmp_eq_u32 vcc, 2, v8
    v_cndmask_b32 v{SS}, v{SS}, v{SS+2}, vcc
    v_cmp_eq_u32 vcc, 3, v8
    v_cndmask_b32 v{SS}, v{SS}, v{SS+3}, vcc
    v_lshlrev_b32 v8, 4, v8
    v_lshl_add_u32 v8, v6, 6, v8
    v_bfe_u32 v9, v0, 2, 1
    v_lshl_add_u32 v8, v9, 3, v8
    v_bfe_u32 v9, v0, 3, 1
    v_lshl_add_u32 v8, v9, 2, v8
    s_lshl_b32 s31, s25, 8
    s_add_u32 s31, s31, {WS_ST}
    buffer_atomic_add_f32 v{SS}, v8, s[8:11], s31 offen""")
    for t in range(3):
        prs = [ACC + 8 * (3 + t) + 2 * k for k in range(4)]
        for k, x in enumerate(prs): a(f"    v_pk_mul_f32 {vr(x,2)}, {vr(x,2)}, {vr(RE if k < 2 else RO,2)} op_sel_hi:[1,0]")
        for k, x in enumerate(prs): a(f"    v_pk_fma_f32 {vr(x,2)}, {vr(92+4*t+2*(k&1),2)}, {vr(ME if k < 2 else MO,2)}, {vr(x,2)} op_sel_hi:[1,0,1] neg_lo:[1,0,0] neg_hi:[1,0,0]")
        gelu_block(a, prs, 60, KK)
        o = 80 + 4 * t
        for k, x in enumerate(prs): a(f"    v_cvt_pk_bf16_f32 v{o+k}, v{x}, v{x+1}")
        a(f"    buffer_store_dwordx4 {vr(o,4)}, v2, s[8:11], s30 offen offset:{1024*t}")
    a("K3_end:\n    s_endpgm")
    a.end_kernel()

def k3b(a):
    a.begin_kernel("k3b_kernel", 256, 256, 0, 128)
    prologue(a, 256, "K3b_end")
    a(f"""    s_lshl_b32 s21, s2, 2
    s_add_u32 s21, s21, s20
    s_and_b32 s22, s21, 63
    s_mul_i32 s23, s21, 3072
    s_add_u32 s23, s23, {WS_Z2}
    s_lshl_b32 s22, s22, 8
    s_add_u32 s22, s22, {WS_ST}
    v_lshlrev_b32 v2, 4, v0
    v_lshrrev_b32 v3, 4, v0
    v_lshlrev_b32 v3, 6, v3
    s_waitcnt lgkmcnt(0)""")
    srd(a, 8, 4, WS_SIZE)
    for k in range(4): a(f"    buffer_load_dwordx4 {vr(8+4*k,4)}, v3, s[8:11], s22 offen offset:{16*k}")
    for t in range(3): a(f"    buffer_load_dwordx4 {vr(24+4*t,4)}, v2, s[8:11], s23 offen offset:{1024*t}")
    a("    s_waitcnt vmcnt(3)")
    for j in range(8): ln_scalars(a, 8 + 2 * j, 9 + 2 * j, 768, 40 + j, 48 + j, 4)
    a("    s_waitcnt vmcnt(0)")
    for t in range(3):
        for k in range(4):
            r = 24 + 4 * t + k
            a(f"    v_lshlrev_b32 v60, 16, v{r}\n    v_and_b32 v61, 0xffff0000, v{r}")
            a(f"    v_pk_add_f32 v[60:61], v[60:61], {vr(40+2*k,2)} neg_lo:[0,1] neg_hi:[0,1]")
            a(f"    v_pk_mul_f32 v[60:61], v[60:61], {vr(48+2*k,2)}")
            a(f"    v_cvt_pk_bf16_f32 v{r}, v60, v61")
        a(f"    buffer_store_dwordx4 {vr(24+4*t,4)}, v2, s[8:11], s23 offen offset:{1024*t}")
    a("K3b_end:\n    s_endpgm")
    a.end_kernel()

def k4(a):
    NSLOT = 8; D = 5
    a.begin_kernel("k4_kernel", 256, 256, NSLOT * 16384, 256)
    prologue(a, 256, "K4_end")
    a(f"""    s_load_dwordx4 s[16:19], s[0:1], 88
    s_and_b32 s21, s2, 7
    s_lshr_b32 s22, s2, 3
    s_lshr_b32 s23, s21, 1
    s_lshl_b32 s23, s23, 3
    s_lshr_b32 s24, s22, 2
    s_add_u32 s23, s23, s24            ; tb
    s_and_b32 s24, s21, 1
    s_lshl_b32 s24, s24, 2
    s_and_b32 s25, s22, 3
    s_add_u32 s24, s24, s25            ; fb
    s_lshr_b32 s25, s20, 1             ; kh
    s_and_b32 s26, s20, 1              ; fh
    s_lshl_b32 s27, s24, 1
    s_add_u32 s27, s27, s26
    v_lshlrev_b32 v2, 4, v0
    v_and_b32 v5, 15, v0
    v_lshrrev_b32 v6, 4, v0
    v_lshrrev_b32 v3, 3, v0            ; l>>3
    v_lshrrev_b32 v4, 1, v3
    v_and_b32 v7, 7, v0
    v_xor_b32 v7, v7, v4
    v_xor_b32 v8, 4, v7
    v_lshlrev_b32 v3, 13, v3           ; 2*i*4096
    v_lshl_add_u32 v4, v8, 4, v3
    v_add_u32 v4, {16*4096}, v4        ; odd q: i += 8
    v_lshl_add_u32 v3, v7, 4, v3
    s_lshl_b32 s28, s23, 18
    s_lshl_b32 s29, s26, 17
    s_add_u32 s28, s28, s29
    s_lshl_b32 s29, s25, 11
    s_add_u32 s28, s28, s29
    s_lshl_b32 s30, s20, 12
    s_lshl_b32 s31, s27, 6
    s_lshl_b32 s29, s25, 5
    s_add_u32 s31, s31, s29
    s_mul_i32 s31, s31, 3072
    s_add_u32 s31, s31, {WS_Z2}        ; Z soffset
    v_lshrrev_b32 v7, 1, v5
    v_xor_b32 v7, v7, v6
    v_lshlrev_b32 v9, 7, v5
    s_lshl_b32 s29, s25, 13
    v_add_u32 v9, s29, v9
    v_xor_b32 v8, 4, v7
    v_lshl_add_u32 v10, v8, 4, v9
    v_lshl_add_u32 v9, v7, 4, v9
    s_waitcnt lgkmcnt(0)""")
    srd(a, 8, 4, WS_SIZE)
    srd(a, 12, 16, 2048 * 4096)
    ZR = 16
    NZ = D + 1
    WF = 160
    ACC = 192
    def loads(st):
        L = []
        L.append(f"    s_add_u32 m0, s30, {(st % NSLOT) * 16384}")
        L.append(f"    s_add_u32 s29, s28, 4096-2048")
        L.append(f"    buffer_load_dwordx4 v3, s[12:15], s28 offen lds")
        L.append(f"    buffer_load_dwordx4 v3, s[12:15], s29 offen offset:2048 lds")
        L.append(f"    s_add_u32 m0, m0, 1024")
        L.append(f"    s_add_u32 s33, s31, 3072")
        L.append(f"    buffer_load_dwordx4 v4, s[12:15], s28 offen lds")
        L.append(f"    buffer_load_dwordx4 v4, s[12:15], s29 offen offset:2048 lds")
        z = ZR + 24 * (st % NZ)
        for k in range(3): L.append(f"    buffer_load_dwordx4 {vr(z+4*k,4)}, v2, s[8:11], s31 offen offset:{1024*k}")
        for k in range(3): L.append(f"    buffer_load_dwordx4 {vr(z+12+4*k,4)}, v2, s[8:11], s33 offen offset:{1024*k}")
        L.append(f"    s_add_u32 s28, s28, 128")
        L.append(f"    s_add_u32 s31, s31, 6144")
        return L
    for st in range(D):
        for x in loads(st): a(x)
    for i in range(48): a(f"    v_mov_b32 v{ACC+i}, 0")
    issued = 10 * D
    for st in range(16):
        a(f"    s_waitcnt vmcnt({issued - 10*(st+1)})")
        a("    s_barrier")
        so = (st % NSLOT) * 16384
        base = (so // 65536) * 65536
        if st % 4 == 0 and st > 0:
            op = "v_add_u32" if base else "v_subrev_u32"
            a(f"    {op} v9, 65536, v9\n    {op} v10, 65536, v10")
        for ks in range(2):
            for tt in range(4):
                a(f"    ds_read_b128 {vr(WF+16*ks+4*tt,4)}, v{9+ks} offset:{so-base+2048*tt}")
        fill = []
        if st + D < 16:
            fill = loads(st + D); issued += 10
        elif st + D == 16:
            fill = [f"    s_lshl_b32 s34, s23, 1", "    s_add_u32 s34, s34, s25", "    s_lshl_b32 s29, s27, 6", "    s_add_u32 s29, s29, s34",
                    "    s_mul_i32 s29, s29, 3072", f"    s_add_u32 s29, s29, {WS_Z1}"]
            fill += [f"    buffer_load_dwordx4 {vr(240+4*k,4)}, v2, s[8:11], s29 offen offset:{1024*k}" for k in range(3)]
            fill += ["    s_lshl_b32 s29, s34, 6", "    v_lshl_add_u32 v11, v5, 2, s29", "    global_load_dword v12, v11, s[18:19]"]
            issued += 4
        z = ZR + 24 * (st % NZ)
        n = 0
        for ks in range(2):
            for tt in range(4):
                a(f"    s_waitcnt lgkmcnt({7 - (4*ks+tt)})")
                for ft in range(3):
                    c = vr(ACC + 12 * tt + 4 * ft, 4)
                    a(f"    v_mfma_f32_16x16x32_bf16 {c}, {vr(z+12*ks+4*ft,4)}, {vr(WF+16*ks+4*tt,4)}, {c}")
                    if n < len(fill): a(fill[n]); n += 1
        assert n == len(fill)
    a(f"""    s_mul_i32 s29, s20, 6144
    v_add_u32 v7, s29, v2
    s_xor_b32 s29, s20, 2
    s_mul_i32 s29, s29, 6144
    v_add_u32 v8, s29, v2
    s_cmp_eq_u32 s25, 0
    s_cbranch_scc1 K4_lo""")
    for k in range(6): a(f"    ds_write_b128 v7, {vr(ACC+4*k,4)} offset:{1024*k}")
    for k in range(12): a(f"    v_pk_mov_b32 {vr(ACC+2*k,2)}, {vr(ACC+24+2*k,2)}, {vr(ACC+24+2*k,2)} op_sel:[0,1]")
    a("    s_branch K4_join\nK4_lo:")
    for k in range(6): a(f"    ds_write_b128 v7, {vr(ACC+24+4*k,4)} offset:{1024*k}")
    a("K4_join:\n    s_waitcnt lgkmcnt(0)\n    s_barrier")
    for k in range(6): a(f"    ds_read_b128 {vr(16+4*k,4)}, v8 offset:{1024*k}")
    a(f"""    s_waitcnt vmcnt(0)
    v_lshlrev_b32 v14, 16, v12
    v_and_b32 v15, 0xffff0000, v12
    s_mul_i32 s29, s34, 48
    s_mul_i32 s33, s24, 3
    s_add_u32 s29, s29, s33
    s_lshl_b32 s29, s29, 10
    s_add_u32 s29, s29, {WS_P}
    s_lshl_b32 s33, s26, 11
    s_add_u32 s33, s33, s29
    s_lshl_b32 s35, s26, 3
    s_add_u32 s35, s35, s29
    s_add_u32 s35, s35, 1024""")
    for par in range(2):
        for ft in range(3):
            k = 3 * par + ft
            c = ACC + 4 * k
            a(f"    s_waitcnt lgkmcnt({5-k})")
            for h in range(2):
                z1r = 240 + 4 * ft + 2 * par + h
                a(f"    v_pk_add_f32 {vr(c+2*h,2)}, {vr(c+2*h,2)}, {vr(16+4*k+2*h,2)}")
                a(f"    v_lshlrev_b32 v{44+2*h}, 16, v{z1r}\n    v_and_b32 v{45+2*h}, 0xffff0000, v{z1r}")
                a(f"    v_pk_add_f32 {vr(c+2*h,2)}, {vr(c+2*h,2)}, v[14:15] op_sel:[0,{par}] op_sel_hi:[1,{par}]")
                a(f"    v_pk_mul_f32 {vr(c+2*h,2)}, {vr(c+2*h,2)}, {vr(44+2*h,2)}")
                a(f"    v_cvt_pk_bf16_f32 v{48+8*par+2*ft+h}, v{c+2*h}, v{c+2*h+1}")
    a("""    s_cmp_eq_u32 s26, 0
    s_cbranch_scc1 K4_f0""")
    for fh in (1, 0):
        for par in range(2):
            b = 48 + 8 * par
            a(f"    buffer_store_dwordx4 {vr(b+2*fh,4)}, v2, s[8:11], s33 offen")
            a(f"    buffer_store_dwordx2 {vr(b+4-4*fh,2)}, v2, s[8:11], s35 offen")
            if par == 0: a("    s_add_u32 s33, s33, 24576\n    s_add_u32 s35, s35, 24576")
        if fh == 1: a("    s_endpgm\nK4_f0:")
    a("K4_end:\n    s_endpgm")
    a.end_kernel()

def k5(a):
    a.begin_kernel("k5_kernel", 256, 256, 122880, 256)
    prologue(a, 256, "K5_end")
    a(f"""    s_load_dwordx2 s[16:17], s[0:1], 112    ; out
    s_and_b32 s21, s2, 7
    s_lshr_b32 s22, s2, 3
    s_lshr_b32 s23, s21, 1
    s_lshl_b32 s23, s23, 3
    s_lshr_b32 s24, s22, 2
    s_add_u32 s23, s23, s24            ; tb
    s_and_b32 s24, s21, 1
    s_lshl_b32 s24, s24, 2
    s_and_b32 s25, s22, 3
    s_add_u32 s24, s24, s25            ; db
    s_lshl_b32 s25, s23, 2
    s_add_u32 s25, s25, s20
    v_lshlrev_b32 v2, 4, v0
    v_and_b32 v5, 15, v0
    v_lshrrev_b32 v6, 4, v0
    s_mul_i32 s26, s25, 24576
    s_add_u32 s26, s26, {WS_P}
    s_mul_i32 s27, s24, 122880
    s_mul_i32 s28, s20, 5120
    s_add_u32 s27, s27, s28
    s_add_u32 s27, s27, {WS_WOUT}
    s_waitcnt lgkmcnt(0)""")
    srd(a, 8, 4, WS_SIZE)
    srd(a, 12, 16, 2048 * 1280)
    PF = 16; ACC = 112; WF = [132, 152]; HR = 172
    for grp in range(6):
        a(f"    s_add_u32 m0, s28, {grp*20480}")
        a(f"    s_add_u32 s29, s27, 4096")
        for q in range(4): a(f"    buffer_load_dwordx4 v2, s[8:11], s27 offen offset:{1024*q} lds")
        a(f"    s_add_u32 m0, m0, 4096\n    s_add_u32 s27, s27, 20480")
        a(f"    buffer_load_dwordx4 v2, s[8:11], s29 offen lds")
        for q in range(4): a(f"    buffer_load_dwordx4 {vr(PF+16*grp+4*q,4)}, v2, s[8:11], s26 offen offset:{1024*q}")
        a("    s_add_u32 s26, s26, 4096")
    a(f"""    s_lshr_b32 s30, s25, 1
    s_lshl_b32 s30, s30, 5
    s_and_b32 s31, s25, 1
    s_add_u32 s30, s30, s31            ; row0
    s_lshl_b32 s31, s30, 3
    s_mul_i32 s32, s24, {20*16384}
    s_add_u32 s31, s31, s32
    s_add_u32 s31, s31, {WS_H}
    v_lshlrev_b32 v3, 4, v5
    v_lshl_add_u32 v4, v6, 14, v3
    v_lshl_add_u32 v3, v6, 15, v3""")
    for t in range(5):
        q = 8 * (t >> 1) + (t & 1)
        a(f"    s_add_u32 s32, s31, {q*16384}")
        a(f"    buffer_load_dwordx2 {vr(HR+2*t,2)}, v{3 if t < 4 else 4}, s[8:11], s32 offen")
    for i in range(20): a(f"    v_mov_b32 v{ACC+i}, 0")
    a("    v_mov_b32 v7, v2")
    def wreads(s): return [f"    ds_read_b128 {vr(WF[s&1]+4*t,4)}, v7 offset:{(s%12)*5120+1024*t}" for t in range(5)]
    for s in range(24):
        if s % 4 == 0:
            a(f"    s_waitcnt vmcnt({59 - 9*(s//4+1)})")
            a("    s_barrier")
            if s == 12: a("    v_add_u32 v7, 61440, v7")
            for x in wreads(s): a(x)
        rd = wreads(s + 1) if s % 4 != 3 else []
        a("    s_waitcnt lgkmcnt(0)")
        for t in range(5):
            c = vr(ACC + 4 * t, 4)
            a(f"    v_mfma_f32_16x16x32_bf16 {c}, {vr(WF[s&1]+4*t,4)}, {vr(PF+4*s,4)}, {c}")
            if rd: a(rd[t])
    a(f"""    s_mul_i32 s31, s30, 1280
    s_mul_i32 s32, s24, 160
    s_add_u32 s31, s31, s32
    v_mul_u32_u24 v3, 2560, v5
    v_lshl_add_u32 v4, v6, 3, v3
    v_lshl_add_u32 v3, v6, 4, v3
    s_waitcnt vmcnt(0)""")
    for t in range(5):
        for h in range(2):
            r = HR + 2 * t + h
            a(f"    v_lshlrev_b32 v{16+2*h}, 16, v{r}\n    v_and_b32 v{17+2*h}, 0xffff0000, v{r}")
            a(f"    v_pk_add_f32 {vr(16+2*h,2)}, {vr(16+2*h,2)}, {vr(ACC+4*t+2*h,2)}")
            a(f"    v_cvt_pk_bf16_f32 v{20+2*t+h}, v{16+2*h}, v{17+2*h}")
    a("""    buffer_store_dwordx4 v[20:23], v3, s[12:15], s31 offen
    buffer_store_dwordx4 v[24:27], v3, s[12:15], s31 offen offset:64
    buffer_store_dwordx2 v[28:29], v4, s[12:15], s31 offen offset:128
K5_end:
    s_endpgm""")
    a.end_kernel()

def build():
    a = Asm()
    for k in (k1, k2, k3, k3b, k4, k5): k(a)
    a.lines = hazard.fix(a.lines, verbose=True)
    return a.text("S4 conv + gMLP block; generated by the author's own script (launch list)")
if __name__ == "__main__":
    out = sys.argv[1] if len(sys.argv) > 1 else "v1.s"
    open(out, "w").write(build())
```

```python
import gen1, hazard
from asmgen import Asm
for n, g in [(2, 1), (6, 1), (6, 256)]:
    a = Asm()
    for k in (gen1.k1, gen1.k2, gen1.k3, gen1.k3b, gen1.k4, gen1.k5): k(a)
    a.begin_kernel("e_kernel", g, 256, 0, 8, launches=n)
    a("    s_endpgm")
    a.end_kernel()
    a.lines = hazard.fix(a.lines)
    open(f"v1_e{n}_{g}.s", "w").write(a.text("test"))
```

```python
import sys, math, struct
from asmgen import Asm
import hazard, align
NAME = "sequential_preLN__ssm_conv_s4__mixer_gmlp__prompt"

WS_H, WS_WIN, WS_WOUT, WS_CS, WS_ST1 = 0x0, 0x280000, 0x460000, 0x550000, 0x554000
WS_FL = 0x560000
FL_L3X, FL_L2X, FL_F2, FL_F4, FL_F3, FL_F2P = WS_FL, WS_FL + 0x40000, WS_FL + 0x50000, WS_FL + 0x51000, WS_FL + 0x52000, WS_FL + 0x56000
WS_Z2, WS_Z1, WS_P = 0x600000, 0x900000, 0xC00000
WS_SIZE = 0xF00000
LOG2E = 1.4426950408889634
def f2u(x): return "0x%08x" % struct.unpack("<I", struct.pack("<f", x))[0]
def vr(b, n): return f"v[{b}:{b+n-1}]" if n > 1 else f"v{b}"
def ar(b, n): return f"a[{b}:{b+n-1}]"
def srd(a, r, lo, size):
    a(f"    s_mov_b32 s{r}, s{lo}\n    s_and_b32 s{r+1}, s{lo+1}, 0xffff\n    s_mov_b32 s{r+2}, {hex(size)}\n    s_mov_b32 s{r+3}, 0x20000")
def cmul(d, x, y):
    return [f"    v_pk_mul_f32 {vr(d,2)}, {vr(x,2)}, {vr(y,2)} op_sel:[0,0] op_sel_hi:[0,1]",
            f"    v_pk_fma_f32 {vr(d,2)}, {vr(x,2)}, {vr(y,2)}, {vr(d,2)} op_sel:[1,1,0] op_sel_hi:[1,0,1] neg_lo:[0,1,0]"]
def rbf(a, d, s):
    a(f"    v_cvt_pk_bf16_f32 v{d}, v{s}, v{s}\n    v_lshlrev_b32 v{d}, 16, v{d}")
def ln_scalars(a, vs, vq, n, vm, vrs, t):
    a(f"    v_mul_f32 v{vm}, {f2u(1.0/n)}, v{vs}")
    a(f"    v_mul_f32 v{t}, {f2u(1.0/n)}, v{vq}")
    a(f"    v_fma_f32 v{t}, -v{vm}, v{vm}, v{t}")
    a(f"    v_max_f32 v{t}, 0, v{t}")
    rbf(a, t, t)
    a(f"    v_add_f32 v{t}, {f2u(1e-5)}, v{t}")
    rbf(a, t, t)
    a(f"    v_sqrt_f32 v{t}, v{t}")
    rbf(a, vm, vm)
    rbf(a, t, t)
    a(f"    v_rcp_f32 v{vrs}, v{t}")
    a(f"    v_mul_f32 v{vm}, v{vm}, v{vrs}")
def allreduce_g(a, regs, t):
    for op in ("v_permlane16_swap_b32", "v_permlane32_swap_b32"):
        for n, v in enumerate(regs): a(f"    v_mov_b32 v{t+n}, v{v}")
        for n, v in enumerate(regs): a(f"    {op} v{v}, v{t+n}")
        for n, v in enumerate(regs): a(f"    v_add_f32 v{v}, v{v}, v{t+n}")
def gelu_block(a, regs, T, KK):
    ts = [T + 2 * n for n in range(len(regs))]
    for x, t in zip(regs, ts): a(f"    v_pk_mul_f32 {vr(t,2)}, {vr(x,2)}, {vr(x,2)}")
    for x, t in zip(regs, ts): a(f"    v_pk_fma_f32 {vr(t,2)}, {vr(t,2)}, {vr(KK,2)}, {vr(KK,2)} op_sel:[0,1,0] op_sel_hi:[1,1,0]")
    for x, t in zip(regs, ts): a(f"    v_pk_mul_f32 {vr(t,2)}, {vr(t,2)}, {vr(x,2)}")
    for x, t in zip(regs, ts): a(f"    v_exp_f32 v{t}, v{t}\n    v_exp_f32 v{t+1}, v{t+1}")
    for x, t in zip(regs, ts): a(f"    v_pk_add_f32 {vr(t,2)}, {vr(t,2)}, 1.0 op_sel_hi:[1,0]")
    for x, t in zip(regs, ts): a(f"    v_rcp_f32 v{t}, v{t}\n    v_rcp_f32 v{t+1}, v{t+1}")
    for x, t in zip(regs, ts): a(f"    v_pk_mul_f32 {vr(x,2)}, {vr(x,2)}, {vr(t,2)}")
def spin(a, name, loads, check, first_issued=False, sleep=1):
    a("    s_movk_i32 s35, 0x7fff")
    if first_issued: a(f"    s_branch {name}_w")
    a(f"{name}_l:")
    for x in loads: a(x)
    a(f"{name}_w:\n    s_waitcnt vmcnt(0)")
    for x in check: a(x)
    a(f"""    s_cbranch_vccz {name}_d
    s_sub_u32 s35, s35, 1
    s_cbranch_scc1 {name}_d
    s_sleep {sleep}
    s_branch {name}_l
{name}_d:""")
def interleave(a, main, fill, per=1, start=0):
    n = 0
    for k, m in enumerate(main):
        a(m)
        if k >= start:
            for _ in range(per):
                if n < len(fill): a(fill[n]); n += 1
    for x in fill[n:]: a(x)

def wload(n):
    return f"    buffer_load_dwordx4 {ar(4*n,4)}, v3, s[12:15], s{74+(n&1)} offen offset:{64*(n>>1)}"
WORDER = [2 * (2 * k + b) + s for k in range(16) for s in range(2) for b in range(2)]
NW_EARLY = 48

def entry(a):
    a(f"""    s_cmp_ge_u32 s2, 256
    s_cbranch_scc1 L_end
    s_load_dwordx16 s[36:51], s[0:1], 0
    s_load_dwordx16 s[52:67], s[0:1], 64
    s_load_dwordx2 s[68:69], s[0:1], 128
    v_mov_b32 v1, v0                   ; tid
    v_lshrrev_b32 v4, 6, v0
    v_and_b32 v0, 63, v0
    v_readfirstlane_b32 s20, v4
    v_lshlrev_b32 v2, 4, v0
    v_and_b32 v5, 15, v0
    v_lshrrev_b32 v6, 4, v0
    v_lshlrev_b32 v3, 13, v5
    v_lshl_add_u32 v3, v6, 4, v3
    s_and_b32 s21, s2, 7
    s_lshr_b32 s22, s2, 3
    s_lshr_b32 s23, s21, 1
    s_and_b32 s24, s21, 1
    s_and_b32 s25, s22, 7
    s_lshr_b32 s26, s22, 3
    s_lshl_b32 s70, s23, 2
    s_add_u32 s70, s70, s26            ; rb
    s_lshl_b32 s71, s24, 3
    s_add_u32 s71, s71, s25            ; cb
    s_lshl_b32 s72, s23, 3
    s_add_u32 s72, s72, s25            ; tb
    s_lshl_b32 s73, s24, 2
    s_add_u32 s73, s73, s26            ; fb
    s_and_b32 s76, s20, 1              ; th
    s_lshr_b32 s77, s20, 1             ; kh
    s_lshl_b32 s78, s70, 2
    s_add_u32 s78, s78, s20
    s_lshl_b32 s74, s72, 18
    s_lshl_b32 s23, s76, 17
    s_add_u32 s74, s74, s23
    s_mul_i32 s23, s77, 2048+4096
    s_add_u32 s74, s74, s23
    s_xor_b32 s75, s74, 4096
    s_waitcnt lgkmcnt(0)""")
    srd(a, 8, 68, WS_SIZE)
    srd(a, 12, 58, 2048 * 4096)
    a("""    s_cmp_ge_u32 s2, 160
    s_cbranch_scc1 L_help""")

RS = 272; TW = 64 * RS
L_U = 4 * TW
L_Y = L_U + 4 * 4608
def conv_role(a):
    P0, P2, DT, CUR = 8, 14, 20, 22
    Z1, Z8, Z256, CB, T = 28, 30, 32, 34, 36
    FR, KA, XR, XF, ST = 96, 160, 176, 208, 96
    a(f"""    s_mul_i32 s23, s21, 20
    s_add_u32 s23, s23, s22            ; quad
    s_lshl_b32 s24, s23, 2
    s_add_u32 s24, s24, s20            ; d
    s_mul_i32 s25, s24, 384
    v_lshl_add_u32 v7, v0, 1, s25
    v_lshl_add_u32 v40, v0, 2, s25
    s_lshl_b32 s25, s24, 1
    v_mov_b32 v41, s25
    v_mov_b32 v{DT}, 0""")
    for k in range(6): a(f"    v_mov_b32 v{P2+k}, 0")
    a(f"    global_load_short_d16_hi v{DT}, v41, s[50:51]")
    for k in range(6): a(f"    global_load_short_d16_hi v{P2+k}, v7, s[{38+2*k}:{39+2*k}] offset:256")
    for k in range(6): a(f"    global_load_dword v{P0+k}, v40, s[{38+2*k}:{39+2*k}]")
    a(f"""    s_lshl_b32 s25, s23, 3
    s_load_dwordx2 s[30:31], s[52:53], s25     ; Dskip x4
    v_mul_u32_u24 v4, 2560, v1
    v_add_u32 v4, s25, v4""")
    def xg(j):
        L = [f"    global_load_dwordx2 {vr(XR+4*j,2)}, v4, s[36:37]", f"    global_load_dwordx2 {vr(XR+4*j+2,2)}, v4, s[36:37] offset:1280"]
        if j < 3: L.append(f"    v_add_u32 v4, {512*1280}, v4")
        return L
    for x in xg(0) + xg(1): a(x)
    a(f"""    s_mul_i32 s26, s20, {TW}
    s_mov_b32 m0, s26
    v_and_b32 v7, 31, v0
    v_mul_u32_u24 v7, {RS}, v7
    v_lshrrev_b32 v40, 5, v0
    v_lshl_add_u32 v7, v40, 4, v7
    v_add_u32 v7, s26, v7
    v_mov_b32 v40, 0x3f80
    ds_write_addtid_b32 v40 offset:{32*RS}
    v_mov_b32 v40, 0
    v_mov_b32 v41, 0
    s_mul_i32 s27, s20, 4608
    s_add_u32 s27, s27, {L_U}
    v_lshl_add_u32 v42, v0, 3, s27
    ds_write_b64 v42, v[40:41]
    s_waitcnt vmcnt(10)
    ; MARK 0
    v_mul_f32 v{DT}, {f2u(LOG2E)}, v{DT}
    v_exp_f32 v{DT}, v{DT}""")
    rbf(a, DT, DT)
    def setup(c):
        L = []
        if c == 0: p = [P2 + k for k in range(6)]
        else:
            p = [CUR + k for k in range(6)]
            for k in range(6):
                L.append(f"    v_lshlrev_b32 v{CUR+k}, 16, v{P0+k}" if c == 1 else f"    v_and_b32 v{CUR+k}, 0xffff0000, v{P0+k}")
        L += [f"    v_mul_f32 v{T}, v{DT}, v{p[0]}", f"    v_mul_f32 v{T+1}, v{DT}, v{p[1]}",
              f"    v_mul_f32 v{T}, {f2u(LOG2E)}, v{T}", f"    v_mul_f32 v{T+1}, 0.15915494, v{T+1}"]
        extra = [f"    v_mul_f32 v{CB}, v{p[2]}, v{p[4]}", f"    v_mul_f32 v{CB+1}, v{p[2]}, v{p[5]}",
                 f"    v_fma_f32 v{CB}, -v{p[3]}, v{p[5]}, v{CB}", f"    v_fma_f32 v{CB+1}, v{p[3]}, v{p[4]}, v{CB+1}",
                 f"    v_mul_f32 v{CB}, v{CB}, v{DT}", f"    v_mul_f32 v{CB+1}, v{CB+1}, v{DT}"]
        for z, e in ((Z1, 1), (Z8, 8), (Z256, 256)):
            if e == 1: L += [f"    v_fract_f32 v{T+3}, v{T+1}", f"    v_exp_f32 v{T+2}, v{T}"]
            else:
                L += [f"    v_mul_f32 v{T+3}, {f2u(float(e))}, v{T+1}", f"    v_mul_f32 v{T+2}, {f2u(float(e))}, v{T}",
                      f"    v_fract_f32 v{T+3}, v{T+3}", f"    v_exp_f32 v{T+2}, v{T+2}"]
            L += [f"    v_cos_f32 v{z}, v{T+3}", f"    v_sin_f32 v{z+1}, v{T+3}", extra.pop(0), extra.pop(0),
                  f"    v_mul_f32 v{z}, v{z}, v{T+2}", f"    v_mul_f32 v{z+1}, v{z+1}, v{T+2}"]
        return L
    row = lambda rho, h: 8 * (rho >> 2) + 4 * h + (rho & 3)
    def chains():
        L = []; tc = [0]
        def emit(reg, rows, neg):
            t = 40 + (tc[0] & 3); tc[0] += 1
            L.append(f"    v_cvt_pk_bf16_f32 v{t}, v{reg}, {'-' if neg else ''}v{reg+1}")
            for r in rows: L.append(f"    ds_write_addtid_b32 v{t} offset:{r*RS}")
        emit(Z8, [33], False)
        prev = Z8
        for j in range(2, 32):
            d = 44 + 2 * (j & 1); L.extend(cmul(d, prev, Z8)); emit(d, [32 + j], False); prev = d
        emit(CB, [row(0, 0)], True)
        prev = CB; B0 = {0: CB}
        for k in range(1, 9):
            d = 48 + 2 * k; L.extend(cmul(d, prev, Z1)); emit(d, [row(k, 0)], True); prev = d; B0[k] = d
        pat = [0, 0, 2, 4, 4, 4, 6, 8, 8]; cur = {}
        for n, off in enumerate([0, 2, 4, 6, 8]):
            d = 66 + 2 * n; cur[off] = d
            L.extend(cmul(d, B0[off], Z256)); emit(d, [row(r, 1) for r in range(9) if pat[r] == off], True)
        alt = {0: 76, 4: 78, 8: 80}
        for (blk, offs) in ((2, [0, 4, 8]), (3, [0, 4, 8]), (4, [0, 8]), (5, [0, 8]), (6, [0, 8]), (7, [0, 8])):
            base = {2: 9, 3: 9, 4: 12, 5: 12, 6: 14, 7: 14}[blk]
            for n, off in enumerate(offs):
                d = alt[off]; alt[off] = cur[off]
                L.extend(cmul(d, cur[off], Z256)); emit(d, [row(base + n, blk & 1)], True); cur[off] = d
        return L
    for x in setup(0): a(x)
    poll1 = ["    global_load_dword v21, v43, s[66:67] sc1"]
    for c in range(3):
        for x in chains(): a(x)
        if c == 2:
            a("    v_and_b32 v43, 3, v0\n    v_lshlrev_b32 v43, 6, v43")
            a(poll1[0])
        rd = []
        for kk in range(8):
            rd += [f"    ds_read_b128 {vr(FR+8*kk,4)}, v7 offset:{32*kk}", f"    ds_read_b128 {vr(FR+8*kk+4,4)}, v7 offset:{32*kk+32*RS}"]
        for x in rd[:4]: a(x)
        if c == 0: a("    s_waitcnt vmcnt(4)")
        fill = setup(c + 1) if c < 2 else []
        n = 0
        for kk in range(8):
            for x in rd[4 + 2 * kk: 6 + 2 * kk]: a(x)
            out = max(0, min(16, 6 + 2 * kk) - 2 * (kk + 1))
            a(f"    s_waitcnt lgkmcnt({out})")
            src = vr(KA, 16) if (c or kk) else "0"
            a(f"    v_mfma_f32_32x32x16_bf16 {vr(KA,16)}, {vr(FR+8*kk,4)}, {vr(FR+8*kk+4,4)}, {src}")
            for _ in range(4 if kk < 6 else 7):
                if n < len(fill): a(fill[n]); n += 1
        for x in fill[n:]: a(x)
        if c < 2:
            for x in xg(2 + c): a(x)
    a("    ; MARK 1")
    spin(a, "S1", poll1, ["    v_cmp_gt_u32 vcc, 24, v21"], first_issued=True)
    a(f"""    ; MARK 2
    v_lshlrev_b32 v4, 4, v1
    s_mov_b32 s28, {WS_ST1}""")
    for j in range(4):
        a(f"    buffer_load_dwordx4 {vr(ST+4*j,4)}, v4, s[8:11], s28 offen sc1")
        if j < 3: a("    s_add_u32 s28, s28, 4096")
    V = lambda r: KA + r
    a(f"""    v_and_b32 v40, 1, v0
    v_cmp_eq_u32 vcc, 1, v40
    s_add_u32 s28, s26, 1008
    v_sub_u32 v41, s28, v2
    v_cndmask_b32 v42, v{V(12)}, v{V(13)}, vcc
    v_cndmask_b32 v43, v{V(14)}, v{V(15)}, vcc""")
    emap = [[V(k) for k in range(9)], [V(9)] * 3 + [V(10)] * 3 + [V(11)] * 3,
            [V(12)] * 4 + [42] + [V(13)] * 4, [V(14)] * 4 + [43] + [V(15)] * 4]
    for G in range(4):
        e = emap[G]; o = 44 + 8 * G
        for k in range(4): a(f"    v_cvt_pk_bf16_f32 v{o+k}, v{e[7-2*k]}, v{e[6-2*k]}")
        for k in range(4): a(f"    v_cvt_pk_bf16_f32 v{o+4+k}, v{e[8-2*k]}, v{e[7-2*k]}")
        a(f"    ds_write_b128 v41, {vr(o,4)} offset:{3072-1024*G}")
        a(f"    ds_write_b128 v41, {vr(o+4,4)} offset:{4160+3072-1024*G}")
    a(f"""    v_mov_b32 v77, 0
    v_cvt_pk_bf16_f32 v76, v{V(0)}, v77
    v_cmp_eq_u32 vcc, 0, v0
    s_mov_b64 exec, 0xffff
    v_cndmask_b32 v76, v77, v76, vcc
    ds_write_addtid_b32 v77 offset:4096
    ds_write_addtid_b32 v76 offset:{4160+4096}
    s_mov_b64 exec, -1""")
    for j in range(4):
        for par in range(2):
            for h in range(2):
                r = XR + 4 * j + 2 * par + h
                a(f"    v_lshlrev_b32 v{XF+8*j+4*h+par}, 16, v{r}")
                a(f"    v_and_b32 v{XF+8*j+4*h+2+par}, 0xffff0000, v{r}")
    ACC, AD, SET = 8, 40, [48, 112]
    a(f"""    v_add_u32 v8, 1, v5
    v_lshrrev_b32 v8, 1, v8
    v_lshlrev_b32 v8, 2, v8
    v_lshl_add_u32 v8, v6, 4, v8
    v_and_b32 v9, 1, v5
    v_mul_u32_u24 v9, 4160, v9
    v_add_u32 v8, v8, v9
    s_add_u32 s28, s26, {4160 + 4112 - 512 - 448}
    v_sub_u32 v{AD}, s28, v8
    v_subrev_u32 v{AD+1}, 1024, v{AD}
    v_subrev_u32 v{AD+2}, 2048, v{AD}
    v_subrev_u32 v{AD+3}, 3072, v{AD}
    v_lshlrev_b32 v8, 5, v5
    v_lshlrev_b32 v9, 4, v6
    v_sub_u32 v8, v8, v9
    s_add_u32 s28, s27, {512 + 16 - 448}
    v_add_u32 v{AD+4}, s28, v8
    v_lshlrev_b32 v45, 2, v1
    v_add_u32 v45, {L_U + 512}, v45
    s_and_b32 s33, s31, 0xffff0000
    s_lshl_b32 s32, s31, 16
    s_and_b32 s31, s30, 0xffff0000
    s_lshl_b32 s30, s30, 16""")
    def rdA(st, r):
        L = []
        for p in range(8):
            o = (128 if p % 2 == 0 else 0) + 16 * (7 - r); d = SET[st] + 4 * p
            L += [f"    ds_read2_b32 {vr(d,2)}, v{AD+p//2} offset0:{o} offset1:{o+1}", f"    ds_read2_b32 {vr(d+2,2)}, v{AD+p//2} offset0:{o+2} offset1:{o+3}"]
        return L
    def rdB(st, r): return [f"    ds_read_b128 {vr(SET[st]+32+4*q,4)}, v{AD+4} offset:{512*q+64*(7-r)}" for q in range(8)]
    for x in rdA(0, 0): a(x)
    UF = 176
    a("    ; MARK 3")
    for j in range(4):
        a(f"    s_waitcnt vmcnt({3-j})")
        for c in range(4):
            a(f"    v_pk_fma_f32 {vr(UF+8*j+2*c,2)}, {vr(XF+8*j+2*c,2)}, {vr(ST+4*j,2)}, {vr(ST+4*j+2,2)} neg_lo:[0,0,1] neg_hi:[0,0,1]")
        for c in range(4): a(f"    v_cvt_pk_bf16_f32 v{112+4*j+c}, v{UF+8*j+2*c}, v{UF+8*j+2*c+1}")
        if j & 1:
            for c in range(4): a(f"    ds_write2st64_b32 v45, v{112+4*(j-1)+c}, v{112+4*j+c} offset0:{18*c+4*(j-1)} offset1:{18*c+4*j}")
    for j in range(4):
        for c in range(4):
            a(f"    v_pk_fma_f32 {vr(XF+8*j+2*c,2)}, {vr(UF+8*j+2*c,2)}, s[{30+2*(c>>1)}:{31+2*(c>>1)}], {vr(XF+8*j+2*c,2)} op_sel:[0,{c&1},0] op_sel_hi:[1,{c&1},1]")
    a("    s_waitcnt lgkmcnt(0)\n    s_barrier\n    ; MARK 4")
    for x in rdB(0, 0): a(x)
    wl = [wload(n) for n in WORDER[:NW_EARLY]]
    misc = [f"    v_lshrrev_b32 v46, 1, v5", "    v_and_b32 v46, 3, v46", "    v_xor_b32 v46, v46, v6", "    v_lshlrev_b32 v46, 4, v46",
            "    v_lshl_add_u32 v46, v5, 6, v46", "    s_lshl_b32 s28, s20, 13", f"    s_add_u32 s28, s28, {L_Y}", "    v_add_u32 v46, s28, v46",
            "    v_bfe_u32 v47, v1, 4, 2", "    v_lshlrev_b32 v47, 4, v47", "    v_lshlrev_b32 v45, 3, v1", "    v_xor_b32 v47, v47, v45", f"    v_add_u32 v47, {L_Y}, v47",
            "    v_and_b32 v45, 3, v0", "    v_lshlrev_b32 v45, 6, v45", "    global_load_dword v240, v45, s[66:67] offset:32 sc1"]
    for r in range(8):
        st = r & 1
        rd = rdA(st ^ 1, r + 1) + rdB(st ^ 1, r + 1) if r < 7 else misc
        k = 0; n = 0
        if r: a("    s_waitcnt lgkmcnt(0)")
        for q in range(8):
            if r == 0: a(f"    s_waitcnt lgkmcnt({min(15, 7-q+n)})")
            for p in range(8 - q):
                c = vr(ACC + 4 * (p + q), 4)
                src = c if (r or q) else "0"
                a(f"    v_mfma_f32_16x16x32_bf16 {c}, {vr(SET[st]+4*p,4)}, {vr(SET[st]+32+4*q,4)}, {src}")
                if k % 6 == 5 and wl: a(wl.pop(0))
                elif n < len(rd) and (r or q or p >= 4): a(rd[n]); n += 1
                k += 1
        assert n == len(rd)
    assert not wl
    a("    ; MARK 5")
    for J in range(8): a(f"    ds_write_b128 v46, {vr(ACC+4*J,4)} offset:{1024*J}")
    a(f"""    s_lshl_b32 s28, s23, 14
    s_waitcnt lgkmcnt(0)
    s_barrier""")
    for j in range(4):
        for c in range(4): a(f"    ds_read_b64 {vr(48+8*j+2*c,2)}, v47 offset:{8192*c+2048*j}")
    for j in range(4):
        a(f"    s_waitcnt lgkmcnt({12-4*j})")
        b = 48 + 8 * j
        for c in range(4): a(f"    v_pk_add_f32 {vr(b+2*c,2)}, {vr(b+2*c,2)}, {vr(XF+8*j+2*c,2)}")
        for par in range(2):
            for h in range(2): a(f"    v_cvt_pk_bf16_f32 v{80+4*j+2*par+h}, v{b+4*h+par}, v{b+4*h+2+par}")
        a(f"    buffer_store_dwordx4 {vr(80+4*j,4)}, v4, s[8:11], s28 offen sc1")
        if j < 3: a("    s_add_u32 s28, s28, 4096")
    a("    ; MARK 6")
    spin(a, "S1b", ["    global_load_dword v240, v45, s[66:67] offset:32 sc1"], ["    v_cmp_gt_u32 vcc, 24, v240"], first_issued=True)
    a(f"""    s_barrier
    ; MARK 7
    s_cmp_lg_u32 s20, 0
    s_cbranch_scc1 L_common
    s_lshl_b32 s28, s2, 4
    s_add_u32 s28, s28, {FL_F2}
    s_lshl_b32 s29, s2, 7
    s_add_u32 s29, s29, {FL_F2P}
    v_mov_b32 v8, s28
    v_mov_b32 v9, 1
    v_writelane_b32 v8, s29, 1
    s_mov_b64 exec, 3
    buffer_store_dword v9, v8, s[8:11], 0 offen sc1
    s_mov_b64 exec, -1
    s_branch L_common""")

def arrive(a, off):
    l = a.label("L_arr")
    a(f"""    s_waitcnt vmcnt(0)
    s_barrier
    s_cmp_lg_u32 s20, 0
    s_cbranch_scc1 {l}
    s_and_b32 s28, s2, 3
    s_lshl_b32 s28, s28, 6
    v_mov_b32 v8, s28
    v_mov_b32 v9, 1
    s_mov_b64 exec, 1
    global_atomic_add v8, v9, s[66:67] offset:{off} sc1
    s_mov_b64 exec, -1
{l}:""")

def helper_role(a, codebytes):
    a(f"""L_help:
    s_sub_u32 s23, s2, 160             ; hid
    v_mov_b32 v8, -1
    v_mov_b32 v9, -1
    v_mov_b32 v10, -1
    v_mov_b32 v11, -1
    v_lshlrev_b32 v4, 4, v1
    s_lshl_b32 s28, s23, 12
    s_add_u32 s28, s28, {WS_FL}
    s_cmp_ge_u32 s23, 64
    s_cbranch_scc1 L_nostat
    s_lshl_b32 s24, s23, 5
    v_lshrrev_b32 v12, 3, v1
    v_add_u32 v12, s24, v12            ; row
    v_mul_u32_u24 v13, 1280, v12
    v_and_b32 v14, 7, v0
    v_lshl_add_u32 v13, v14, 4, v13""")
    for q in range(10): a(f"    global_load_dwordx4 {vr(16+4*q,4)}, v13, s[36:37] offset:{128*q}")
    a(f"""    buffer_store_dwordx4 v[8:11], v4, s[8:11], s28 offen sc1
    v_mov_b32 v60, 0
    v_mov_b32 v61, 0
    v_mov_b32 v62, 0x3f803f80
    v_lshrrev_b32 v13, 1, v12
    v_lshlrev_b32 v13, 4, v13
    v_and_b32 v15, 1, v12
    v_lshl_add_u32 v13, v15, 2, v13
    v_lshl_add_u32 v13, v14, 3, v13
    v_cmp_eq_u32 vcc, 1, v14""")
    for q in range(10):
        a(f"    s_waitcnt vmcnt({10-q})")
        if q == 9: a("    ; MARK 0")
        for k in range(4):
            a(f"    v_dot2_f32_bf16 v60, v{16+4*q+k}, v62, v60")
            a(f"    v_dot2_f32_bf16 v61, v{16+4*q+k}, v{16+4*q+k}, v61")
    for m in ("row_half_mirror", "quad_perm:[2,3,0,1]", "quad_perm:[1,0,3,2]"):
        a(f"    v_add_f32_dpp v60, v60, v60 {m} row_mask:0xf bank_mask:0xf")
        a(f"    v_add_f32_dpp v61, v61, v61 {m} row_mask:0xf bank_mask:0xf")
    ln_scalars(a, 60, 61, 640, 64, 63, 65)
    a(f"""    v_cndmask_b32 v63, v63, v64, vcc
    s_mov_b32 s28, {WS_ST1}
    s_mov_b32 exec_lo, 0x03030303
    s_mov_b32 exec_hi, 0x03030303
    buffer_store_dword v63, v13, s[8:11], s28 offen sc1
    s_mov_b64 exec, -1
    s_branch L_harr
L_nostat:
    s_getpc_b64 s[30:31]
L_pc:
    s_sub_u32 s30, s30, L_pc - {NAME}_kernel
    s_subb_u32 s31, s31, 0
    v_lshlrev_b32 v12, 7, v1
    global_load_dword v13, v12, s[30:31]
    v_lshlrev_b32 v12, 5, v1
    v_add_u32 v12, 32768, v12
    global_load_dword v14, v12, s[30:31]
    buffer_store_dwordx4 v[8:11], v4, s[8:11], s28 offen sc1
L_harr:""")
    arrive(a, 0)
    a("""    ; MARK 1
    s_cmp_lt_u32 s23, 48
    s_cbranch_scc1 L_hout""")
    touch = ["    s_mul_i32 s34, s23, 90112"]
    for q in range(22): touch += [f"    buffer_load_dwordx4 {ar(4*q,4)}, v4, s[12:15], s34 offen", "    s_add_u32 s34, s34, 4096"]
    srd(a, 16, 56, 640 * 1536 * 2)
    a(f"""    s_sub_u32 s24, s23, 48
    s_lshr_b32 s25, s24, 1             ; cg
    s_and_b32 s26, s24, 1              ; k half
    v_lshrrev_b32 v12, 3, v0
    v_mul_u32_u24 v12, 3072, v12
    v_and_b32 v13, 7, v0
    v_lshl_add_u32 v12, v13, 4, v12
    s_mul_i32 s27, s26, {320*3072}
    s_mul_i32 s28, s20, {80*3072}
    s_add_u32 s27, s27, s28
    s_lshl_b32 s28, s25, 7
    s_add_u32 s27, s27, s28
    s_mul_i32 m0, s20, 10240""")
    for q in range(10):
        a("    buffer_load_dwordx4 v12, s[16:19], s27 offen lds")
        if q < 9: a(f"    s_add_u32 m0, m0, 1024\n    s_add_u32 s27, s27, {8*3072}")
    for x in touch: a(x)
    a(f"""    v_bfe_u32 v12, v0, 2, 2
    v_lshl_add_u32 v12, v6, 3, v12
    v_lshlrev_b32 v12, 7, v12
    v_and_b32 v13, 3, v0
    v_lshl_add_u32 v12, v13, 3, v12
    s_lshl_b32 s28, s20, 5
    v_add_u32 v12, s28, v12
    s_lshl_b32 s27, s25, 2
    s_add_u32 s27, s27, s20            ; T
    s_cmp_ge_u32 s27, 48
    s_cselect_b32 s28, 48, 0
    s_cselect_b32 s29, 0, 3
    s_sub_u32 s28, s27, s28
    s_mul_i32 s30, s28, 43691
    s_lshr_b32 s30, s30, 17
    s_mul_i32 s31, s30, 3
    s_sub_u32 s31, s28, s31
    s_add_u32 s31, s31, s29            ; slot
    s_mul_i32 s30, s30, 120
    s_mul_i32 s32, s26, 60
    s_add_u32 s30, s30, s32
    s_add_u32 s30, s30, s31
    s_lshl_b32 s30, s30, 10
    s_add_u32 s30, s30, {WS_WIN}
    v_mov_b32 v8, 0
    v_mov_b32 v10, 0x3f803f80
    s_waitcnt vmcnt(22)
    s_barrier""")
    for ks in range(10):
        a(f"    ds_read_b64_tr_b16 {vr(16+4*ks,2)}, v12 offset:{4096*ks}")
        a(f"    ds_read_b64_tr_b16 {vr(18+4*ks,2)}, v12 offset:{4096*ks+512}")
    for ks in range(10):
        a(f"    s_waitcnt lgkmcnt({min(15,18-2*ks)})")
        a(f"    buffer_store_dwordx4 {vr(16+4*ks,4)}, v2, s[8:11], s30 offen sc1")
        a(f"    s_add_u32 s30, s30, 6144")
        for k in range(4): a(f"    v_dot2_f32_bf16 v8, v{16+4*ks+k}, v10, v8")
    allreduce_g(a, [8], 9)
    a(f"""    s_lshl_b32 s27, s27, 6
    s_mul_i32 s28, s26, 6144
    s_add_u32 s27, s27, s28
    s_add_u32 s27, s27, {WS_CS}
    v_lshlrev_b32 v12, 2, v0
    s_mov_b64 exec, 0xffff
    buffer_store_dword v8, v12, s[8:11], s27 offen sc1
    s_mov_b64 exec, -1
    s_branch L_hdone
L_hout:""")
    srd(a, 16, 62, 768 * 640 * 2)
    a(f"""    s_and_b32 s24, s23, 7              ; db
    s_lshr_b32 s25, s23, 3
    s_lshl_b32 s25, s25, 2
    s_add_u32 s25, s25, s20            ; ks
    s_mul_i32 s26, s25, {32*1280}
    s_mul_i32 s27, s24, 160
    s_add_u32 s26, s26, s27
    s_mul_i32 s27, s20, 5120
    s_mov_b32 m0, s27""")
    for q in range(5):
        a(f"""    v_add_u32 v12, {64*q}, v0
    v_mul_u32_u24 v13, 6554, v12
    v_lshrrev_b32 v13, 16, v13
    v_mul_u32_u24 v13, 1120, v13
    v_lshl_add_u32 v12, v12, 4, v13
    buffer_load_dwordx4 v12, s[16:19], s26 offen lds""")
        if q < 4: a("    s_add_u32 m0, m0, 1024")
    for x in touch: a(x)
    a(f"""    v_lshrrev_b32 v12, 2, v0
    v_mul_u32_u24 v12, 160, v12
    v_add_u32 v12, s27, v12
    v_and_b32 v14, 3, v0
    v_lshl_add_u32 v13, v14, 3, v12
    v_lshl_add_u32 v12, v14, 4, v12
    s_mul_i32 s28, s24, 24
    s_add_u32 s28, s28, s25
    s_mul_i32 s28, s28, 5120
    s_add_u32 s28, s28, {WS_WOUT}
    s_add_u32 s29, s28, 4096
    s_waitcnt vmcnt(22)""")
    for t in range(5):
        ad, o = (12, 64 * (t >> 1) + 8 * (t & 1)) if t < 4 else (13, 128)
        a(f"    ds_read_b64_tr_b16 {vr(16+4*t,2)}, v{ad} offset:{o}")
        a(f"    ds_read_b64_tr_b16 {vr(18+4*t,2)}, v{ad} offset:{o+16*160}")
    for t in range(5):
        a(f"    s_waitcnt lgkmcnt({8-2*t})")
        if t < 4: a(f"    buffer_store_dwordx4 {vr(16+4*t,4)}, v2, s[8:11], s28 offen offset:{1024*t} sc1")
        else: a(f"    buffer_store_dwordx4 {vr(16+4*t,4)}, v2, s[8:11], s29 offen sc1")
    a("L_hdone:\n    ; MARK 2")
    arrive(a, 32)
    a("    ; MARK 3")
    for n in WORDER[:NW_EARLY]: a(wload(n))
    a("    v_and_b32 v12, 3, v0\n    v_lshlrev_b32 v12, 6, v12")
    spin(a, "H1b", ["    global_load_dword v13, v12, s[66:67] offset:32 sc1"], ["    v_cmp_gt_u32 vcc, 24, v13"], sleep=4)
    a(f"""    ; MARK 4
    s_cmp_lg_u32 s20, 0
    s_cbranch_scc1 L_hw
    s_lshl_b32 s28, s23, 7
    s_add_u32 s28, s28, {FL_F2P}
    v_mov_b32 v12, 0""")
    spin(a, "H2p", ["    buffer_load_dword v13, v12, s[8:11], s28 offen sc1"], ["    v_cmp_eq_u32 vcc, -1, v13"], sleep=2)
    a("L_hw:\n    s_barrier\n    ; MARK 7")

def dma_linear(a, sbase, n):
    for q in range(n):
        a(f"    buffer_load_dwordx4 v2, s[8:11], s{sbase} offen offset:{1024*(q&3)} sc1 lds")
        if q & 3 == 3 and q < n - 1: a(f"    s_add_u32 m0, m0, 4096\n    s_add_u32 s{sbase}, s{sbase}, 4096")

def bcast_scalars(a, RE, RO, ME, MO, RR):
    a(f"""    ds_write2_b32 v8, v{RE}, v{RO} offset0:0 offset1:16
    ds_write2_b32 v8, v{ME}, v{MO} offset0:32 offset1:48""")
    for k in range(4): a(f"    ds_read_b128 {vr(RR+4*k,4)}, v9 offset:{64*k}")

def flag_store(a, skip, saddr):
    a(f"""    s_waitcnt vmcnt(0)
    s_barrier
    s_cmp_lg_u32 s20, 0
    s_cbranch_scc1 {skip}
    v_mov_b32 v8, 0
    v_mov_b32 v9, 1
    s_mov_b64 exec, 1
    buffer_store_dword v9, v8, s[8:11], s{saddr} offen sc1
    s_mov_b64 exec, -1
{skip}:""")

def g1(a):
    RING, AB, ACC, BF = 12, 12, 136, [184, 208]
    CS2, CS1, SX = 232, 96, 240
    a(f"""L_common:
    s_mul_i32 s27, s71, 122880
    s_mul_i32 s28, s20, 30720
    s_add_u32 s27, s27, s28
    s_add_u32 s27, s27, {WS_WIN}
    s_mov_b32 m0, s28""")
    dma_linear(a, 27, 30)
    a(f"""    v_min_u32 v8, 39, v0
    s_mul_i32 s28, s20, 640
    s_add_u32 s28, s28, {FL_F2}
    v_lshlrev_b32 v8, 4, v8
    v_lshlrev_b32 v10, 15, v6
    v_lshl_add_u32 v10, v5, 4, v10
    v_add_u32 v11, 16384, v10
    s_lshl_b32 s26, s78, 8               ; A soffset
    v_lshrrev_b32 v7, 2, v0
    v_lshlrev_b32 v7, 14, v7
    v_and_b32 v4, 3, v0
    v_lshl_add_u32 v7, v4, 4, v7
    s_lshl_b32 s29, s70, 4
    s_add_u32 s29, s29, s71
    s_lshl_b32 s30, s29, 6
    s_mul_i32 s31, s20, {40*16384}
    s_add_u32 s30, s30, s31""")
    for k in range(4): a(f"    v_mov_b32 v{SX+8+k}, 0")
    a("    ; MARK 8")
    spin(a, "S2", ["    buffer_load_dword v9, v8, s[8:11], s28 offen sc1"], ["    v_cmp_eq_u32 vcc, -1, v9"])
    a("    s_barrier\n    ; MARK 9")
    a(f"""    buffer_load_dwordx4 {vr(SX,4)}, v7, s[8:11], s30 offen sc1
    s_add_u32 s30, s30, {16*16384}
    buffer_load_dwordx4 {vr(SX+4,4)}, v7, s[8:11], s30 offen sc1
    s_add_u32 s30, s30, {16*16384}
    s_mov_b32 exec_hi, 0
    buffer_load_dwordx4 {vr(SX+8,4)}, v7, s[8:11], s30 offen sc1
    s_mov_b32 exec_hi, -1""")
    def aload(s):
        b = AB + 10 * (s % RING)
        return [f"    buffer_load_dwordx4 {vr(b+6,4)}, v10, s[8:11], s26 offen sc1", f"    buffer_load_dwordx4 {vr(b+2,4)}, v11, s[8:11], s26 offen sc1",
                f"    s_add_u32 s26, s26, {8*16384}"]
    NPRE = 6
    q = []
    q += ["x"] * 3
    for s in range(NPRE):
        for x in aload(s): a(x)
        q += [s, s]
    def breads(s): return [f"    ds_read_b128 {vr(BF[s&1]+4*t,4)}, v{2 if s < 10 else 4} offset:{(s%10)*6144+1024*t}" for t in range(6)]
    for x in breads(0): a(x)
    a(f"""    v_mov_b32 v8, 0x3f803f80
    v_lshlrev_b32 v9, 6, v4
    v_and_b32 v4, 12, v0
    v_add_u32 v9, v9, v4
    v_add_u32 v4, 61440, v2
    s_lshl_b32 s30, s29, 8
    s_lshl_b32 s31, s20, 4
    s_add_u32 s30, s30, s31
    s_add_u32 s30, s30, {FL_L2X}
    s_waitcnt vmcnt({2*NPRE})""")
    S4 = 232
    for k in range(6):
        e = SX + 4 * (k >> 1) + (k & 1); o = e + 2
        z = lambda r: f"v{r}" if k else "0"
        a(f"    v_dot2_f32_bf16 v{S4}, v{e}, v8, {z(S4)}")
        a(f"    v_dot2_f32_bf16 v{S4+1}, v{e}, v{e}, {z(S4+1)}")
        a(f"    v_dot2_f32_bf16 v{S4+2}, v{o}, v8, {z(S4+2)}")
        a(f"    v_dot2_f32_bf16 v{S4+3}, v{o}, v{o}, {z(S4+3)}")
    a(f"""    v_add_f32_dpp v{S4}, v{S4}, v{S4} row_ror:8 row_mask:0xf bank_mask:0x3
    v_add_f32_dpp v{S4+1}, v{S4+1}, v{S4+1} row_ror:8 row_mask:0xf bank_mask:0x3
    v_add_f32_dpp v{S4}, v{S4+2}, v{S4+2} row_ror:8 row_mask:0xf bank_mask:0xc
    v_add_f32_dpp v{S4+1}, v{S4+3}, v{S4+3} row_ror:8 row_mask:0xf bank_mask:0xc
    v_add_f32_dpp v{S4}, v{S4}, v{S4} row_shl:4 row_mask:0xf bank_mask:0x5
    v_add_f32_dpp v{S4}, v{S4+1}, v{S4+1} row_shr:4 row_mask:0xf bank_mask:0xa""")
    allreduce_g(a, [S4], S4 + 1)
    a(f"""    s_mov_b64 exec, 0xffff
    buffer_store_dword v{S4}, v9, s[8:11], s30 offen sc1
    s_mov_b64 exec, -1
    ; MARK 10""")
    q.append("st")
    nxt = NPRE
    l2load = f"    buffer_load_dwordx4 {vr(SX,4)}, v7, s[8:11], s33 offen sc1"
    for s in range(20):
        b = AB + 10 * (s % RING)
        last = max(i for i, t in enumerate(q) if t == s)
        a(f"    s_waitcnt vmcnt({len(q) - 1 - last})")
        a(f"    v_mov_b64 {vr(b+10,2)}, {vr(b+4,2)}")
        a(f"    v_mov_b64 {vr(b,2)}, {vr(b+6,2)}")
        a("    s_waitcnt lgkmcnt(0)")
        fill = breads(s + 1) if s < 19 else []
        for _ in range(2 if s < 4 else 1):
            if nxt < 20 and nxt - s < RING:
                fill += aload(nxt); q += [nxt, nxt]; nxt += 1
        if s == 12:
            fill += ["    s_mul_i32 s29, s71, 192", f"    s_add_u32 s29, s29, {WS_CS}", "    s_add_u32 s30, s29, 3072", "    s_add_u32 s31, s29, 6144",
                     "    s_add_u32 s32, s30, 6144", "    v_lshlrev_b32 v8, 2, v5", "    v_lshlrev_b32 v9, 4, v6"]
        if s in (13, 14, 15):
            t = s - 13
            fill += [f"    buffer_load_dword v{CS2+t}, v8, s[8:11], s30 offen offset:{64*t} sc1", f"    buffer_load_dword v{CS2+3+t}, v8, s[8:11], s32 offen offset:{64*t} sc1",
                     f"    buffer_load_dwordx4 {vr(CS1+4*t,4)}, v9, s[8:11], s29 offen offset:{64*t} sc1", f"    buffer_load_dwordx4 {vr(CS1+12+4*t,4)}, v9, s[8:11], s31 offen offset:{64*t} sc1"]
            q += ["c"] * 4
        if s == 16:
            fill += ["    v_lshl_add_u32 v7, v5, 6, v9", "    s_lshl_b32 s33, s78, 10", f"    s_add_u32 s33, s33, {FL_L2X}", l2load]
            q.append("l2")
        if s == 17:
            fill += ["    s_lshl_b32 s29, s20, 8", "    s_add_u32 s29, s29, 122880", "    v_add_u32 v8, s29, v8", "    v_add_u32 v9, s29, v9"]
        main = []
        for par in (1, 0):
            af = vr(b + 8, 4) if par else vr(b, 4)
            for t in range(6):
                c = vr(ACC + 8 * t + 4 * par, 4); bf_ = vr(BF[s & 1] + 4 * t, 4); src = c if s else "0"
                main.append(f"    v_mfma_f32_16x16x32_bf16 {c}, {af}, {bf_}, {src}" if t < 3 else f"    v_mfma_f32_16x16x32_bf16 {c}, {bf_}, {af}, {src}")
        interleave(a, main, fill)
    a("    ; MARK 11")
    spin(a, "L2", [l2load], [f"    v_max3_u32 v10, v{SX}, v{SX+1}, v{SX+2}", f"    v_max_u32 v10, v10, v{SX+3}", "    v_cmp_eq_u32 vcc, -1, v10"], first_issued=True)
    allreduce_g(a, [SX + i for i in range(4)], 12)
    RE, ME, RO, MO, RR, KK = 16, 18, 20, 22, 24, 10
    ln_scalars(a, SX, SX + 1, 640, ME, RE, 12)
    ln_scalars(a, SX + 2, SX + 3, 640, MO, RO, 13)
    bcast_scalars(a, RE, RO, ME, MO, RR)
    c0 = -2.0 * math.sqrt(2.0 / math.pi) * LOG2E
    a(f"    v_mov_b32 v{KK}, {f2u(c0)}\n    v_mov_b32 v{KK+1}, {f2u(c0*0.044715)}")
    for t in range(3):
        a(f"    v_add_f32 v{40+2*t}, v{CS2+t}, v{CS2+3+t}")
        for k in range(2): a(f"    v_pk_add_f32 {vr(CS1+4*t+2*k,2)}, {vr(CS1+4*t+2*k,2)}, {vr(CS1+12+4*t+2*k,2)}")
    a(f"""    s_lshl_b32 s29, s71, 6
    s_add_u32 s29, s29, s78
    s_mul_i32 s29, s29, 3072
    s_add_u32 s30, s29, {WS_Z1}
    s_add_u32 s29, s29, {WS_Z2}
    s_lshl_b32 s33, s78, 12
    s_add_u32 s33, s33, {FL_L3X}
    s_lshl_b32 s31, s71, 8
    s_add_u32 s31, s31, s33
    s_waitcnt lgkmcnt(0)
    ; MARK 12""")
    SS, QQ = 48, 56
    for t in range(3):
        prs = [ACC + 8 * t + 2 * k for k in range(4)]
        for k, x in enumerate(prs): a(f"    v_pk_mul_f32 {vr(x,2)}, {vr(x,2)}, {vr(RR+2*k,2)}")
        for k, x in enumerate(prs): a(f"    v_pk_fma_f32 {vr(x,2)}, {vr(RR+8+2*k,2)}, {vr(40+2*t,2)}, {vr(x,2)} op_sel_hi:[1,0,1] neg_lo:[1,0,0] neg_hi:[1,0,0]")
        gelu_block(a, prs, 64, KK)
        for k, x in enumerate(prs):
            if t == 0: a(f"    v_pk_mul_f32 {vr(QQ+2*k,2)}, {vr(x,2)}, {vr(x,2)}")
            else:
                a(f"    v_pk_add_f32 {vr(SS+2*k,2)}, {vr(x,2)}, {vr(SS+2*k if t == 2 else ACC+2*k,2)}")
                a(f"    v_pk_fma_f32 {vr(QQ+2*k,2)}, {vr(x,2)}, {vr(x,2)}, {vr(QQ+2*k,2)}")
    for k in range(8): a(f"    v_add_f32_dpp v{SS+k}, v{SS+k}, v{SS+k} row_ror:8 row_mask:0xf bank_mask:0x3")
    for k in range(8): a(f"    v_add_f32_dpp v{SS+k}, v{QQ+k}, v{QQ+k} row_ror:8 row_mask:0xf bank_mask:0xc")
    for k in range(4): a(f"    v_add_f32_dpp v{SS+k}, v{SS+k}, v{SS+k} row_half_mirror row_mask:0xf bank_mask:0x5")
    for k in range(4): a(f"    v_add_f32_dpp v{SS+k}, v{SS+4+k}, v{SS+4+k} row_half_mirror row_mask:0xf bank_mask:0xa")
    for k in range(4): a(f"    v_add_f32_dpp v{SS+k}, v{SS+k}, v{SS+k} quad_perm:[2,3,0,1] row_mask:0xf bank_mask:0xf")
    for k in range(4): a(f"    v_add_f32_dpp v{SS+k}, v{SS+k}, v{SS+k} quad_perm:[1,0,3,2] row_mask:0xf bank_mask:0xf")
    a(f"""    v_and_b32 v12, 3, v0
    v_cmp_eq_u32 vcc, 1, v12
    v_cmp_eq_u32 s[24:25], 2, v12
    v_cmp_eq_u32 s[26:27], 3, v12
    v_lshlrev_b32 v12, 4, v12
    v_cndmask_b32 v{SS}, v{SS}, v{SS+1}, vcc
    v_lshl_add_u32 v12, v6, 6, v12
    v_cndmask_b32 v{SS}, v{SS}, v{SS+2}, s[24:25]
    v_bfe_u32 v13, v0, 2, 1
    v_cndmask_b32 v{SS}, v{SS}, v{SS+3}, s[26:27]
    v_lshl_add_u32 v12, v13, 3, v12
    v_bfe_u32 v13, v0, 3, 1
    v_lshl_add_u32 v12, v13, 2, v12
    buffer_store_dword v{SS}, v12, s[8:11], s31 offen sc1
    ; MARK 13""")
    for t in range(3):
        prs = [ACC + 8 * (3 + t) + 2 * k for k in range(4)]
        for k, x in enumerate(prs): a(f"    v_pk_mul_f32 {vr(x,2)}, {vr(x,2)}, {vr(RE if k < 2 else RO,2)} op_sel_hi:[1,0]")
        for k, x in enumerate(prs): a(f"    v_pk_fma_f32 {vr(x,2)}, {vr(CS1+4*t+2*(k&1),2)}, {vr(ME if k < 2 else MO,2)}, {vr(x,2)} op_sel_hi:[1,0,1] neg_lo:[1,0,0] neg_hi:[1,0,0]")
        gelu_block(a, prs, 64, KK)
        o = 72 + 4 * t
        for k, x in enumerate(prs): a(f"    v_cvt_pk_bf16_f32 v{o+k}, v{x}, v{x+1}")
        a(f"    buffer_store_dwordx4 {vr(o,4)}, v2, s[8:11], s30 offen offset:{1024*t} sc1")
    a("    ; MARK 14")
    X3 = 184
    chk = [f"    v_max3_u32 v12, v{X3}, v{X3+1}, v{X3+2}"]
    for k in range(3, 15, 2): chk.append(f"    v_max3_u32 v12, v12, v{X3+k}, v{X3+k+1}")
    chk += [f"    v_max_u32 v12, v12, v{X3+15}", "    v_cmp_eq_u32 vcc, -1, v12"]
    spin(a, "L3", [f"    buffer_load_dwordx4 {vr(X3+4*j,4)}, v2, s[8:11], s33 offen offset:{1024*j} sc1" for j in range(4)], chk)
    a("    ; MARK 15")
    for k in range(4): a(f"    v_pk_add_f32 {vr(X3+2*k,2)}, {vr(X3+2*k,2)}, {vr(X3+8+2*k,2)}")
    for k in range(2): a(f"    v_pk_add_f32 {vr(X3+2*k,2)}, {vr(X3+2*k,2)}, {vr(X3+4+2*k,2)}")
    allreduce_g(a, [X3 + i for i in range(4)], 12)
    ln_scalars(a, X3, X3 + 1, 768, ME, RE, 12)
    ln_scalars(a, X3 + 2, X3 + 3, 768, MO, RO, 13)
    bcast_scalars(a, RE, RO, ME, MO, RR)
    a(f"""    s_lshl_b32 s28, s71, 4
    s_add_u32 s28, s28, s70
    s_lshl_b32 s28, s28, 6
    s_add_u32 s28, s28, {FL_F3}
    s_waitcnt lgkmcnt(0)""")
    for t in range(3):
        for k in range(4):
            x = ACC + 8 * t + 2 * k
            a(f"    v_pk_fma_f32 {vr(x,2)}, {vr(x,2)}, {vr(RR+2*k,2)}, {vr(RR+8+2*k,2)} neg_lo:[0,0,1] neg_hi:[0,0,1]")
        o = 84 + 4 * t
        for r in range(4): a(f"    v_cvt_pk_bf16_f32 v{o+r}, v{ACC+8*t+r}, v{ACC+8*t+4+r}")
        a(f"    buffer_store_dwordx4 {vr(o,4)}, v2, s[8:11], s29 offen offset:{1024*t} sc1")
    a("    ; MARK 16")
    flag_store(a, "L_f3", 28)
    a("    ; MARK 17")

def g2(a):
    NS = 4; ZF = [16, 40]; ACC = 64; Z1R = 112; XB = 124
    for n in WORDER[NW_EARLY:]: a(wload(n))
    a(f"""    v_and_b32 v8, 31, v0
    v_lshlrev_b32 v8, 6, v8
    s_lshl_b32 s28, s73, 11
    s_add_u32 s28, s28, {FL_F3}
    s_lshl_b32 s26, s73, 1
    s_add_u32 s26, s26, s76
    s_lshl_b32 s26, s26, 6
    s_lshl_b32 s27, s77, 5
    s_add_u32 s26, s26, s27
    s_mul_i32 s26, s26, 3072
    s_add_u32 s26, s26, {WS_Z2}
    s_mul_i32 s27, s20, 6144
    s_mul_i32 s29, s77, 12288
    v_add_u32 v10, s29, v2
    v_add_u32 v11, 49152, v10
    s_lshl_b32 s34, s72, 1
    s_add_u32 s34, s34, s76              ; rg
    s_cmp_lg_u32 s20, 0
    s_cbranch_scc1 S3_d""")
    spin(a, "S3", ["    buffer_load_dword v9, v8, s[8:11], s28 offen sc1"], ["    v_cmp_eq_u32 vcc, -1, v9"])
    a("    s_barrier\n    ; MARK 18")
    def dma(st):
        L = [f"    s_add_u32 m0, s27, {(st % NS) * 24576}", "    s_add_u32 s29, s26, 4096"]
        L += [f"    buffer_load_dwordx4 v2, s[8:11], s26 offen offset:{1024*k} sc1 lds" for k in range(4)]
        L += ["    s_add_u32 m0, m0, 4096", "    s_add_u32 s26, s26, 6144"]
        L += [f"    buffer_load_dwordx4 v2, s[8:11], s29 offen offset:{1024*k} sc1 lds" for k in range(2)]
        return L
    def zreads(st, h):
        sl = st % NS
        return [f"    ds_read_b128 {vr(ZF[h]+4*ft,4)}, v{10 + (sl >> 1)} offset:{(sl & 1)*24576 + (ft//3)*6144 + h*3072 + (ft%3)*1024}" for ft in range(6)]
    q = []
    for st in range(NS):
        for x in dma(st): a(x)
        q += [st] * 6
    def wait_stage(st):
        last = max(i for i, t in enumerate(q) if t == st)
        return len(q) - 1 - last
    a(f"    s_waitcnt vmcnt({wait_stage(0)})\n    s_barrier\n    ; MARK 19")
    for x in zreads(0, 0): a(x)
    def mfs(st, h):
        L = []
        for ft in range(6):
            for sl in range(2):
                c = vr(ACC + 24 * sl + 4 * ft, 4); src = c if (st or h) else "0"
                L.append(f"    v_mfma_f32_16x16x32_bf16 {c}, {vr(ZF[h]+4*ft,4)}, {ar(8*(2*st+h)+4*sl,4)}, {src}")
        return L
    for st in range(16):
        a("    s_waitcnt lgkmcnt(0)")
        interleave(a, mfs(st, 0), zreads(st, 1))
        fill = []
        if st < 15:
            a(f"    s_waitcnt vmcnt({wait_stage(st+1)}) lgkmcnt(0)\n    s_barrier")
            fill = zreads(st + 1, 0)
        else: a("    s_waitcnt lgkmcnt(0)")
        extra = []
        if st + NS < 16:
            extra = dma(st + NS); q += [st + NS] * 6
        elif st + NS == 16:
            extra = ["    s_lshl_b32 s28, s73, 7", "    s_add_u32 s28, s28, s34", "    s_mul_i32 s28, s28, 3072", "    s_lshl_b32 s29, s77, 3",
                     "    s_add_u32 s28, s28, s29", f"    s_add_u32 s28, s28, {WS_Z1}", f"    s_add_u32 s29, s28, {64*3072}",
                     "    s_lshl_b32 s30, s34, 5", "    s_add_u32 s30, s30, s77", "    s_lshl_b32 s30, s30, 1", "    v_lshl_add_u32 v12, v5, 2, s30", "    v_mov_b32 v14, 0"]
        elif st + NS == 17:
            extra = [f"    buffer_load_dwordx2 {vr(Z1R+2*ft,2)}, v2, s[8:11], s{28+ft//3} offen offset:{1024*(ft%3)} sc1" for ft in range(6)]
            extra += ["    global_load_short_d16_hi v14, v12, s[60:61]"]
            q += ["e"] * 7
        elif st + NS == 18:
            extra = ["    s_add_u32 s28, s27, 98304", "    v_add_u32 v12, s28, v2", "    s_xor_b32 s28, s20, 2", "    s_mul_i32 s28, s28, 6144",
                     "    s_add_u32 s28, s28, 98304", "    v_add_u32 v13, s28, v2",
                     "    s_lshl_b32 s30, s34, 1", "    s_add_u32 s30, s30, s77", "    s_lshl_b32 s30, s30, 3", "    s_add_u32 s30, s30, s73", "    s_mul_i32 s30, s30, 3072", f"    s_add_u32 s30, s30, {WS_P}"]
        m = mfs(st, 1)
        n = 0
        for k, x in enumerate(m):
            a(x)
            if k < len(fill): a(fill[k])
            if n < len(extra):
                a(extra[n]); n += 1
        assert n == len(extra)
    a("    ; MARK 20")
    for ft in range(6): a(f"    ds_write_b128 v12, {vr(ACC+24+4*ft,4)} offset:{1024*ft}")
    a("    s_waitcnt vmcnt(0)")
    for ft in range(6):
        for h in range(2):
            r = Z1R + 2 * ft + h
            a(f"    v_pk_add_f32 {vr(ACC+4*ft+2*h,2)}, {vr(ACC+4*ft+2*h,2)}, v[14:15] op_sel_hi:[1,0]")
            a(f"    v_lshlrev_b32 v{16+4*ft+2*h}, 16, v{r}\n    v_and_b32 v{17+4*ft+2*h}, 0xffff0000, v{r}")
    a("    s_waitcnt lgkmcnt(0)\n    s_barrier")
    for ft in range(6): a(f"    ds_read_b128 {vr(XB+4*ft,4)}, v13 offset:{1024*ft}")
    a(f"""    s_lshl_b32 s28, s72, 3
    s_add_u32 s28, s28, s73
    s_lshl_b32 s28, s28, 4
    s_add_u32 s28, s28, {FL_F4}""")
    for ft in range(6):
        a(f"    s_waitcnt lgkmcnt({5-ft})")
        c = ACC + 4 * ft
        for h in range(2): a(f"    v_pk_add_f32 {vr(c+2*h,2)}, {vr(c+2*h,2)}, {vr(XB+4*ft+2*h,2)}")
        for h in range(2): a(f"    v_pk_mul_f32 {vr(c+2*h,2)}, {vr(c+2*h,2)}, {vr(16+4*ft+2*h,2)}")
        for h in range(2): a(f"    v_cvt_pk_bf16_f32 v{40+2*ft+h}, v{c+2*h}, v{c+2*h+1}")
        if ft & 1: a(f"    buffer_store_dwordx4 {vr(40+2*(ft-1),4)}, v2, s[8:11], s30 offen offset:{1024*(ft>>1)} sc1")
    a("    ; MARK 21")
    flag_store(a, "L_f4", 28)
    a("    ; MARK 22")

def g3(a):
    PF, ACC, WF, HR = 16, 112, [132, 152, 172], 192
    a(f"""    s_mul_i32 s27, s73, 122880
    s_mul_i32 s28, s20, 30720
    s_add_u32 s27, s27, s28
    s_add_u32 s27, s27, {WS_WOUT}
    s_mov_b32 m0, s28""")
    dma_linear(a, 27, 30)
    srd(a, 16, 64, 2048 * 1280)
    a(f"""    s_lshl_b32 s25, s72, 2
    s_add_u32 s25, s25, s20            ; t tile
    s_lshr_b32 s30, s25, 1
    s_lshl_b32 s30, s30, 5
    s_and_b32 s31, s25, 1
    s_add_u32 s30, s30, s31            ; row0
    s_lshl_b32 s31, s30, 3
    s_mul_i32 s32, s73, {20*16384}
    s_add_u32 s31, s31, s32
    v_lshlrev_b32 v10, 4, v5
    v_lshl_add_u32 v11, v6, 14, v10
    v_lshl_add_u32 v10, v6, 15, v10""")
    for t in range(5):
        qd = 8 * (t >> 1) + (t & 1)
        a(f"    s_add_u32 s32, s31, {WS_H + qd*16384}")
        a(f"    buffer_load_dwordx2 {vr(HR+2*t,2)}, v{10 if t < 4 else 11}, s[8:11], s32 offen sc1")
    a(f"""    v_and_b32 v8, 7, v0
    v_lshlrev_b32 v8, 4, v8
    s_lshl_b32 s28, s72, 7
    s_add_u32 s28, s28, {FL_F4}
    s_mul_i32 s26, s25, 24576
    s_add_u32 s26, s26, {WS_P}
    v_add_u32 v4, 61440, v2
    s_mul_i32 s31, s30, 1280
    s_mul_i32 s32, s73, 160
    s_add_u32 s31, s31, s32
    v_mul_u32_u24 v10, 2560, v5
    v_lshl_add_u32 v11, v6, 3, v10
    v_lshl_add_u32 v10, v6, 4, v10
    s_cmp_lg_u32 s20, 0
    s_cbranch_scc1 S4_d""")
    spin(a, "S4", ["    buffer_load_dword v9, v8, s[8:11], s28 offen sc1"], ["    v_cmp_eq_u32 vcc, -1, v9"])
    a("    s_waitcnt vmcnt(0)\n    s_barrier\n    ; MARK 23")
    def pl(s):
        L = [f"    buffer_load_dwordx4 {vr(PF+4*s,4)}, v2, s[8:11], s26 offen offset:{1024*(s&3)} sc1"]
        if s & 3 == 3: L.append("    s_add_u32 s26, s26, 4096")
        return L
    NPRE = 12
    for s in range(NPRE):
        for x in pl(s): a(x)
    def wreads(s): return [f"    ds_read_b128 {vr(WF[s%3]+4*t,4)}, v{2 if s < 12 else 4} offset:{(s%12)*5120+1024*t}" for t in range(5)]
    for x in wreads(0) + wreads(1): a(x)
    for t in range(5):
        for h in range(2):
            r = HR + 2 * t + h
            a(f"    v_lshlrev_b32 v{ACC+4*t+2*h}, 16, v{r}\n    v_and_b32 v{ACC+4*t+2*h+1}, 0xffff0000, v{r}")
    issued = NPRE
    for s in range(24):
        a(f"    s_waitcnt vmcnt({issued - s - 1}) lgkmcnt({5 if s < 23 else 0})")
        rd = wreads(s + 2) if s < 22 else []
        ex = []
        if issued < 24:
            ex = pl(issued); issued += 1
        for t in range(5):
            c = vr(ACC + 4 * t, 4)
            a(f"    v_mfma_f32_16x16x32_bf16 {c}, {vr(WF[s%3]+4*t,4)}, {vr(PF+4*s,4)}, {c}")
            if rd: a(rd[t])
            if t < len(ex): a(ex[t])
    a("    ; MARK 24")
    for t in range(5):
        for h in range(2): a(f"    v_cvt_pk_bf16_f32 v{20+2*t+h}, v{ACC+4*t+2*h}, v{ACC+4*t+2*h+1}")
    a("""    buffer_store_dwordx4 v[20:23], v10, s[16:19], s31 offen
    buffer_store_dwordx4 v[24:27], v10, s[16:19], s31 offen offset:64
    buffer_store_dwordx2 v[28:29], v11, s[16:19], s31 offen offset:128
L_end:
    s_endpgm""")

def build():
    a = Asm()
    a.begin_kernel(NAME + "_kernel", 256, 256, 163840, 512, accum=256)
    entry(a); conv_role(a); helper_role(a, 0); g1(a); g2(a); g3(a)
    a.end_kernel()
    a.lines = hazard.fix(a.lines, verbose=True)
    a.lines = align.fix(a.lines, verbose=True)
    a(".p2align 8\n.fill 2048, 4, 0xbf800000")
    return a.text("S4 conv + gMLP block in one persistent launch; written with the author's own generator script", single=True)
if __name__ == "__main__":
    out = sys.argv[1] if len(sys.argv) > 1 else "v2.s"
    open(out, "w").write(build())
```

```python
import sys, math, struct
from asmgen import Asm
import hazard

WS_U, WS_X, WS_K, WS_H = 0x0, 0x280000, 0x500000, 0xA80000
WS_WIN, WS_WOUT, WS_CS, WS_ST = 0xD00000, 0xF00000, 0xFF0000, 0xFF8000
WS_Z2, WS_Z1, WS_P = 0x1000000, 0x1300000, 0x1600000
WS_SIZE = 0x1900000
KCH = 8320
def f2u(x): return "0x%08x" % struct.unpack("<I", struct.pack("<f", x))[0]
LOG2E = 1.4426950408889634

def srd(a, r, lo, size):
    a(f"    s_mov_b32 s{r}, s{lo}")
    a(f"    s_and_b32 s{r+1}, s{lo+1}, 0xffff")
    a(f"    s_mov_b32 s{r+2}, {hex(size)}")
    a(f"    s_mov_b32 s{r+3}, 0x20000")
def vr(b, n): return f"v[{b}:{b+n-1}]" if n > 1 else f"v{b}"
def cmul(a, d, x, y):
    a(f"    v_pk_mul_f32 {vr(d,2)}, {vr(x,2)}, {vr(y,2)} op_sel:[0,0] op_sel_hi:[0,1]")
    a(f"    v_pk_fma_f32 {vr(d,2)}, {vr(x,2)}, {vr(y,2)}, {vr(d,2)} op_sel:[1,1,0] op_sel_hi:[1,0,1] neg_lo:[0,1,0]")
def rbf(a, d, s):
    a(f"    v_cvt_pk_bf16_f32 v{d}, v{s}, v{s}")
    a(f"    v_lshlrev_b32 v{d}, 16, v{d}")
def ln_scalars(a, vs, vq, n, vm, vrs, t):
    a(f"    v_mul_f32 v{vm}, {f2u(1.0/n)}, v{vs}")
    a(f"    v_mul_f32 v{t}, {f2u(1.0/n)}, v{vq}")
    a(f"    v_fma_f32 v{t}, -v{vm}, v{vm}, v{t}")
    a(f"    v_max_f32 v{t}, 0, v{t}")
    rbf(a, t, t)
    a(f"    v_add_f32 v{t}, {f2u(1e-5)}, v{t}")
    rbf(a, t, t)
    a(f"    v_sqrt_f32 v{t}, v{t}")
    rbf(a, vm, vm)
    rbf(a, t, t)
    a(f"    v_rcp_f32 v{vrs}, v{t}")

def prologue(a, nwg, endl):
    a(f"""    s_cmp_ge_u32 s2, {nwg}
    s_cbranch_scc1 {endl}
    s_load_dwordx2 s[4:5], s[0:1], 128
    v_lshrrev_b32 v1, 6, v0
    v_and_b32 v0, 63, v0
    v_readfirstlane_b32 s20, v1""")

def k1(a):
    a.begin_kernel("k1_kernel", 288, 256, 69632, 128)
    prologue(a, 288, "K1_end")
    a("""    s_load_dwordx16 s[36:51], s[0:1], 0
    s_waitcnt lgkmcnt(0)""")
    srd(a, 8, 4, WS_SIZE)
    a("""    s_cmp_ge_u32 s2, 160
    s_cbranch_scc1 K1_ln""")
    P = 8
    a("""    s_lshl_b32 s21, s2, 2
    s_add_u32 s21, s21, s20            ; d
    s_mul_i32 s22, s21, 384
    v_lshl_add_u32 v2, v0, 1, s22
    s_lshl_b32 s22, s21, 1
    v_mov_b32 v3, s22
    v_mov_b32 v4, 0""")
    for i in range(18): a(f"    v_mov_b32 v{P+i}, 0")
    a("    global_load_short_d16_hi v4, v3, s[50:51]")
    for c in range(3):
        for k in range(6):
            a(f"    global_load_short_d16_hi v{P+6*c+k}, v2, s[{38+2*k}:{39+2*k}] offset:{128*c}")
    RS = 272
    a(f"""    s_mul_i32 s22, s20, {64*RS}
    v_lshl_add_u32 v5, v0, 2, s22
    v_and_b32 v6, 31, v0
    v_mul_u32_u24 v6, {RS}, v6
    v_lshrrev_b32 v7, 5, v0
    v_lshl_add_u32 v6, v7, 4, v6
    v_add_u32 v6, s22, v6
    v_mov_b32 v7, 0x3f80
    ds_write_b32 v5, v7 offset:{32*RS}""")
    ACC = 96
    for i in range(16): a(f"    v_mov_b32 v{ACC+i}, 0")
    a(f"""    s_mov_b32 s23, 3
    s_waitcnt vmcnt(12)
    v_mul_f32 v4, {f2u(LOG2E)}, v4
    v_exp_f32 v4, v4""")
    rbf(a, 4, 4)
    a("    ; MARK 0\nK1_round:")
    Z1, Z8, Z256, CB, T = 28, 30, 32, 34, 36
    a(f"""    v_mul_f32 v{T}, v4, v{P}
    v_mul_f32 v{T+1}, v4, v{P+1}
    v_mul_f32 v{T}, {f2u(LOG2E)}, v{T}
    v_mul_f32 v{T+1}, 0.15915494, v{T+1}""")
    for z, e in ((Z1, 1), (Z8, 8), (Z256, 256)):
        if e == 1:
            a(f"    v_exp_f32 v{T+2}, v{T}\n    v_fract_f32 v{T+3}, v{T+1}")
        else:
            a(f"    v_mul_f32 v{T+2}, {f2u(float(e))}, v{T}\n    v_mul_f32 v{T+3}, {f2u(float(e))}, v{T+1}")
            a(f"    v_exp_f32 v{T+2}, v{T+2}\n    v_fract_f32 v{T+3}, v{T+3}")
        a(f"    v_cos_f32 v{z}, v{T+3}\n    v_sin_f32 v{z+1}, v{T+3}")
        a(f"    v_pk_mul_f32 {vr(z,2)}, {vr(z,2)}, {vr(T+2,2)} op_sel_hi:[1,0]")
    cmul(a, CB, P+2, P+4)
    a(f"    v_pk_mul_f32 {vr(CB,2)}, {vr(CB,2)}, v[4:5] op_sel_hi:[1,0]")
    row = lambda rho, h: 8 * (rho >> 2) + 4 * h + (rho & 3)
    e1, e2 = [], []
    X = 40
    def emit1(reg, rows):
        s = [f"    v_cvt_pk_bf16_f32 v26, v{reg}, -v{reg+1}"]
        s += [f"    ds_write_b32 v5, v26 offset:{r*RS}" for r in rows]
        return s
    def cm(d, x, y):
        t = []
        cmul(t.append, d, x, y); return t
    e1.append(([], emit1(CB, [row(0, 0)])))
    prev = CB; B0 = {0: CB}
    for k in range(1, 9):
        d = X + 2 * k; e1.append((cm(d, prev, Z1), emit1(d, [row(k, 0)]))); prev = d; B0[k] = d
    Y = 60
    pat = [0, 0, 2, 4, 4, 4, 6, 8, 8]
    cur = {}
    for n, off in enumerate([0, 2, 4, 6, 8]):
        d = Y + 2 * n; cur[off] = d
        e1.append((cm(d, B0[off], Z256), emit1(d, [row(r, 1) for r in range(9) if pat[r] == off])))
    alt = {0: 70, 4: 72, 8: 74}
    for (blk, offs) in ((2, [0, 4, 8]), (3, [0, 4, 8]), (4, [0, 8]), (5, [0, 8]), (6, [0, 8]), (7, [0, 8])):
        base = {2: 9, 3: 9, 4: 12, 5: 12, 6: 14, 7: 14}[blk]
        for n, off in enumerate(offs):
            d = alt[off]; alt[off] = cur[off]
            e1.append((cm(d, cur[off], Z256), emit1(d, [row(base + n, blk & 1)])))
            cur[off] = d
    def emit2(reg, j):
        return [f"    v_cvt_pk_bf16_f32 v27, v{reg}, v{reg+1}", f"    ds_write_b32 v5, v27 offset:{(32+j)*RS}"]
    e2.append(([], emit2(Z8, 1)))
    prev = Z8
    for j in range(2, 32):
        d = 76 + 2 * (j & 1); e2.append((cm(d, prev, Z8), emit2(d, j))); prev = d
    for n in range(max(len(e1), len(e2))):
        A_ = e1[n] if n < len(e1) else ([], []); B_ = e2[n] if n < len(e2) else ([], [])
        for k in range(2):
            if k < len(A_[0]): a(A_[0][k])
            if k < len(B_[0]): a(B_[0][k])
        if A_[1]: a(A_[1][0])
        if B_[1]: a(B_[1][0])
        for s in A_[1][1:] + B_[1][1:]: a(s)
    F = 28
    for kk in range(8):
        a(f"    ds_read_b128 {vr(F+8*kk,4)}, v6 offset:{32*kk}")
        a(f"    ds_read_b128 {vr(F+8*kk+4,4)}, v6 offset:{32*kk+32*RS}")
        if kk == 3:
            a("    s_waitcnt vmcnt(0)")
            for i in range(12): a(f"    v_mov_b32 v{P+i}, v{P+6+i}")
    for kk in range(8):
        a(f"    s_waitcnt lgkmcnt({14-2*kk})")
        a(f"    v_mfma_f32_32x32x16_bf16 {vr(ACC,16)}, {vr(F+8*kk,4)}, {vr(F+8*kk+4,4)}, {vr(ACC,16)}")
    a("""    s_sub_u32 s23, s23, 1
    s_cmp_lg_u32 s23, 0
    s_cbranch_scc1 K1_round""")
    a("    ; MARK 1")
    V = lambda r: ACC + r
    a(f"""    v_and_b32 v2, 1, v0
    v_cmp_eq_u32 vcc, 1, v2
    v_lshlrev_b32 v2, 4, v0
    v_sub_u32 v2, 1008, v2              ; 1008 - 16*lane
    s_mul_i32 s22, s21, {KCH}
    s_add_u32 s22, s22, {WS_K}
    s_add_u32 s24, s22, 4160
    v_cndmask_b32 v26, v{V(12)}, v{V(13)}, vcc
    v_cndmask_b32 v27, v{V(14)}, v{V(15)}, vcc""")
    emap = [[V(k) for k in range(9)],
            [V(9)] * 3 + [V(10)] * 3 + [V(11)] * 3,
            [V(12)] * 4 + [26] + [V(13)] * 4,
            [V(14)] * 4 + [27] + [V(15)] * 4]
    for G in range(4):
        e = emap[G]
        o = 28 + 8 * G
        for k in range(4): a(f"    v_cvt_pk_bf16_f32 v{o+k}, v{e[7-2*k]}, v{e[6-2*k]}")
        for k in range(4): a(f"    v_cvt_pk_bf16_f32 v{o+4+k}, v{e[8-2*k]}, v{e[7-2*k]}")
        a(f"    buffer_store_dwordx4 {vr(o,4)}, v2, s[8:11], s22 offen offset:{3072-1024*G}")
        a(f"    buffer_store_dwordx4 {vr(o+4,4)}, v2, s[8:11], s24 offen offset:{3072-1024*G}")
    a(f"""    v_mov_b32 v61, 0
    v_cvt_pk_bf16_f32 v64, v{V(0)}, v61
    v_cmp_eq_u32 vcc, 0, v0
    v_mov_b32 v62, 0
    v_mov_b32 v63, 0
    v_cndmask_b32 v60, v61, v64, vcc
    v_lshlrev_b32 v2, 4, v0
    v_add_u32 v3, {4160+4096}, v2
    v_add_u32 v2, {4096-64}, v2
    v_cmp_gt_u32 vcc, 4, v0
    v_cndmask_b32 v2, v2, v3, vcc
    s_mov_b64 exec, 0xff
    buffer_store_dwordx4 v[60:63], v2, s[8:11], s22 offen
    s_endpgm""")
    RS = 1344
    XR = 8
    a(f"""K1_ln:
    s_sub_u32 s21, s2, 160              ; blk
    s_lshl_b32 s22, s21, 4
    s_lshl_b32 s23, s20, 2
    s_add_u32 s22, s22, s23
    v_lshrrev_b32 v1, 4, v0
    v_add_u32 v2, s22, v1
    v_mul_u32_u24 v2, 1280, v2
    v_and_b32 v3, 15, v0
    v_lshl_add_u32 v2, v3, 4, v2""")
    for q in range(5): a(f"    global_load_dwordx4 {vr(XR+4*q,4)}, v2, s[36:37] offset:{256*q}")
    a(f"""    v_add_u32 v4, s23, v1
    v_mul_u32_u24 v4, {RS}, v4
    v_lshl_add_u32 v4, v3, 4, v4
    v_lshrrev_b32 v5, 5, v0             ; half
    v_bfe_u32 v6, v0, 2, 2              ; r
    v_lshl_add_u32 v6, v5, 3, v6
    v_mul_u32_u24 v6, {RS}, v6
    v_bfe_u32 v7, v0, 4, 1              ; sub
    v_lshl_add_u32 v6, v7, 5, v6
    v_and_b32 v7, 3, v0
    v_lshl_add_u32 v6, v7, 3, v6
    s_mul_i32 s24, s20, 320
    v_add_u32 v6, s24, v6
    v_and_b32 v7, 31, v0
    v_lshlrev_b32 v7, 5, v7
    v_lshl_add_u32 v7, v5, 4, v7
    s_mul_i32 s24, s21, 20480
    s_mul_i32 s25, s20, 5120
    s_add_u32 s24, s24, s25
    s_add_u32 s25, s24, {WS_X}
    s_add_u32 s26, s24, 4096
    s_add_u32 s27, s25, 4096
    v_mov_b32 v30, 0
    v_mov_b32 v31, 0
    v_mov_b32 v32, 0
    v_mov_b32 v33, 0
    s_lshl_b32 s28, s22, 3
    s_add_u32 s28, s28, {WS_ST}
    v_lshlrev_b32 v29, 2, v0
    s_mov_b64 exec, 0xff
    buffer_store_dword v30, v29, s[8:11], s28 offen
    s_mov_b64 exec, -1
    v_mov_b32 v28, 0x3f803f80""")
    for q in range(5):
        a(f"    s_waitcnt vmcnt({5-q})")
        a(f"    ds_write_b128 v4, {vr(XR+4*q,4)} offset:{16*RS+256*q}")
        for k in range(4):
            r = XR + 4 * q + k
            a(f"    v_dot2_f32_bf16 v{30+(k&1)}, v{r}, v28, v{30+(k&1)}")
            a(f"    v_dot2_f32_bf16 v{32+(k&1)}, v{r}, v{r}, v{32+(k&1)}")
    a("    ; MARK 0\n    v_add_f32 v30, v30, v31\n    v_add_f32 v32, v32, v33")
    for sh in (8, 4, 2, 1):
        a(f"    v_add_f32_dpp v30, v30, v30 row_ror:{sh} row_mask:0xf bank_mask:0xf")
        a(f"    v_add_f32_dpp v32, v32, v32 row_ror:{sh} row_mask:0xf bank_mask:0xf")
    ln_scalars(a, 30, 32, 640, 34, 36, 31)
    for q in range(5):
        for k in range(4):
            r = XR + 4 * q + k; t = 40 + 2 * k
            a(f"    v_lshlrev_b32 v{t}, 16, v{r}")
            a(f"    v_and_b32 v{t+1}, 0xffff0000, v{r}")
        for k in range(4):
            t = 40 + 2 * k
            a(f"    v_pk_add_f32 {vr(t,2)}, {vr(t,2)}, v[34:35] op_sel_hi:[1,0] neg_lo:[0,1] neg_hi:[0,1]")
        for k in range(4):
            t = 40 + 2 * k
            a(f"    v_pk_mul_f32 {vr(t,2)}, {vr(t,2)}, v[36:37] op_sel_hi:[1,0]")
        o = 48 + 4 * q
        for k in range(4):
            t = 40 + 2 * k
            a(f"    v_cvt_pk_bf16_f32 v{o+k}, v{t}, v{t+1}")
        a(f"    ds_write_b128 v4, {vr(o,4)} offset:{256*q}")
    a("    s_waitcnt lgkmcnt(0)\n    s_barrier\n    ; MARK 1")
    for arr in range(2):
        for q in range(5):
            o = 8 + 20 * arr + 4 * q
            a(f"    ds_read_b64_tr_b16 {vr(o,2)}, v6 offset:{arr*16*RS+64*q}")
            a(f"    ds_read_b64_tr_b16 {vr(o+2,2)}, v6 offset:{arr*16*RS+64*q+4*RS}")
        if arr == 0: continue
    n = 0
    for arr in range(2):
        for q in range(5):
            o = 8 + 20 * arr + 4 * q
            n += 2
            a(f"    s_waitcnt lgkmcnt({min(15, 20-n)})")
            if q < 4: a(f"    buffer_store_dwordx4 {vr(o,4)}, v7, s[8:11], s{24+arr} offen offset:{1024*q}")
            else: a(f"    buffer_store_dwordx4 {vr(o,4)}, v7, s[8:11], s{26+arr} offen")
    a("K1_end:\n    s_endpgm")
    a.end_kernel()

def k2(a):
    a.begin_kernel("k2_kernel", 256, 256, 68608, 256)
    prologue(a, 256, "K2_end")
    a("""    s_load_dwordx2 s[6:7], s[0:1], 64        ; Dskip
    s_load_dwordx2 s[16:17], s[0:1], 80      ; w_in
    s_load_dwordx2 s[18:19], s[0:1], 104     ; w_out
    s_waitcnt lgkmcnt(0)""")
    srd(a, 8, 4, WS_SIZE)
    a("""    s_cmp_ge_u32 s2, 160
    s_cbranch_scc1 K2_help""")
    WL = KCH + 4608
    TB = 4 * WL
    a(f"""    s_lshl_b32 s21, s2, 2
    s_add_u32 s21, s21, s20            ; d
    s_mul_i32 s22, s20, {WL}
    s_add_u32 s23, s22, {KCH}
    v_lshlrev_b32 v2, 4, v0
    v_lshrrev_b32 v3, 1, v0
    v_mul_u32_u24 v3, 20480, v3
    v_and_b32 v4, 1, v0
    v_lshl_add_u32 v3, v4, 4, v3
    s_lshl_b32 s24, s21, 5             ; d*32
    s_add_u32 m0, s23, 512""")
    for q in range(4):
        a(f"    buffer_load_dwordx4 v3, s[8:11], s24 offen lds")
        if q < 3: a(f"    s_add_u32 m0, m0, 1024\n    s_add_u32 s24, s24, {32*20480}")
    a(f"""    s_mul_i32 s25, s21, {KCH}
    s_add_u32 s25, s25, {WS_K}
    s_mov_b32 m0, s22""")
    for h in range(2):
        for q in range(4): a(f"    buffer_load_dwordx4 v2, s[8:11], s25 offen offset:{1024*q} lds")
        a("    s_add_u32 m0, m0, 4096\n    s_add_u32 s25, s25, 4096")
    a(f"""    s_mov_b64 exec, 0xff
    buffer_load_dwordx4 v2, s[8:11], s25 offen lds
    s_mov_b64 exec, -1
    v_and_b32 v5, 15, v0               ; a / b
    v_lshrrev_b32 v6, 4, v0            ; g
    v_mul_u32_u24 v7, 20480, v5
    v_lshl_add_u32 v7, v6, 3, v7
    s_lshl_b32 s24, s21, 5
    s_add_u32 s24, s24, {WS_X}""")
    XR = 200
    for J in range(8):
        a(f"    buffer_load_dwordx2 {vr(XR+2*J,2)}, v7, s[8:11], s24 offen")
        if J < 7: a(f"    s_add_u32 s24, s24, {16*20480}")
    a(f"""    s_lshl_b32 s24, s21, 1
    v_mov_b32 v7, s24
    v_mov_b32 v216, 0
    global_load_short_d16_hi v216, v7, s[6:7]
    v_mov_b32 v8, 0
    v_mov_b32 v9, 0
    v_lshl_add_u32 v7, v0, 3, s23
    ds_write_b64 v7, v[8:9]
    ; A addresses v10..v13
    v_add_u32 v8, 1, v5
    v_lshrrev_b32 v8, 1, v8
    v_lshlrev_b32 v8, 2, v8            ; 4*((b+1)>>1)
    v_lshl_add_u32 v8, v6, 4, v8       ; + 16 g
    v_and_b32 v9, 1, v5
    v_mul_u32_u24 v9, 4160, v9
    v_add_u32 v8, v8, v9
    s_add_u32 s24, s22, {4160 + 4112 - 512 - 64}
    v_sub_u32 v10, s24, v8
    v_subrev_u32 v11, 1024, v10
    v_subrev_u32 v12, 2048, v10
    v_subrev_u32 v13, 3072, v10
    ; B address v14
    v_lshlrev_b32 v14, 5, v5
    v_lshlrev_b32 v9, 4, v6
    v_sub_u32 v14, v14, v9
    s_add_u32 s24, s23, {512 + 16 - 64}
    v_add_u32 v14, s24, v14""")
    ACC = 16
    SET = [48, 112]
    for i in range(32): a(f"    v_mov_b32 v{ACC+i}, 0")
    def reads(st, rr):
        L = []
        for p in range(8):
            o = (128 if p % 2 == 0 else 0) + 16 * rr
            d = SET[st] + 4 * p
            L.append((f"    ds_read2_b32 {vr(d,2)}, v{10+p//2} offset0:{o} offset1:{o+1}",
                      f"    ds_read2_b32 {vr(d+2,2)}, v{10+p//2} offset0:{o+2} offset1:{o+3}",
                      f"    ds_read_b128 {vr(d+32,4)}, v14 offset:{512*p+64*rr}"))
        return [x for t in L for x in t]
    def mf(st):
        L = []
        for p in range(8):
            for q in range(8 - p):
                c = ACC + 4 * (p + q)
                L.append(f"    v_mfma_f32_16x16x32_bf16 {vr(c,4)}, {vr(SET[st]+4*p,4)}, {vr(SET[st]+32+4*q,4)}, {vr(c,4)}")
        return L
    a("    s_waitcnt vmcnt(9)\n    ; MARK 0")
    for s in reads(0, 1): a(s)
    a("    s_mov_b32 s26, 4\nK2_loop:")
    def block(st, rd, pre=()):
        a("    s_waitcnt lgkmcnt(0)")
        rd = list(pre) + rd
        for n, m in enumerate(mf(st)):
            a(m)
            if n < len(rd): a(rd[n])
    block(0, reads(1, 0))
    block(1, reads(0, 1), [f"    v_subrev_u32 v{r}, 128, v{r}" for r in range(10, 15)])
    a("""    s_sub_u32 s26, s26, 1
    s_cmp_lg_u32 s26, 0
    s_cbranch_scc1 K2_loop""")
    UR = 48
    a("    ; MARK 1")
    a(f"""    s_waitcnt lgkmcnt(0)
    v_lshlrev_b32 v7, 5, v5
    v_lshl_add_u32 v7, v6, 3, v7
    s_add_u32 s24, s23, 512
    v_add_u32 v7, s24, v7""")
    for J in range(8): a(f"    ds_read_b64 {vr(UR+2*J,2)}, v7 offset:{512*J}")
    a(f"""    v_lshlrev_b32 v7, 4, v5
    v_lshl_add_u32 v7, v6, 2, v7
    s_mul_i32 s24, s20, 2112
    s_add_u32 s24, s24, {TB}
    v_add_u32 v7, s24, v7
    s_waitcnt vmcnt(0)""")
    for J in range(8):
        t = 64 + 8 * (J & 1); c = ACC + 4 * J
        a(f"    s_waitcnt lgkmcnt({7-J + J})" if False else "")
        if J == 0: a("    s_waitcnt lgkmcnt(0)")
        for k in range(2):
            a(f"    v_lshlrev_b32 v{t+2*k}, 16, v{XR+2*J+k}")
            a(f"    v_and_b32 v{t+2*k+1}, 0xffff0000, v{XR+2*J+k}")
            a(f"    v_lshlrev_b32 v{t+4+2*k}, 16, v{UR+2*J+k}")
            a(f"    v_and_b32 v{t+4+2*k+1}, 0xffff0000, v{UR+2*J+k}")
        for k in range(2):
            a(f"    v_pk_fma_f32 {vr(c+2*k,2)}, {vr(t+4+2*k,2)}, v[216:217], {vr(c+2*k,2)} op_sel_hi:[1,0,1]")
        for k in range(2):
            a(f"    v_pk_add_f32 {vr(c+2*k,2)}, {vr(c+2*k,2)}, {vr(t+2*k,2)}")
        a(f"    v_cvt_pk_bf16_f32 v{c}, v{c}, v{c+2}")
        a(f"    v_cvt_pk_bf16_f32 v{c+1}, v{c+1}, v{c+3}")
        a(f"    ds_write2st64_b32 v7, v{c}, v{c+1} offset0:{J} offset1:{33+J}")
    a(f"""    v_bfe_u32 v8, v0, 2, 2
    v_mul_u32_u24 v8, 2112, v8
    v_lshl_add_u32 v8, v6, 5, v8
    v_and_b32 v9, 3, v0
    v_lshl_add_u32 v8, v9, 3, v8
    s_lshl_b32 s24, s20, 9
    s_add_u32 s24, s24, {TB}
    v_add_u32 v8, s24, v8
    s_lshl_b32 s24, s2, 14
    s_lshl_b32 s25, s20, 12
    s_add_u32 s24, s24, s25
    s_add_u32 s24, s24, {WS_H}
    s_waitcnt lgkmcnt(0)
    s_barrier""")
    for q in range(4):
        a(f"    ds_read_b64_tr_b16 {vr(48+4*q,2)}, v8 offset:{128*q}")
        a(f"    ds_read_b64_tr_b16 {vr(50+4*q,2)}, v8 offset:{128*q+8448}")
    for q in range(4):
        a(f"    s_waitcnt lgkmcnt({6-2*q})")
        a(f"    buffer_store_dwordx4 {vr(48+4*q,4)}, v2, s[8:11], s24 offen offset:{1024*q}")
    a("    s_endpgm")
    a("""K2_help:
    v_lshlrev_b32 v2, 4, v0
    s_cmp_ge_u32 s2, 208
    s_cbranch_scc1 K2_hout""")
    srd(a, 12, 16, 640 * 1536 * 2)
    a(f"""    s_sub_u32 s21, s2, 160
    s_lshr_b32 s22, s21, 1             ; cg
    s_and_b32 s23, s21, 1              ; kh
    v_lshrrev_b32 v3, 3, v0
    v_mul_u32_u24 v3, 3072, v3
    v_and_b32 v4, 7, v0
    v_lshl_add_u32 v3, v4, 4, v3
    s_mul_i32 s24, s23, {320*3072}
    s_mul_i32 s25, s20, {80*3072}
    s_add_u32 s24, s24, s25
    s_lshl_b32 s25, s22, 7
    s_add_u32 s24, s24, s25
    s_mul_i32 m0, s20, 10240""")
    for q in range(10):
        a("    buffer_load_dwordx4 v3, s[12:15], s24 offen lds")
        if q < 9: a(f"    s_add_u32 m0, m0, 1024\n    s_add_u32 s24, s24, {8*3072}")
    a(f"""    v_lshrrev_b32 v5, 4, v0            ; g
    v_bfe_u32 v6, v0, 2, 2
    v_lshl_add_u32 v6, v5, 3, v6
    v_lshlrev_b32 v6, 7, v6
    v_and_b32 v7, 3, v0
    v_lshl_add_u32 v6, v7, 3, v6
    s_lshl_b32 s25, s20, 5
    v_add_u32 v6, s25, v6
    s_lshl_b32 s26, s22, 2
    s_add_u32 s26, s26, s20            ; T
    s_cmp_ge_u32 s26, 48
    s_cselect_b32 s27, 48, 0
    s_cselect_b32 s28, 0, 3
    s_sub_u32 s27, s26, s27            ; T'
    s_mul_i32 s29, s27, 43691
    s_lshr_b32 s29, s29, 17            ; cb
    s_mul_i32 s30, s29, 3
    s_sub_u32 s30, s27, s30
    s_add_u32 s30, s30, s28            ; slot
    s_mul_i32 s29, s29, 120
    s_mul_i32 s31, s23, 60
    s_add_u32 s29, s29, s31
    s_add_u32 s29, s29, s30
    s_lshl_b32 s29, s29, 10
    s_add_u32 s29, s29, {WS_WIN}
    v_mov_b32 v8, 0
    v_mov_b32 v9, 0
    v_mov_b32 v10, 0x3f803f80
    s_waitcnt vmcnt(0)
    s_barrier""")
    for ks in range(10):
        a(f"    ds_read_b64_tr_b16 {vr(16+4*ks,2)}, v6 offset:{4096*ks}")
        a(f"    ds_read_b64_tr_b16 {vr(18+4*ks,2)}, v6 offset:{4096*ks+512}")
    for ks in range(10):
        a(f"    s_waitcnt lgkmcnt({min(15,18-2*ks)})")
        a(f"    buffer_store_dwordx4 {vr(16+4*ks,4)}, v2, s[8:11], s29 offen")
        a(f"    s_add_u32 s29, s29, 6144")
        for k in range(4): a(f"    v_dot2_f32_bf16 v{8+(k&1)}, v{16+4*ks+k}, v10, v{8+(k&1)}")
    a(f"""    v_add_f32 v8, v8, v9
    v_mov_b32 v9, v8
    v_permlane16_swap_b32 v8, v9
    v_add_f32 v8, v8, v9
    v_mov_b32 v9, v8
    v_permlane32_swap_b32 v8, v9
    v_add_f32 v8, v8, v9
    s_lshl_b32 s26, s26, 6
    s_mul_i32 s27, s23, 6144
    s_add_u32 s26, s26, s27
    s_add_u32 s26, s26, {WS_CS}
    v_lshlrev_b32 v3, 2, v0
    s_mov_b64 exec, 0xffff
    buffer_store_dword v8, v3, s[8:11], s26 offen
    s_endpgm
K2_hout:""")
    srd(a, 12, 18, 768 * 640 * 2)
    a(f"""    s_sub_u32 s21, s2, 208
    s_and_b32 s22, s21, 7              ; db
    s_lshr_b32 s23, s21, 3
    s_lshl_b32 s23, s23, 2
    s_add_u32 s23, s23, s20            ; ks
    s_mul_i32 s24, s23, {32*1280}
    s_mul_i32 s25, s22, 160
    s_add_u32 s24, s24, s25
    s_mul_i32 s26, s20, 5120
    s_mov_b32 m0, s26""")
    for q in range(5):
        a(f"""    v_add_u32 v3, {64*q}, v0
    v_mul_u32_u24 v4, 6554, v3
    v_lshrrev_b32 v4, 16, v4
    v_mul_u32_u24 v4, 1120, v4
    v_lshl_add_u32 v3, v3, 4, v4
    buffer_load_dwordx4 v3, s[12:15], s24 offen lds""")
        if q < 4: a("    s_add_u32 m0, m0, 1024")
    a(f"""    v_lshrrev_b32 v6, 2, v0            ; 4g + r
    v_mul_u32_u24 v6, 160, v6
    v_add_u32 v6, s26, v6
    v_and_b32 v7, 3, v0
    v_lshl_add_u32 v5, v7, 3, v6
    v_lshl_add_u32 v6, v7, 4, v6
    s_mul_i32 s27, s22, 24
    s_add_u32 s27, s27, s23
    s_mul_i32 s27, s27, 5120
    s_add_u32 s27, s27, {WS_WOUT}
    s_add_u32 s28, s27, 4096
    s_waitcnt vmcnt(0)""")
    for t in range(5):
        ad, o = (6, 64 * (t >> 1) + 8 * (t & 1)) if t < 4 else (5, 128)
        a(f"    ds_read_b64_tr_b16 {vr(16+4*t,2)}, v{ad} offset:{o}")
        a(f"    ds_read_b64_tr_b16 {vr(18+4*t,2)}, v{ad} offset:{o+16*160}")
    for t in range(5):
        a(f"    s_waitcnt lgkmcnt({8-2*t})")
        if t < 4: a(f"    buffer_store_dwordx4 {vr(16+4*t,4)}, v2, s[8:11], s27 offen offset:{1024*t}")
        else: a(f"    buffer_store_dwordx4 {vr(16+4*t,4)}, v2, s[8:11], s28 offen")
    a("K2_end:\n    s_endpgm")
    a.end_kernel()

def allreduce_g(a, v, t):
    a(f"""    v_mov_b32 v{t}, v{v}
    v_permlane16_swap_b32 v{v}, v{t}
    v_add_f32 v{v}, v{v}, v{t}
    v_mov_b32 v{t}, v{v}
    v_permlane32_swap_b32 v{v}, v{t}
    v_add_f32 v{v}, v{v}, v{t}""")

def gelu_block(a, regs, T, KK):
    ts = [T + 2 * n for n in range(len(regs))]
    for x, t in zip(regs, ts): a(f"    v_pk_mul_f32 {vr(t,2)}, {vr(x,2)}, {vr(x,2)}")
    for x, t in zip(regs, ts): a(f"    v_pk_fma_f32 {vr(t,2)}, {vr(t,2)}, {vr(KK,2)}, {vr(KK,2)} op_sel:[0,1,0] op_sel_hi:[1,1,0]")
    for x, t in zip(regs, ts): a(f"    v_pk_mul_f32 {vr(t,2)}, {vr(t,2)}, {vr(x,2)}")
    for x, t in zip(regs, ts): a(f"    v_exp_f32 v{t}, v{t}\n    v_exp_f32 v{t+1}, v{t+1}")
    for x, t in zip(regs, ts): a(f"    v_pk_add_f32 {vr(t,2)}, {vr(t,2)}, 1.0 op_sel_hi:[1,0]")
    for x, t in zip(regs, ts): a(f"    v_rcp_f32 v{t}, v{t}\n    v_rcp_f32 v{t+1}, v{t+1}")
    for x, t in zip(regs, ts): a(f"    v_pk_mul_f32 {vr(x,2)}, {vr(x,2)}, {vr(t,2)}")

def k3(a):
    a.begin_kernel("k3_kernel", 256, 256, 122880 + 1024, 256)
    prologue(a, 256, "K3_end")
    a(f"""    s_and_b32 s21, s2, 7
    s_lshr_b32 s22, s2, 3
    s_lshr_b32 s23, s21, 1
    s_lshl_b32 s23, s23, 2
    s_lshr_b32 s24, s22, 3
    s_add_u32 s23, s23, s24            ; rb
    s_and_b32 s24, s21, 1
    s_lshl_b32 s24, s24, 3
    s_and_b32 s25, s22, 7
    s_add_u32 s24, s24, s25            ; cb
    s_lshl_b32 s25, s23, 2
    s_add_u32 s25, s25, s20
    v_and_b32 v5, 15, v0
    v_lshrrev_b32 v6, 4, v0
    v_lshlrev_b32 v2, 4, v0
    v_lshlrev_b32 v3, 15, v6
    v_lshl_add_u32 v3, v5, 4, v3
    v_add_u32 v4, 16384, v3
    s_lshl_b32 s26, s25, 8
    s_add_u32 s26, s26, {WS_H}         ; A soffset
    s_mul_i32 s27, s24, 122880
    s_mul_i32 s28, s20, 6144
    s_add_u32 s27, s27, s28
    s_add_u32 s27, s27, {WS_WIN}
    s_waitcnt lgkmcnt(0)""")
    srd(a, 8, 4, WS_SIZE)
    RING = 12
    AB = 8
    ACC = 132
    BF = [180, 204]
    ST = 228
    CS2 = 234
    def aload(s):
        b = AB + 10 * (s % RING)
        a(f"    buffer_load_dwordx4 {vr(b+6,4)}, v3, s[8:11], s26 offen")
        a(f"    buffer_load_dwordx4 {vr(b+2,4)}, v4, s[8:11], s26 offen")
        a(f"    s_add_u32 s26, s26, {8*16384}")
    def bload(grp):
        a(f"    s_add_u32 m0, s28, {grp*24576}")
        for q in range(4): a(f"    buffer_load_dwordx4 v2, s[8:11], s27 offen offset:{1024*q} lds")
        a(f"    s_add_u32 m0, m0, 4096\n    s_add_u32 s29, s27, 4096")
        for q in range(2): a(f"    buffer_load_dwordx4 v2, s[8:11], s29 offen offset:{1024*q} lds")
        a(f"    s_add_u32 s27, s27, 24576")
    for grp in range(3):
        bload(grp)
        for s in range(4 * grp, 4 * grp + 4): aload(s)
    for i in range(48): a(f"    v_mov_b32 v{ACC+i}, 0")
    for i in range(4): a(f"    v_mov_b32 v{ST+i}, 0")
    a(f"    v_mov_b32 v{ST+4}, 0x3f803f80")
    def breads(s): return [f"    ds_read_b128 {vr(BF[s&1]+4*t,4)}, v7 offset:{(s%10)*6144+1024*t}" for t in range(6)]
    a("    v_mov_b32 v7, v2")
    issued = 42
    done_mark = {g: 14 * (g + 1) for g in range(5)}
    for s in range(20):
        grp = s // 4
        b = AB + 10 * (s % RING)
        if s % 4 == 0:
            a(f"    s_waitcnt vmcnt({issued - done_mark[grp]})")
            a("    s_barrier")
            if s == 0: a("    ; MARK 0")
            if s == 16: a("    ; MARK 1")
            if s == 0:
                for x in breads(0): a(x)
        nxt_same_group = (s % 4 != 3)
        val = []
        val.append(f"    v_pk_mov_b32 {vr(b+10,2)}, {vr(b+4,2)}, {vr(b+4,2)} op_sel:[0,1]")
        val.append(f"    v_pk_mov_b32 {vr(b,2)}, {vr(b+6,2)}, {vr(b+6,2)} op_sel:[0,1]")
        for x in val: a(x)
        if s % 4 == 0 and s > 0:
            if s == 10 + 2: pass
            for x in breads(s): a(x)
        dots = []
        for k in range(2):
            for base in (b + 2, b + 6):
                dots.append(f"    v_dot2_f32_bf16 v{ST}, v{base+k}, v{ST+4}, v{ST}")
                dots.append(f"    v_dot2_f32_bf16 v{ST+1}, v{base+k}, v{base+k}, v{ST+1}")
                dots.append(f"    v_dot2_f32_bf16 v{ST+2}, v{base+2+k}, v{ST+4}, v{ST+2}")
                dots.append(f"    v_dot2_f32_bf16 v{ST+3}, v{base+2+k}, v{base+2+k}, v{ST+3}")
        rd = []
        if nxt_same_group:
            if s + 1 == 10: rd.append("    v_add_u32 v7, 61440, v7")
            rd += breads(s + 1)
        a("    s_waitcnt lgkmcnt(0)")
        fill = rd + dots
        n = 0
        for par in (1, 0):
            af = vr(b + 8, 4) if par else vr(b, 4)
            for t in range(6):
                c = vr(ACC + 8 * t + 4 * par, 4); bf_ = vr(BF[s & 1] + 4 * t, 4)
                if t < 3: a(f"    v_mfma_f32_16x16x32_bf16 {c}, {af}, {bf_}, {c}")
                else: a(f"    v_mfma_f32_16x16x32_bf16 {c}, {bf_}, {af}, {c}")
                for _ in range(2):
                    if n < len(fill): a(fill[n]); n += 1
        assert n == len(fill)
        if s % 4 == 3 and grp + 3 < 5:
            bload(grp + 3)
            for s2_ in range(4 * (grp + 3), 4 * (grp + 3) + 4): aload(s2_)
            issued += 14
        if s == 11:
            a(f"""    s_mul_i32 s29, s24, 192
    s_add_u32 s29, s29, {WS_CS}
    s_add_u32 s30, s29, 3072
    s_add_u32 s31, s29, 6144
    s_add_u32 s32, s30, 6144
    v_lshlrev_b32 v240, 2, v5
    v_lshlrev_b32 v241, 4, v6""")
            for t in range(3):
                a(f"    buffer_load_dword v{CS2+t}, v240, s[8:11], s30 offen offset:{64*t}")
                a(f"    buffer_load_dword v{CS2+3+t}, v240, s[8:11], s32 offen offset:{64*t}")
                a(f"    buffer_load_dwordx4 {vr(92+4*t,4)}, v241, s[8:11], s29 offen offset:{64*t}")
                a(f"    buffer_load_dwordx4 {vr(104+4*t,4)}, v241, s[8:11], s31 offen offset:{64*t}")
            issued += 12
    a("    ; MARK 2")
    for i in range(4): allreduce_g(a, ST + i, 8 + i)
    RE, ME, RO, MO = 12, 14, 16, 18
    ln_scalars(a, ST, ST + 1, 640, ME, RE, 8)
    ln_scalars(a, ST + 2, ST + 3, 640, MO, RO, 9)
    a(f"""    v_mul_f32 v{ME}, v{ME}, v{RE}
    v_mul_f32 v{MO}, v{MO}, v{RO}
    s_lshl_b32 s29, s20, 8
    s_add_u32 s29, s29, 122880
    v_add_u32 v8, s29, v240
    v_add_u32 v9, s29, v241
    ds_write2_b32 v8, v{RE}, v{RO} offset0:0 offset1:16
    ds_write2_b32 v8, v{ME}, v{MO} offset0:32 offset1:48""")
    RR = 20
    for k in range(4): a(f"    ds_read_b128 {vr(RR+4*k,4)}, v9 offset:{64*k}")
    KK = 10
    c0 = -2.0 * math.sqrt(2.0 / math.pi) * LOG2E
    a(f"""    v_mov_b32 v{KK}, {f2u(c0)}
    v_mov_b32 v{KK+1}, {f2u(c0*0.044715)}
    s_waitcnt vmcnt(0)""")
    for t in range(3):
        a(f"    v_add_f32 v{36+2*t}, v{CS2+t}, v{CS2+3+t}")
        for k in range(2): a(f"    v_pk_add_f32 {vr(92+4*t+2*k,2)}, {vr(92+4*t+2*k,2)}, {vr(104+4*t+2*k,2)}")
    a(f"""    s_mul_i32 s29, s24, 64
    s_add_u32 s29, s29, s25
    s_mul_i32 s29, s29, 3072
    s_add_u32 s30, s29, {WS_Z1}
    s_add_u32 s29, s29, {WS_Z2}
    s_waitcnt lgkmcnt(0)""")
    SS, QQ = 44, 52
    for t in range(3):
        prs = [ACC + 8 * t + 2 * k for k in range(4)]
        for k, x in enumerate(prs): a(f"    v_pk_mul_f32 {vr(x,2)}, {vr(x,2)}, {vr(RR+2*k,2)}")
        for k, x in enumerate(prs): a(f"    v_pk_fma_f32 {vr(x,2)}, {vr(RR+8+2*k,2)}, {vr(36+2*t,2)}, {vr(x,2)} op_sel_hi:[1,0,1] neg_lo:[1,0,0] neg_hi:[1,0,0]")
        gelu_block(a, prs, 60, KK)
        for k, x in enumerate(prs):
            if t == 0:
                a(f"    v_pk_mul_f32 {vr(QQ+2*k,2)}, {vr(x,2)}, {vr(x,2)}")
            else:
                a(f"    v_pk_add_f32 {vr(SS+2*k,2)}, {vr(x,2)}, {vr(SS+2*k if t == 2 else ACC+2*k,2)}")
                a(f"    v_pk_fma_f32 {vr(QQ+2*k,2)}, {vr(x,2)}, {vr(x,2)}, {vr(QQ+2*k,2)}")
        o = 68 + 4 * t
        for r in range(4): a(f"    v_cvt_pk_bf16_f32 v{o+r}, v{ACC+8*t+r}, v{ACC+8*t+4+r}")
        a(f"    buffer_store_dwordx4 {vr(o,4)}, v2, s[8:11], s29 offen offset:{1024*t}")
    for k in range(8):
        a(f"    v_add_f32_dpp v{SS+k}, v{SS+k}, v{SS+k} row_ror:8 row_mask:0xf bank_mask:0x3")
    for k in range(8):
        a(f"    v_add_f32_dpp v{SS+k}, v{QQ+k}, v{QQ+k} row_ror:8 row_mask:0xf bank_mask:0xc")
    for k in range(4):
        a(f"    v_add_f32_dpp v{SS+k}, v{SS+k}, v{SS+k} row_half_mirror row_mask:0xf bank_mask:0x5")
    for k in range(4):
        a(f"    v_add_f32_dpp v{SS+k}, v{SS+4+k}, v{SS+4+k} row_half_mirror row_mask:0xf bank_mask:0xa")
    for k in range(4):
        a(f"    v_add_f32_dpp v{SS+k}, v{SS+k}, v{SS+k} quad_perm:[2,3,0,1] row_mask:0xf bank_mask:0xf")
    for k in range(4):
        a(f"    v_add_f32_dpp v{SS+k}, v{SS+k}, v{SS+k} quad_perm:[1,0,3,2] row_mask:0xf bank_mask:0xf")
    a(f"""    v_and_b32 v8, 3, v0
    v_cmp_eq_u32 vcc, 1, v8
    v_cndmask_b32 v{SS}, v{SS}, v{SS+1}, vcc
    v_cmp_eq_u32 vcc, 2, v8
    v_cndmask_b32 v{SS}, v{SS}, v{SS+2}, vcc
    v_cmp_eq_u32 vcc, 3, v8
    v_cndmask_b32 v{SS}, v{SS}, v{SS+3}, vcc
    v_lshlrev_b32 v8, 4, v8
    v_lshl_add_u32 v8, v6, 6, v8
    v_bfe_u32 v9, v0, 2, 1
    v_lshl_add_u32 v8, v9, 3, v8
    v_bfe_u32 v9, v0, 3, 1
    v_lshl_add_u32 v8, v9, 2, v8
    s_lshl_b32 s31, s25, 8
    s_add_u32 s31, s31, {WS_ST}
    buffer_atomic_add_f32 v{SS}, v8, s[8:11], s31 offen""")
    for t in range(3):
        prs = [ACC + 8 * (3 + t) + 2 * k for k in range(4)]
        for k, x in enumerate(prs): a(f"    v_pk_mul_f32 {vr(x,2)}, {vr(x,2)}, {vr(RE if k < 2 else RO,2)} op_sel_hi:[1,0]")
        for k, x in enumerate(prs): a(f"    v_pk_fma_f32 {vr(x,2)}, {vr(92+4*t+2*(k&1),2)}, {vr(ME if k < 2 else MO,2)}, {vr(x,2)} op_sel_hi:[1,0,1] neg_lo:[1,0,0] neg_hi:[1,0,0]")
        gelu_block(a, prs, 60, KK)
        o = 80 + 4 * t
        for k, x in enumerate(prs): a(f"    v_cvt_pk_bf16_f32 v{o+k}, v{x}, v{x+1}")
        a(f"    buffer_store_dwordx4 {vr(o,4)}, v2, s[8:11], s30 offen offset:{1024*t}")
    a("K3_end:\n    s_endpgm")
    a.end_kernel()

def k3b(a):
    a.begin_kernel("k3b_kernel", 256, 256, 0, 128)
    prologue(a, 256, "K3b_end")
    a(f"""    s_lshl_b32 s21, s2, 2
    s_add_u32 s21, s21, s20
    s_and_b32 s22, s21, 63
    s_mul_i32 s23, s21, 3072
    s_add_u32 s23, s23, {WS_Z2}
    s_lshl_b32 s22, s22, 8
    s_add_u32 s22, s22, {WS_ST}
    v_lshlrev_b32 v2, 4, v0
    v_lshrrev_b32 v3, 4, v0
    v_lshlrev_b32 v3, 6, v3
    s_waitcnt lgkmcnt(0)""")
    srd(a, 8, 4, WS_SIZE)
    for k in range(4): a(f"    buffer_load_dwordx4 {vr(8+4*k,4)}, v3, s[8:11], s22 offen offset:{16*k}")
    for t in range(3): a(f"    buffer_load_dwordx4 {vr(24+4*t,4)}, v2, s[8:11], s23 offen offset:{1024*t}")
    a("    s_waitcnt vmcnt(3)")
    for j in range(8): ln_scalars(a, 8 + 2 * j, 9 + 2 * j, 768, 40 + j, 48 + j, 4)
    a("    s_waitcnt vmcnt(0)")
    for t in range(3):
        for k in range(4):
            r = 24 + 4 * t + k
            a(f"    v_lshlrev_b32 v60, 16, v{r}\n    v_and_b32 v61, 0xffff0000, v{r}")
            a(f"    v_pk_add_f32 v[60:61], v[60:61], {vr(40+2*k,2)} neg_lo:[0,1] neg_hi:[0,1]")
            a(f"    v_pk_mul_f32 v[60:61], v[60:61], {vr(48+2*k,2)}")
            a(f"    v_cvt_pk_bf16_f32 v{r}, v60, v61")
        a(f"    buffer_store_dwordx4 {vr(24+4*t,4)}, v2, s[8:11], s23 offen offset:{1024*t}")
    a("K3b_end:\n    s_endpgm")
    a.end_kernel()

def k4(a):
    NSLOT = 8; D = 5
    a.begin_kernel("k4_kernel", 256, 256, NSLOT * 16384, 256)
    prologue(a, 256, "K4_end")
    a(f"""    s_load_dwordx4 s[16:19], s[0:1], 88
    s_and_b32 s21, s2, 7
    s_lshr_b32 s22, s2, 3
    s_lshr_b32 s23, s21, 1
    s_lshl_b32 s23, s23, 3
    s_lshr_b32 s24, s22, 2
    s_add_u32 s23, s23, s24            ; tb
    s_and_b32 s24, s21, 1
    s_lshl_b32 s24, s24, 2
    s_and_b32 s25, s22, 3
    s_add_u32 s24, s24, s25            ; fb
    s_lshr_b32 s25, s20, 1             ; kh
    s_and_b32 s26, s20, 1              ; fh
    s_lshl_b32 s27, s24, 1
    s_add_u32 s27, s27, s26
    v_lshlrev_b32 v2, 4, v0
    v_and_b32 v5, 15, v0
    v_lshrrev_b32 v6, 4, v0
    v_lshrrev_b32 v3, 3, v0            ; l>>3
    v_lshrrev_b32 v4, 1, v3
    v_and_b32 v7, 7, v0
    v_xor_b32 v7, v7, v4
    v_xor_b32 v8, 4, v7
    v_lshlrev_b32 v3, 13, v3           ; 2*i*4096
    v_lshl_add_u32 v4, v8, 4, v3
    v_add_u32 v4, {16*4096}, v4        ; odd q: i += 8
    v_lshl_add_u32 v3, v7, 4, v3
    s_lshl_b32 s28, s23, 18
    s_lshl_b32 s29, s26, 17
    s_add_u32 s28, s28, s29
    s_lshl_b32 s29, s25, 11
    s_add_u32 s28, s28, s29
    s_lshl_b32 s30, s20, 12
    s_lshl_b32 s31, s27, 6
    s_lshl_b32 s29, s25, 5
    s_add_u32 s31, s31, s29
    s_mul_i32 s31, s31, 3072
    s_add_u32 s31, s31, {WS_Z2}        ; Z soffset
    v_lshrrev_b32 v7, 1, v5
    v_xor_b32 v7, v7, v6
    v_lshlrev_b32 v9, 7, v5
    s_lshl_b32 s29, s25, 13
    v_add_u32 v9, s29, v9
    v_xor_b32 v8, 4, v7
    v_lshl_add_u32 v10, v8, 4, v9
    v_lshl_add_u32 v9, v7, 4, v9
    s_waitcnt lgkmcnt(0)""")
    srd(a, 8, 4, WS_SIZE)
    srd(a, 12, 16, 2048 * 4096)
    ZR = 16
    NZ = D + 1
    WF = 160
    ACC = 192
    def loads(st):
        L = []
        L.append(f"    s_add_u32 m0, s30, {(st % NSLOT) * 16384}")
        L.append(f"    s_add_u32 s29, s28, 4096-2048")
        L.append(f"    buffer_load_dwordx4 v3, s[12:15], s28 offen lds")
        L.append(f"    buffer_load_dwordx4 v3, s[12:15], s29 offen offset:2048 lds")
        L.append(f"    s_add_u32 m0, m0, 1024")
        L.append(f"    s_add_u32 s33, s31, 3072")
        L.append(f"    buffer_load_dwordx4 v4, s[12:15], s28 offen lds")
        L.append(f"    buffer_load_dwordx4 v4, s[12:15], s29 offen offset:2048 lds")
        z = ZR + 24 * (st % NZ)
        for k in range(3): L.append(f"    buffer_load_dwordx4 {vr(z+4*k,4)}, v2, s[8:11], s31 offen offset:{1024*k}")
        for k in range(3): L.append(f"    buffer_load_dwordx4 {vr(z+12+4*k,4)}, v2, s[8:11], s33 offen offset:{1024*k}")
        L.append(f"    s_add_u32 s28, s28, 128")
        L.append(f"    s_add_u32 s31, s31, 6144")
        return L
    for st in range(D):
        for x in loads(st): a(x)
    for i in range(48): a(f"    v_mov_b32 v{ACC+i}, 0")
    issued = 10 * D
    for st in range(16):
        a(f"    s_waitcnt vmcnt({issued - 10*(st+1)})")
        a("    s_barrier")
        if st == 0: a("    ; MARK 0")
        if st == 8: a("    ; MARK 1")
        so = (st % NSLOT) * 16384
        base = (so // 65536) * 65536
        if st % 4 == 0 and st > 0:
            op = "v_add_u32" if base else "v_subrev_u32"
            a(f"    {op} v9, 65536, v9\n    {op} v10, 65536, v10")
        for ks in range(2):
            for tt in range(4):
                a(f"    ds_read_b128 {vr(WF+16*ks+4*tt,4)}, v{9+ks} offset:{so-base+2048*tt}")
        fill = []
        if st + D < 16:
            fill = loads(st + D); issued += 10
        elif st + D == 16:
            fill = [f"    s_lshl_b32 s34, s23, 1", "    s_add_u32 s34, s34, s25", "    s_lshl_b32 s29, s27, 6", "    s_add_u32 s29, s29, s34",
                    "    s_mul_i32 s29, s29, 3072", f"    s_add_u32 s29, s29, {WS_Z1}"]
            fill += [f"    buffer_load_dwordx4 {vr(240+4*k,4)}, v2, s[8:11], s29 offen offset:{1024*k}" for k in range(3)]
            fill += ["    s_lshl_b32 s29, s34, 6", "    v_lshl_add_u32 v11, v5, 2, s29", "    global_load_dword v12, v11, s[18:19]"]
            issued += 4
        z = ZR + 24 * (st % NZ)
        n = 0
        for ks in range(2):
            for tt in range(4):
                a(f"    s_waitcnt lgkmcnt({7 - (4*ks+tt)})")
                for ft in range(3):
                    c = vr(ACC + 12 * tt + 4 * ft, 4)
                    a(f"    v_mfma_f32_16x16x32_bf16 {c}, {vr(z+12*ks+4*ft,4)}, {vr(WF+16*ks+4*tt,4)}, {c}")
                    if n < len(fill): a(fill[n]); n += 1
        assert n == len(fill)
    a("    ; MARK 2")
    a(f"""    s_mul_i32 s29, s20, 6144
    v_add_u32 v7, s29, v2
    s_xor_b32 s29, s20, 2
    s_mul_i32 s29, s29, 6144
    v_add_u32 v8, s29, v2
    s_cmp_eq_u32 s25, 0
    s_cbranch_scc1 K4_lo""")
    for k in range(6): a(f"    ds_write_b128 v7, {vr(ACC+4*k,4)} offset:{1024*k}")
    for k in range(12): a(f"    v_pk_mov_b32 {vr(ACC+2*k,2)}, {vr(ACC+24+2*k,2)}, {vr(ACC+24+2*k,2)} op_sel:[0,1]")
    a("    s_branch K4_join\nK4_lo:")
    for k in range(6): a(f"    ds_write_b128 v7, {vr(ACC+24+4*k,4)} offset:{1024*k}")
    a("K4_join:\n    s_waitcnt lgkmcnt(0)\n    s_barrier")
    for k in range(6): a(f"    ds_read_b128 {vr(16+4*k,4)}, v8 offset:{1024*k}")
    a(f"""    s_waitcnt vmcnt(0)
    v_lshlrev_b32 v14, 16, v12
    v_and_b32 v15, 0xffff0000, v12
    s_mul_i32 s29, s34, 48
    s_mul_i32 s33, s24, 3
    s_add_u32 s29, s29, s33
    s_lshl_b32 s29, s29, 10
    s_add_u32 s29, s29, {WS_P}
    s_lshl_b32 s33, s26, 11
    s_add_u32 s33, s33, s29
    s_lshl_b32 s35, s26, 3
    s_add_u32 s35, s35, s29
    s_add_u32 s35, s35, 1024""")
    for par in range(2):
        for ft in range(3):
            k = 3 * par + ft
            c = ACC + 4 * k
            a(f"    s_waitcnt lgkmcnt({5-k})")
            for h in range(2):
                z1r = 240 + 4 * ft + 2 * par + h
                a(f"    v_pk_add_f32 {vr(c+2*h,2)}, {vr(c+2*h,2)}, {vr(16+4*k+2*h,2)}")
                a(f"    v_lshlrev_b32 v{44+2*h}, 16, v{z1r}\n    v_and_b32 v{45+2*h}, 0xffff0000, v{z1r}")
                a(f"    v_pk_add_f32 {vr(c+2*h,2)}, {vr(c+2*h,2)}, v[14:15] op_sel:[0,{par}] op_sel_hi:[1,{par}]")
                a(f"    v_pk_mul_f32 {vr(c+2*h,2)}, {vr(c+2*h,2)}, {vr(44+2*h,2)}")
                a(f"    v_cvt_pk_bf16_f32 v{48+8*par+2*ft+h}, v{c+2*h}, v{c+2*h+1}")
    a("""    s_cmp_eq_u32 s26, 0
    s_cbranch_scc1 K4_f0""")
    for fh in (1, 0):
        for par in range(2):
            b = 48 + 8 * par
            a(f"    buffer_store_dwordx4 {vr(b+2*fh,4)}, v2, s[8:11], s33 offen")
            a(f"    buffer_store_dwordx2 {vr(b+4-4*fh,2)}, v2, s[8:11], s35 offen")
            if par == 0: a("    s_add_u32 s33, s33, 24576\n    s_add_u32 s35, s35, 24576")
        if fh == 1: a("    s_endpgm\nK4_f0:")
    a("K4_end:\n    s_endpgm")
    a.end_kernel()

def k5(a):
    a.begin_kernel("k5_kernel", 256, 256, 122880, 256)
    prologue(a, 256, "K5_end")
    a(f"""    s_load_dwordx2 s[16:17], s[0:1], 112    ; out
    s_and_b32 s21, s2, 7
    s_lshr_b32 s22, s2, 3
    s_lshr_b32 s23, s21, 1
    s_lshl_b32 s23, s23, 3
    s_lshr_b32 s24, s22, 2
    s_add_u32 s23, s23, s24            ; tb
    s_and_b32 s24, s21, 1
    s_lshl_b32 s24, s24, 2
    s_and_b32 s25, s22, 3
    s_add_u32 s24, s24, s25            ; db
    s_lshl_b32 s25, s23, 2
    s_add_u32 s25, s25, s20
    v_lshlrev_b32 v2, 4, v0
    v_and_b32 v5, 15, v0
    v_lshrrev_b32 v6, 4, v0
    s_mul_i32 s26, s25, 24576
    s_add_u32 s26, s26, {WS_P}
    s_mul_i32 s27, s24, 122880
    s_mul_i32 s28, s20, 5120
    s_add_u32 s27, s27, s28
    s_add_u32 s27, s27, {WS_WOUT}
    s_waitcnt lgkmcnt(0)""")
    srd(a, 8, 4, WS_SIZE)
    srd(a, 12, 16, 2048 * 1280)
    PF = 16; ACC = 112; WF = [132, 152]; HR = 172
    for grp in range(6):
        a(f"    s_add_u32 m0, s28, {grp*20480}")
        a(f"    s_add_u32 s29, s27, 4096")
        for q in range(4): a(f"    buffer_load_dwordx4 v2, s[8:11], s27 offen offset:{1024*q} lds")
        a(f"    s_add_u32 m0, m0, 4096\n    s_add_u32 s27, s27, 20480")
        a(f"    buffer_load_dwordx4 v2, s[8:11], s29 offen lds")
        for q in range(4): a(f"    buffer_load_dwordx4 {vr(PF+16*grp+4*q,4)}, v2, s[8:11], s26 offen offset:{1024*q}")
        a("    s_add_u32 s26, s26, 4096")
    a(f"""    s_lshr_b32 s30, s25, 1
    s_lshl_b32 s30, s30, 5
    s_and_b32 s31, s25, 1
    s_add_u32 s30, s30, s31            ; row0
    s_lshl_b32 s31, s30, 3
    s_mul_i32 s32, s24, {20*16384}
    s_add_u32 s31, s31, s32
    s_add_u32 s31, s31, {WS_H}
    v_lshlrev_b32 v3, 4, v5
    v_lshl_add_u32 v4, v6, 14, v3
    v_lshl_add_u32 v3, v6, 15, v3""")
    for t in range(5):
        q = 8 * (t >> 1) + (t & 1)
        a(f"    s_add_u32 s32, s31, {q*16384}")
        a(f"    buffer_load_dwordx2 {vr(HR+2*t,2)}, v{3 if t < 4 else 4}, s[8:11], s32 offen")
    for i in range(20): a(f"    v_mov_b32 v{ACC+i}, 0")
    a("    v_mov_b32 v7, v2")
    def wreads(s): return [f"    ds_read_b128 {vr(WF[s&1]+4*t,4)}, v7 offset:{(s%12)*5120+1024*t}" for t in range(5)]
    for s in range(24):
        if s % 4 == 0:
            a(f"    s_waitcnt vmcnt({59 - 9*(s//4+1)})")
            a("    s_barrier")
            if s == 0: a("    ; MARK 0")
            if s == 20: a("    ; MARK 1")
            if s == 12: a("    v_add_u32 v7, 61440, v7")
            for x in wreads(s): a(x)
        rd = wreads(s + 1) if s % 4 != 3 else []
        a("    s_waitcnt lgkmcnt(0)")
        for t in range(5):
            c = vr(ACC + 4 * t, 4)
            a(f"    v_mfma_f32_16x16x32_bf16 {c}, {vr(WF[s&1]+4*t,4)}, {vr(PF+4*s,4)}, {c}")
            if rd: a(rd[t])
    a("    ; MARK 2")
    a(f"""    s_mul_i32 s31, s30, 1280
    s_mul_i32 s32, s24, 160
    s_add_u32 s31, s31, s32
    v_mul_u32_u24 v3, 2560, v5
    v_lshl_add_u32 v4, v6, 3, v3
    v_lshl_add_u32 v3, v6, 4, v3
    s_waitcnt vmcnt(0)""")
    for t in range(5):
        for h in range(2):
            r = HR + 2 * t + h
            a(f"    v_lshlrev_b32 v{16+2*h}, 16, v{r}\n    v_and_b32 v{17+2*h}, 0xffff0000, v{r}")
            a(f"    v_pk_add_f32 {vr(16+2*h,2)}, {vr(16+2*h,2)}, {vr(ACC+4*t+2*h,2)}")
            a(f"    v_cvt_pk_bf16_f32 v{20+2*t+h}, v{16+2*h}, v{17+2*h}")
    a("""    buffer_store_dwordx4 v[20:23], v3, s[12:15], s31 offen
    buffer_store_dwordx4 v[24:27], v3, s[12:15], s31 offen offset:64
    buffer_store_dwordx2 v[28:29], v4, s[12:15], s31 offen offset:128
K5_end:
    s_endpgm""")
    a.end_kernel()

def build():
    a = Asm()
    for k in (k1, k2, k3, k3b, k4, k5): k(a)
    a.lines = hazard.fix(a.lines, verbose=True)
    return a.text("S4 conv + gMLP block; generated by the author's own script (launch list)")
if __name__ == "__main__":
    out = sys.argv[1] if len(sys.argv) > 1 else "v1.s"
    open(out, "w").write(build())
```

```python
import sys, math, struct
from asmgen import Asm
import hazard, align
NAME = "sequential_preLN__ssm_conv_s4__mixer_gmlp__prompt"
O = dict(kgmarks=0, burst=12, outsc1=0, xbar=1, t1=0, t2=0, t3=0, hearly=1, hsleep=12)

WS_H, WS_WIN, WS_WOUT, WS_CS, WS_ST1 = 0x0, 0x280000, 0x460000, 0x550000, 0x554000
WS_FL = 0x560000
FL_L3X, FL_L2X, FL_F2, FL_F4, FL_F3, FL_F2P, FL_F1B = [WS_FL + x for x in (0, 0x40000, 0x50000, 0x51000, 0x52000, 0x56000, 0x5C000)]
WS_Z2, WS_Z1, WS_P = 0x600000, 0x900000, 0xC00000
WS_SIZE = 0xF00000
LOG2E = 1.4426950408889634
def f2u(x): return "0x%08x" % struct.unpack("<I", struct.pack("<f", x))[0]
def vr(b, n): return f"v[{b}:{b+n-1}]" if n > 1 else f"v{b}"
def ar(b, n): return f"a[{b}:{b+n-1}]"
def L(s): return ["    " + x.strip() for x in s.strip().split("\n") if x.strip()]
def emit(a, xs):
    for x in xs: a(x)
def srd(r, lo, size):
    return L(f"s_mov_b32 s{r}, s{lo}\ns_and_b32 s{r+1}, s{lo+1}, 0xffff\ns_mov_b32 s{r+2}, {hex(size)}\ns_mov_b32 s{r+3}, 0x20000")
def cmul(d, x, y):
    return [f"    v_pk_mul_f32 {vr(d,2)}, {vr(x,2)}, {vr(y,2)} op_sel:[0,0] op_sel_hi:[0,1]",
            f"    v_pk_fma_f32 {vr(d,2)}, {vr(x,2)}, {vr(y,2)}, {vr(d,2)} op_sel:[1,1,0] op_sel_hi:[1,0,1] neg_lo:[0,1,0]"]
def rbf(d, s): return [f"    v_cvt_pk_bf16_f32 v{d}, v{s}, v{s}", f"    v_lshlrev_b32 v{d}, 16, v{d}"]
def ln_scalars(vs, vq, n, vm, vrs, t):
    return (L(f"v_mul_f32 v{vm}, {f2u(1.0/n)}, v{vs}\nv_mul_f32 v{t}, {f2u(1.0/n)}, v{vq}\nv_fma_f32 v{t}, -v{vm}, v{vm}, v{t}\nv_max_f32 v{t}, 0, v{t}")
            + rbf(t, t) + L(f"v_add_f32 v{t}, {f2u(1e-5)}, v{t}") + rbf(t, t) + L(f"v_sqrt_f32 v{t}, v{t}") + rbf(vm, vm) + rbf(t, t)
            + L(f"v_rcp_f32 v{vrs}, v{t}\ns_nop 0\nv_mul_f32 v{vm}, v{vm}, v{vrs}"))
def allreduce_g(v, t):
    return L(f"v_mov_b32 v{t}, v{v}\nv_permlane16_swap_b32 v{v}, v{t}\nv_add_f32 v{v}, v{v}, v{t}\nv_mov_b32 v{t}, v{v}\nv_permlane32_swap_b32 v{v}, v{t}\nv_add_f32 v{v}, v{v}, v{t}")
def row_scalars(X, n, t):
    return (L(f"""v_permlane16_swap_b32 v{X}, v{X+2}
v_permlane16_swap_b32 v{X+1}, v{X+3}
v_add_f32 v{X}, v{X}, v{X+2}
v_add_f32 v{X+1}, v{X+1}, v{X+3}
v_mov_b32 v{X+2}, v{X}
v_mov_b32 v{X+3}, v{X+1}
s_nop 0
v_permlane32_swap_b32 v{X}, v{X+2}
v_permlane32_swap_b32 v{X+1}, v{X+3}
v_add_f32 v{X}, v{X}, v{X+2}
v_add_f32 v{X+1}, v{X+1}, v{X+3}""") + ln_scalars(X, X + 1, n, t + 1, t, X + 2))
def gelu_block(a, regs, T, KK):
    ts = [T + 2 * n for n in range(len(regs))]
    for x, t in zip(regs, ts): a(f"    v_pk_mul_f32 {vr(t,2)}, {vr(x,2)}, {vr(x,2)}")
    for x, t in zip(regs, ts): a(f"    v_pk_fma_f32 {vr(t,2)}, {vr(t,2)}, {vr(KK,2)}, {vr(KK,2)} op_sel:[0,1,0] op_sel_hi:[1,1,0]")
    for x, t in zip(regs, ts): a(f"    v_pk_mul_f32 {vr(t,2)}, {vr(t,2)}, {vr(x,2)}")
    for x, t in zip(regs, ts): a(f"    v_exp_f32 v{t}, v{t}\n    v_exp_f32 v{t+1}, v{t+1}")
    for x, t in zip(regs, ts): a(f"    v_pk_add_f32 {vr(t,2)}, {vr(t,2)}, 1.0 op_sel_hi:[1,0]")
    for x, t in zip(regs, ts): a(f"    v_rcp_f32 v{t}, v{t}\n    v_rcp_f32 v{t+1}, v{t+1}")
    for x, t in zip(regs, ts): a(f"    v_pk_mul_f32 {vr(x,2)}, {vr(x,2)}, {vr(t,2)}")

TAILS = []
def spin(a, name, loads, check, sleep=1):
    a(f"    s_movk_i32 s35, 0x7fff\n{name}_l:")
    emit(a, loads); a("    s_waitcnt vmcnt(0)"); emit(a, check)
    a(f"    s_cbranch_vccz {name}_d\n    s_sub_u32 s35, s35, 1\n    s_cbranch_scc1 {name}_d\n    s_sleep {sleep}\n    s_branch {name}_l\n{name}_d:")
def recheck(name, loads, check, sleep=1):
    TAILS.append([f"{name}_r:", "    s_movk_i32 s35, 0x7fff", f"{name}_l:", f"    s_sleep {sleep}"] + loads + ["    s_waitcnt vmcnt(0)"] + check +
                 L(f"s_cbranch_vccz {name}_d\ns_sub_u32 s35, s35, 1\ns_cbranch_scc0 {name}_l\ns_branch {name}_d"))
    return check + [f"    s_cbranch_vccnz {name}_r\n{name}_d:"]

class Cnt:
    def __init__(s, name, mx): s.name, s.mx, s.q = name, mx, []
    def issue(s, tag): s.q.append(tag)
    def need(s, *tags):
        idx = max((i for i, t in enumerate(s.q) if t in tags), default=-1)
        if idx < 0: return []
        n = min(len(s.q) - 1 - idx, s.mx)
        s.q = s.q[len(s.q) - n:] if n else []
        return [f"    s_waitcnt {s.name}({n})"]
class Sched:
    def __init__(s, a): s.a = a; s.vm = Cnt("vmcnt", 63); s.lg = Cnt("lgkmcnt", 15); s.q = []
    def cost(s, x):
        if isinstance(x, tuple):
            if x[0] == 'need': return 1
            x = x[0]
        m = x.split()[0]
        if m.startswith(hazard.TRANS) or m.startswith("v_permlane"): return 8
        if m.startswith("ds_write_b128"): return 20
        if m.startswith("ds_write2"): return 12
        if m.startswith("s_"): return 2
        return 4
    def put(s, x):
        if isinstance(x, tuple) and x[0] == 'need':
            emit(s.a, (s.vm if x[1] == 'vm' else s.lg).need(*x[2])); return
        tag = None
        if isinstance(x, tuple): x, tag = x
        m = x.split()[0]
        if m.startswith("ds_"): s.lg.issue(tag)
        elif m.startswith(("buffer_", "global_")): s.vm.issue(tag)
        s.a(x)
    def now(s, xs):
        for x in xs: s.put(x)
    def gap(s, budget=8, forced=()):
        for x in forced:
            budget -= s.cost(x); s.put(x)
        first = not forced
        while s.q and (s.cost(s.q[0]) <= budget or first):
            budget -= s.cost(s.q[0]); s.put(s.q.pop(0)); first = False
    def flush(s):
        while s.q: s.put(s.q.pop(0))

RS = 272; TW = 64 * RS
YO = 8448
L_U = 4 * TW
L_W = L_U + 4 * 4608
VW, VWR = 244, 248
def lanes():
    return L("""v_mov_b32 v1, v0
v_lshrrev_b32 v4, 6, v0
v_and_b32 v0, 63, v0
v_readfirstlane_b32 s20, v4
s_and_b32 s21, s2, 7
s_lshr_b32 s22, s2, 3""")
def common_ids():
    return L(f"""v_lshlrev_b32 v2, 4, v0
v_and_b32 v5, 15, v0
v_lshrrev_b32 v6, 4, v0
s_lshr_b32 s79, s21, 1
s_and_b32 s80, s21, 1
s_and_b32 s81, s22, 7
s_lshr_b32 s82, s22, 3
s_lshl_b32 s70, s79, 2
s_add_u32 s70, s70, s82
s_lshl_b32 s71, s80, 3
s_add_u32 s71, s71, s81
s_lshl_b32 s72, s79, 3
s_add_u32 s72, s72, s81
s_lshl_b32 s73, s80, 2
s_add_u32 s73, s73, s82
s_and_b32 s76, s20, 1
s_lshr_b32 s77, s20, 1
s_lshl_b32 s78, s70, 2
s_add_u32 s78, s78, s20
s_lshl_b32 s74, s72, 18
s_lshl_b32 s79, s76, 17
s_add_u32 s74, s74, s79
s_lshl_b32 s75, s20, 14
s_add_u32 s75, s75, {L_W}
v_lshrrev_b32 v{VW}, 3, v0
v_lshrrev_b32 v{VW+1}, 1, v{VW}
v_and_b32 v{VW+2}, 7, v0
v_xor_b32 v{VW+2}, v{VW+2}, v{VW+1}
v_lshlrev_b32 v{VW}, 13, v{VW}
v_lshl_add_u32 v{VW}, v{VW+2}, 4, v{VW}
s_mul_i32 s79, s77, 2048+4096
v_add_u32 v{VW}, s79, v{VW}
v_xor_b32 v{VW+1}, 64, v{VW}
v_add_u32 v{VW+1}, 65536, v{VW+1}
v_xor_b32 v{VW+2}, 4096, v{VW}
v_xor_b32 v{VW+3}, 4096, v{VW+1}
v_subrev_u32 v{VW+1}, 1024, v{VW+1}
v_subrev_u32 v{VW+2}, 2048, v{VW+2}
v_subrev_u32 v{VW+3}, 3072, v{VW+3}
v_lshrrev_b32 v{VWR}, 1, v5
v_xor_b32 v{VWR}, v{VWR}, v6
v_lshlrev_b32 v{VWR}, 4, v{VWR}
v_lshl_add_u32 v{VWR}, v5, 7, v{VWR}
v_add_u32 v{VWR}, s75, v{VWR}
v_xor_b32 v{VWR+1}, 64, v{VWR}""") + srd(8, 68, WS_SIZE) + srd(12, 58, 2048 * 4096)
def wdma(u):
    pre = [f"    s_add_u32 m0, s75, {(u & 3) * 4096}"] + (["    s_add_u32 s74, s74, 128"] if u else [])
    return pre, [(f"    buffer_load_dwordx4 v{VW+q}, s[12:15], s74 offen offset:{1024*q} lds", ('w', u)) for q in range(4)]
def wread(u):
    return [('need', 'vm', [('w', u)])] + [(f"    ds_read_b128 {ar(16*u+8*k+4*sl,4)}, v{VWR+k} offset:{(u&3)*4096+2048*sl}", ('wr', u)) for k in range(2) for sl in range(2)]

def conv_role(a):
    P0, P2, DT, CUR = 8, 14, 20, 22
    Z1, Z8, Z256, CB, T = 28, 30, 32, 34, 36
    CV, FR, KA, XR, ST, XF = 82, 96, 160, 176, 192, 208
    AD, VY, VYR, VU, VT, VP = 250, 240, 241, 242, 243, 3
    S = Sched(a)
    emit(a, lanes())
    a(f"""    s_mul_i32 s23, s21, 20
    s_add_u32 s23, s23, s22            ; quad
    s_lshl_b32 s24, s23, 2
    s_add_u32 s24, s24, s20            ; channel
    s_mul_i32 s25, s24, 384
    v_lshl_add_u32 v7, v0, 1, s25
    v_lshl_add_u32 v40, v0, 2, s25
    s_lshl_b32 s25, s24, 1
    v_mov_b32 v41, s25
    v_mov_b32 v{DT}, 0""")
    for k in range(6): a(f"    v_mov_b32 v{P2+k}, 0")
    a(f"""    s_lshl_b32 s25, s23, 3
    v_mul_u32_u24 v4, 2560, v1
    v_add_u32 v4, s25, v4
    s_waitcnt lgkmcnt(0)""")
    S.put((f"    global_load_short_d16_hi v{DT}, v41, s[50:51]", 'p2'))
    for k in range(6): S.put((f"    global_load_short_d16_hi v{P2+k}, v7, s[{38+2*k}:{39+2*k}] offset:256", 'p2'))
    for k in range(6): S.put((f"    global_load_dword v{P0+k}, v40, s[{38+2*k}:{39+2*k}]", 'p0'))
    a("    s_load_dwordx2 s[30:31], s[52:53], s25")
    def xg(j):
        r = [(f"    global_load_dwordx2 {vr(XR+4*j,2)}, v4, s[36:37]", 'x'), (f"    global_load_dwordx2 {vr(XR+4*j+2,2)}, v4, s[36:37] offset:1280", 'x')]
        return r + ([f"    v_add_u32 v4, {512*1280}, v4"] if j < 3 else ["    v_lshlrev_b32 v4, 4, v1"])
    if O['xbar']: a('    s_barrier')
    S.now(xg(0) + xg(1))
    emit(a, common_ids())
    a(f"""    s_mul_i32 s26, s20, {TW}
    s_mov_b32 m0, s26
    v_and_b32 v7, 31, v0
    v_mul_u32_u24 v7, {RS}, v7
    v_lshrrev_b32 v40, 5, v0
    v_lshl_add_u32 v7, v40, 4, v7
    v_add_u32 v7, s26, v7
    v_mov_b32 v40, 0x3f80
    v_mov_b32 v42, 0
    v_mov_b32 v43, 0
    s_mul_i32 s27, s20, 4608
    s_add_u32 s27, s27, {L_U}
    v_lshl_add_u32 v44, v0, 3, s27
    ds_write_addtid_b32 v40 offset:{32*RS}
    ds_write_b64 v44, v[42:43]
    v_add_u32 v40, 1, v5
    v_lshrrev_b32 v40, 1, v40
    v_lshlrev_b32 v40, 2, v40
    v_lshl_add_u32 v40, v6, 4, v40
    v_and_b32 v41, 1, v5
    v_mul_u32_u24 v41, 4160, v41
    v_add_u32 v40, v40, v41
    s_add_u32 s28, s26, {4160 + 4112 - 512 - 448}
    v_sub_u32 v{AD}, s28, v40
    v_subrev_u32 v{AD+1}, 1024, v{AD}
    v_subrev_u32 v{AD+2}, 2048, v{AD}
    v_subrev_u32 v{AD+3}, 3072, v{AD}
    v_lshlrev_b32 v40, 5, v5
    v_lshlrev_b32 v41, 4, v6
    v_sub_u32 v40, v40, v41
    s_add_u32 s28, s27, {512 + 16 - 448}
    v_add_u32 v{AD+4}, s28, v40
    v_lshlrev_b32 v{VU}, 2, v1
    v_add_u32 v{VU}, {L_U + 512}, v{VU}
    v_bfe_u32 v40, v5, 1, 2
    v_xor_b32 v40, v40, v6
    v_lshlrev_b32 v40, 4, v40
    v_lshl_add_u32 v40, v5, 6, v40
    s_add_u32 s28, s26, {YO}
    v_add_u32 v{VY}, s28, v40
    v_bfe_u32 v40, v1, 4, 2
    v_lshlrev_b32 v40, 4, v40
    v_lshlrev_b32 v41, 3, v1
    v_xor_b32 v40, v40, v41
    v_add_u32 v{VYR}, {YO}, v40
    s_add_u32 s28, s26, 1008
    v_sub_u32 v{VT}, s28, v2
    v_and_b32 v{VP}, 3, v0
    v_lshlrev_b32 v{VP}, 6, v{VP}
    s_waitcnt lgkmcnt(0)
    s_and_b32 s33, s31, 0xffff0000
    s_lshl_b32 s32, s31, 16
    s_and_b32 s31, s30, 0xffff0000
    s_lshl_b32 s30, s30, 16""")
    S.put(('need', 'vm', ['p2']))
    a(f"    ; MARK 0\n    v_mul_f32 v{DT}, {f2u(LOG2E)}, v{DT}\n    v_exp_f32 v{DT}, v{DT}")
    emit(a, rbf(DT, DT))
    def setup(c):
        R = []
        if c == 0: p = [P2 + k for k in range(6)]
        else:
            p = [CUR + k for k in range(6)]
            for k in range(6): R.append(f"    v_lshlrev_b32 v{CUR+k}, 16, v{P0+k}" if c == 1 else f"    v_and_b32 v{CUR+k}, 0xffff0000, v{P0+k}")
        R += L(f"v_mul_f32 v{T}, v{DT}, v{p[0]}\nv_mul_f32 v{T+1}, v{DT}, v{p[1]}\nv_mul_f32 v{T}, {f2u(LOG2E)}, v{T}\nv_mul_f32 v{T+1}, 0.15915494, v{T+1}")
        ex = L(f"""v_mul_f32 v{CB}, v{p[2]}, v{p[4]}
v_mul_f32 v{CB+1}, v{p[2]}, v{p[5]}
v_fma_f32 v{CB}, -v{p[3]}, v{p[5]}, v{CB}
v_fma_f32 v{CB+1}, v{p[3]}, v{p[4]}, v{CB+1}
v_mul_f32 v{CB}, v{CB}, v{DT}
v_mul_f32 v{CB+1}, v{CB+1}, v{DT}""")
        for z, e in ((Z8, 8), (Z1, 1), (Z256, 256)):
            if e == 1: R += L(f"v_fract_f32 v{T+3}, v{T+1}\nv_exp_f32 v{T+2}, v{T}")
            else: R += L(f"v_mul_f32 v{T+3}, {f2u(float(e))}, v{T+1}\nv_mul_f32 v{T+2}, {f2u(float(e))}, v{T}\nv_fract_f32 v{T+3}, v{T+3}\nv_exp_f32 v{T+2}, v{T+2}")
            R += L(f"v_cos_f32 v{z}, v{T+3}\nv_sin_f32 v{z+1}, v{T+3}") + [ex.pop(0), ex.pop(0)] + L(f"v_mul_f32 v{z}, v{z}, v{T+2}\nv_mul_f32 v{z+1}, v{z+1}, v{T+2}")
        return R
    row = lambda rho, h: 8 * (rho >> 2) + 4 * h + (rho & 3)
    pend = []; nst = [0]
    def flushw():
        S.now(pend); pend.clear(); nst[0] = 0
    def val(ops, reg, rows, neg):
        t = CV + nst[0]; nst[0] += 1
        S.now(ops + [f"    v_cvt_pk_bf16_f32 v{t}, v{reg}, {'-' if neg else ''}v{reg+1}"])
        for r in rows: pend.append(f"    ds_write_addtid_b32 v{t} offset:{r*RS}")
        if len(pend) >= O['burst'] or nst[0] == 14: flushw()
    def chainB():
        val([], Z8, [33], False); prev = Z8
        for j in range(2, 32):
            d = 44 + 2 * (j & 1); val(cmul(d, prev, Z8), d, [32 + j], False); prev = d
        flushw()
    def chainA():
        val([], CB, [row(0, 0)], True); prev = CB; B0 = {0: CB}
        for k in range(1, 9):
            d = 48 + 2 * k; val(cmul(d, prev, Z1), d, [row(k, 0)], True); prev = d; B0[k] = d
        pat = [0, 0, 2, 4, 4, 4, 6, 8, 8]; cur = {}
        for n, off in enumerate([0, 2, 4, 6, 8]):
            d = 66 + 2 * n; cur[off] = d
            val(cmul(d, B0[off], Z256), d, [row(r, 1) for r in range(9) if pat[r] == off], True)
        alt = {0: 76, 4: 78, 8: 80}
        for (blk, offs) in ((2, [0, 4, 8]), (3, [0, 4, 8]), (4, [0, 8]), (5, [0, 8]), (6, [0, 8]), (7, [0, 8])):
            base = {2: 9, 3: 9, 4: 12, 5: 12, 6: 14, 7: 14}[blk]
            for n, off in enumerate(offs):
                d = alt[off]; alt[off] = cur[off]
                val(cmul(d, cur[off], Z256), d, [row(base + n, blk & 1)], True); cur[off] = d
        flushw()
    emit(a, setup(0))
    poll1 = f"    global_load_dword v21, v{VP}, s[66:67] sc1"
    unpack = []
    for j in range(4):
        for par in range(2):
            for h in range(2):
                r = XR + 4 * j + 2 * par + h
                unpack += [f"    v_lshlrev_b32 v{XF+8*j+4*h+par}, 16, v{r}", f"    v_and_b32 v{XF+8*j+4*h+2+par}, 0xffff0000, v{r}"]
    for c in range(3):
        chainB()
        S.now([(f"    ds_read_b128 {vr(FR+8*kk+4,4)}, v7 offset:{32*kk+32*RS}", ('b', kk)) for kk in range(8)])
        if c == 0: S.now(xg(2))
        if c == 2: S.put((poll1, 'poll'))
        chainA()
        S.now([(f"    ds_read_b128 {vr(FR+8*kk,4)}, v7 offset:{32*kk}", ('a', kk)) for kk in range(8)])
        if O['kgmarks']: a(f"    ; MARK {25 + c}")
        if c == 0: S.now(xg(3) + [('need', 'vm', ['p0'])])
        if c < 2: S.q = setup(c + 1)
        else:
            S.put(('need', 'vm', ['poll']))
            emit(a, recheck("S1", [poll1], ["    v_cmp_gt_u32 vcc, 16, v21"]))
            a(f"    ; MARK 1\n    s_mov_b32 s28, {WS_ST1}")
            for j in range(4):
                S.put((f"    buffer_load_dwordx4 {vr(ST+4*j,4)}, v4, s[8:11], s28 offen sc1", ('st', j)))
                if j < 3: a("    s_add_u32 s28, s28, 4096")
            S.q = unpack + L("v_and_b32 v40, 1, v0\nv_cmp_eq_u32 vcc, 1, v40\nv_mov_b32 v77, 0\nv_cmp_eq_u32 s[24:25], 0, v0")
        S.gap(24)
        for kk in range(8):
            S.put(('need', 'lg', [('a', kk)]))
            a(f"    v_mfma_f32_32x32x16_bf16 {vr(KA,16)}, {vr(FR+8*kk,4)}, {vr(FR+8*kk+4,4)}, {vr(KA,16) if (c or kk) else '0'}")
            S.gap(24)
        S.flush()
        if O['kgmarks'] and c < 2: a(f"    ; MARK {28 + c}")
    a("    ; MARK 2")
    V = lambda r: KA + r
    a(f"    v_cndmask_b32 v42, v{V(12)}, v{V(13)}, vcc\n    v_cndmask_b32 v43, v{V(14)}, v{V(15)}, vcc")
    emap = [[V(k) for k in range(9)], [V(9)] * 3 + [V(10)] * 3 + [V(11)] * 3,
            [V(12)] * 4 + [42] + [V(13)] * 4, [V(14)] * 4 + [43] + [V(15)] * 4]
    for G in range(4):
        e = emap[G]; o = 44 + 8 * G
        for k in range(4): a(f"    v_cvt_pk_bf16_f32 v{o+k}, v{e[7-2*k]}, v{e[6-2*k]}")
        for k in range(4): a(f"    v_cvt_pk_bf16_f32 v{o+4+k}, v{e[8-2*k]}, v{e[7-2*k]}")
        if G & 1:
            for g2 in (G - 1, G):
                S.put(f"    ds_write_b128 v{VT}, {vr(44+8*g2,4)} offset:{3072-1024*g2}")
                S.put(f"    ds_write_b128 v{VT}, {vr(48+8*g2,4)} offset:{4160+3072-1024*g2}")
        if G == 1: a(f"    v_cvt_pk_bf16_f32 v76, v{V(0)}, v77\n    v_cndmask_b32 v76, v77, v76, s[24:25]")
    a("    s_mov_b64 exec, 0xffff")
    S.now(["    ds_write_addtid_b32 v77 offset:4096", f"    ds_write_addtid_b32 v76 offset:{4160+4096}"])
    a("    s_mov_b64 exec, -1")
    ACC, SET = 8, [48, 112]
    def rdA(r):
        R = []
        for p in range(8):
            o = (128 if p % 2 == 0 else 0) + 16 * (7 - r); d = SET[r & 1] + 4 * p
            R += [(f"    ds_read2_b32 {vr(d,2)}, v{AD+p//2} offset0:{o} offset1:{o+1}", ('A', r, p)),
                  (f"    ds_read2_b32 {vr(d+2,2)}, v{AD+p//2} offset0:{o+2} offset1:{o+3}", ('A', r, p))]
        return R
    def rdB(r): return [(f"    ds_read_b128 {vr(SET[r&1]+32+4*q,4)}, v{AD+4} offset:{512*q+64*(7-r)}", ('B', r, q)) for q in range(8)]
    S.now(rdA(0))
    UF = 112
    a("    ; MARK 3")
    for j in range(4):
        S.put(('need', 'vm', [('st', j)]))
        for c in range(4):
            a(f"    v_pk_fma_f32 {vr(UF+8*j+2*c,2)}, {vr(XF+8*j+2*c,2)}, {vr(ST+4*j,2)}, {vr(ST+4*j+2,2)} neg_lo:[0,0,1] neg_hi:[0,0,1]")
        for c in range(4): a(f"    v_cvt_pk_bf16_f32 v{144+4*j+c}, v{UF+8*j+2*c}, v{UF+8*j+2*c+1}")
    for j in (1, 3):
        for c in range(4): S.put(f"    ds_write2st64_b32 v{VU}, v{144+4*(j-1)+c}, v{144+4*j+c} offset0:{18*c+4*(j-1)} offset1:{18*c+4*j}")
    for j in range(4):
        for c in range(4):
            a(f"    v_pk_fma_f32 {vr(XF+8*j+2*c,2)}, {vr(UF+8*j+2*c,2)}, s[{30+2*(c>>1)}:{31+2*(c>>1)}], {vr(XF+8*j+2*c,2)} op_sel:[0,{c&1},0] op_sel_hi:[1,{c&1},1]")
    a("    s_waitcnt lgkmcnt(0)\n    s_barrier\n    ; MARK 4")
    S.lg.q = []
    S.now(rdB(0))
    poll1b = f"    buffer_load_dword v40, v{VP}, s[8:11], s29 offen sc1"
    for r in range(8):
        st = r & 1
        rd = rdA(r + 1) + rdB(r + 1) if r < 7 else []
        w0 = wread(2 * r - 3) if r >= 2 else []
        w1 = wread(2 * r - 2) if r >= 1 else []
        first = w0 + rd[:12]; second = w1 + rd[12:]
        if r == 7:
            first += L(f"v_min_u32 v{VP}, 23, v0\nv_lshlrev_b32 v{VP}, 4, v{VP}\ns_mul_i32 s29, s20, 384\ns_add_u32 s29, s29, {FL_F1B}\ns_lshl_b32 s28, s23, 14")
        dm = {}
        for hb in range(2):
            pre, d = wdma(2 * r + hb)
            guard = [('need', 'lg', [('wr', 2 * r + hb - 4)])]
            for q in range(4): dm[18 * hb + 1 + (9 * q) // 2] = [d[q]]
            dm[18 * hb] = guard + pre
        k = 0
        for q in range(8):
            for p in range(8 - q):
                if k == 0: S.q += first
                if k == 16: S.q += second
                S.put(('need', 'lg', [('A', r, p), ('B', r, q)]))
                c = vr(ACC + 4 * (p + q), 4)
                a(f"    v_mfma_f32_16x16x32_bf16 {c}, {vr(SET[st]+4*p,4)}, {vr(SET[st]+32+4*q,4)}, {c if (r or q) else '0'}")
                S.gap(5 if not (k in dm) else 8, dm.get(k, ())) if (r or k >= 4 or k in dm) else None
                k += 1
        S.flush()
    S.put((poll1b, 'p1b'))
    a("    ; MARK 5")
    for J in range(8): S.put(f"    ds_write_b128 v{VY}, {vr(ACC+4*J,4)} offset:{1024*J}")
    a("    s_waitcnt lgkmcnt(0)\n    s_barrier")
    S.lg.q = []
    for j in range(4):
        for c in range(4): S.put((f"    ds_read_b64 {vr(48+8*j+2*c,2)}, v{VYR} offset:{TW*c+2048*j}", ('y', j)))
    for j in range(4):
        S.put(('need', 'lg', [('y', j)]))
        b = 48 + 8 * j
        for c in range(4): a(f"    v_pk_add_f32 {vr(b+2*c,2)}, {vr(b+2*c,2)}, {vr(XF+8*j+2*c,2)}")
        for par in range(2):
            for h in range(2): a(f"    v_cvt_pk_bf16_f32 v{80+4*j+2*par+h}, v{b+4*h+par}, v{b+4*h+2+par}")
        S.put(f"    buffer_store_dwordx4 {vr(80+4*j,4)}, v4, s[8:11], s28 offen sc1")
        if j < 3: a("    s_add_u32 s28, s28, 4096")
    a("    ; MARK 6")
    S.now(wread(13) + wread(14) + wread(15) + [('need', 'vm', ['p1b'])])
    emit(a, recheck("S1b", [poll1b], ["    v_cmp_eq_u32 vcc, -1, v40"]))
    a(f"""    s_lshl_b32 s28, s2, 4
    s_add_u32 s28, s28, {FL_F2}
    s_lshl_b32 s29, s2, 7
    s_add_u32 s29, s29, {FL_F2P}
    v_mov_b32 v8, s28
    v_mov_b32 v9, 1
    v_writelane_b32 v8, s29, 1
    s_waitcnt vmcnt(0) lgkmcnt(0)
    s_barrier
    ; MARK 7
    s_cmp_lg_u32 s20, 0
    s_cbranch_scc1 L_common
    s_mov_b64 exec, 3
    buffer_store_dword v9, v8, s[8:11], 0 offen sc1
    s_mov_b64 exec, -1""")

def flag_store(a, skip, saddr):
    a(f"""    v_mov_b32 v8, 0
    v_mov_b32 v9, 1
    s_waitcnt vmcnt(0)
    s_barrier
    s_cmp_lg_u32 s20, 0
    s_cbranch_scc1 {skip}
    s_mov_b64 exec, 1
    buffer_store_dword v9, v8, s[8:11], s{saddr} offen sc1
    s_mov_b64 exec, -1
{skip}:""")

def helper_role(a):
    a("""L_help:
    s_cmp_ge_u32 s2, 256
    s_cbranch_scc1 L_end""")
    emit(a, lanes())
    a(f"""    s_sub_u32 s23, s2, 160
    s_cmp_ge_u32 s23, 64
    s_cbranch_scc1 L_nostat
    s_lshl_b32 s24, s23, 5
    v_lshrrev_b32 v12, 3, v1
    v_add_u32 v12, s24, v12            ; row
    v_mul_u32_u24 v13, 1280, v12
    v_and_b32 v14, 7, v0
    v_lshl_add_u32 v13, v14, 4, v13
    s_waitcnt lgkmcnt(0)""")
    for q in range(10): a(f"    global_load_dwordx4 {vr(16+4*q,4)}, v13, s[36:37] offset:{128*q}")
    emit(a, common_ids())
    a(f"""    v_mov_b32 v8, -1
    v_mov_b32 v9, -1
    v_mov_b32 v10, -1
    v_mov_b32 v11, -1
    v_lshlrev_b32 v4, 4, v1
    s_lshl_b32 s28, s23, 13
    s_add_u32 s28, s28, {WS_FL}
    s_add_u32 s29, s28, 4096
    buffer_store_dwordx4 v[8:11], v4, s[8:11], s28 offen sc1
    buffer_store_dwordx4 v[8:11], v4, s[8:11], s29 offen sc1
    v_mov_b32 v62, 0x3f803f80
    v_lshrrev_b32 v13, 1, v12
    v_lshlrev_b32 v13, 4, v13
    v_and_b32 v15, 1, v12
    v_lshl_add_u32 v13, v15, 2, v13
    v_lshl_add_u32 v13, v14, 3, v13
    v_cmp_eq_u32 vcc, 1, v14
    s_and_b32 s29, s2, 3
    s_lshl_b32 s29, s29, 6
    v_mov_b32 v66, s29
    v_mov_b32 v67, 1
    s_mov_b32 s28, {WS_ST1}""")
    for q in range(10):
        a(f"    s_waitcnt vmcnt({11-q})")
        if q == 9: a("    ; MARK 0")
        for k in range(4):
            z = (q or k)
            a(f"    v_dot2_f32_bf16 v60, v{16+4*q+k}, v62, {'v60' if z else '0'}")
            a(f"    v_dot2_f32_bf16 v61, v{16+4*q+k}, v{16+4*q+k}, {'v61' if z else '0'}")
    for m in ("row_half_mirror", "quad_perm:[2,3,0,1]", "quad_perm:[1,0,3,2]"):
        a(f"    v_add_f32_dpp v60, v60, v60 {m} row_mask:0xf bank_mask:0xf")
        a(f"    v_add_f32_dpp v61, v61, v61 {m} row_mask:0xf bank_mask:0xf")
    emit(a, ln_scalars(60, 61, 640, 64, 63, 65))
    a(f"""    v_cndmask_b32 v63, v63, v64, vcc
    s_mov_b32 exec_lo, 0x03030303
    s_mov_b32 exec_hi, 0x03030303
    buffer_store_dword v63, v13, s[8:11], s28 offen sc1
    s_mov_b64 exec, -1
    s_waitcnt vmcnt(0)
    s_barrier
    s_cmp_lg_u32 s20, 0
    s_cbranch_scc1 L_hrel
    s_mov_b64 exec, 1
    global_atomic_add v66, v67, s[66:67] sc1
    s_mov_b64 exec, -1
    s_branch L_hrel
L_nostat:
    s_getpc_b64 s[30:31]
L_pc:
    s_sub_u32 s30, s30, L_pc - {NAME}_kernel
    s_subb_u32 s31, s31, 0
    v_lshlrev_b32 v12, 7, v1
    global_load_dword v13, v12, s[30:31]
    v_lshlrev_b32 v12, 5, v1
    v_add_u32 v12, 32768, v12
    global_load_dword v14, v12, s[30:31]
    s_waitcnt lgkmcnt(0)""")
    emit(a, common_ids())
    a("""L_hrel:
    ; MARK 1
    s_cmp_lt_u32 s23, 48
    s_cbranch_scc1 L_hout""")
    def wfirst(): pass
    emit(a, srd(16, 56, 640 * 1536 * 2))
    a(f"""    s_sub_u32 s24, s23, 48
    s_lshr_b32 s25, s24, 1
    s_and_b32 s26, s24, 1              ; k half
    v_lshrrev_b32 v12, 3, v0
    v_mul_u32_u24 v12, 3072, v12
    v_and_b32 v15, 7, v0
    v_lshl_add_u32 v12, v15, 4, v12
    s_mul_i32 s27, s26, {320*3072}
    s_mul_i32 s28, s20, {80*3072}
    s_add_u32 s27, s27, s28
    s_lshl_b32 s28, s25, 7
    s_add_u32 s27, s27, s28
    s_mul_i32 m0, s20, 10240""")
    for q in range(10):
        a("    buffer_load_dwordx4 v12, s[16:19], s27 offen lds")
        if q < 9: a(f"    s_add_u32 m0, m0, 1024\n    s_add_u32 s27, s27, {8*3072}")
    wfirst()
    a(f"""    v_bfe_u32 v12, v0, 2, 2
    v_lshl_add_u32 v12, v6, 3, v12
    v_lshlrev_b32 v12, 7, v12
    v_and_b32 v15, 3, v0
    v_lshl_add_u32 v12, v15, 3, v12
    s_lshl_b32 s28, s20, 5
    v_add_u32 v12, s28, v12
    s_lshl_b32 s27, s25, 2
    s_add_u32 s27, s27, s20
    s_cmp_ge_u32 s27, 48
    s_cselect_b32 s28, 48, 0
    s_cselect_b32 s29, 0, 3
    s_sub_u32 s28, s27, s28
    s_mul_i32 s30, s28, 43691
    s_lshr_b32 s30, s30, 17
    s_mul_i32 s31, s30, 3
    s_sub_u32 s31, s28, s31
    s_add_u32 s31, s31, s29            ; slot
    s_mul_i32 s30, s30, 120
    s_mul_i32 s32, s26, 60
    s_add_u32 s30, s30, s32
    s_add_u32 s30, s30, s31
    s_lshl_b32 s30, s30, 10
    s_add_u32 s30, s30, {WS_WIN}
    v_mov_b32 v8, 0
    v_mov_b32 v10, 0x3f803f80
    s_waitcnt vmcnt(0)
    s_barrier""")
    for ks in range(10):
        a(f"    ds_read_b64_tr_b16 {vr(16+4*ks,2)}, v12 offset:{4096*ks}")
        a(f"    ds_read_b64_tr_b16 {vr(18+4*ks,2)}, v12 offset:{4096*ks+512}")
    for ks in range(10):
        a(f"    s_waitcnt lgkmcnt({min(15,18-2*ks)})")
        a(f"    buffer_store_dwordx4 {vr(16+4*ks,4)}, v2, s[8:11], s30 offen sc1")
        a(f"    s_add_u32 s30, s30, 6144")
        for k in range(4): a(f"    v_dot2_f32_bf16 v8, v{16+4*ks+k}, v10, v8")
    emit(a, allreduce_g(8, 9))
    a(f"""    s_lshl_b32 s27, s27, 6
    s_mul_i32 s28, s26, 6144
    s_add_u32 s27, s27, s28
    s_add_u32 s27, s27, {WS_CS}
    v_lshlrev_b32 v12, 2, v0
    s_mov_b64 exec, 0xffff
    buffer_store_dword v8, v12, s[8:11], s27 offen sc1
    s_mov_b64 exec, -1
    s_branch L_hdone
L_hout:""")
    emit(a, srd(16, 62, 768 * 640 * 2))
    a(f"""    s_and_b32 s24, s23, 7              ; d block
    s_lshr_b32 s25, s23, 3
    s_lshl_b32 s25, s25, 2
    s_add_u32 s25, s25, s20            ; k step
    s_mul_i32 s26, s25, {32*1280}
    s_mul_i32 s27, s24, 160
    s_add_u32 s26, s26, s27
    s_mul_i32 s27, s20, 5120
    s_mov_b32 m0, s27""")
    for q in range(5):
        a(f"""    v_add_u32 v12, {64*q}, v0
    v_mul_u32_u24 v13, 6554, v12
    v_lshrrev_b32 v13, 16, v13
    v_mul_u32_u24 v13, 1120, v13
    v_lshl_add_u32 v12, v12, 4, v13
    buffer_load_dwordx4 v12, s[16:19], s26 offen lds""")
        if q < 4: a("    s_add_u32 m0, m0, 1024")
    wfirst()
    a(f"""    v_lshrrev_b32 v12, 2, v0
    v_mul_u32_u24 v12, 160, v12
    v_add_u32 v12, s27, v12
    v_and_b32 v14, 3, v0
    v_lshl_add_u32 v13, v14, 3, v12
    v_lshl_add_u32 v12, v14, 4, v12
    s_mul_i32 s28, s24, 24
    s_add_u32 s28, s28, s25
    s_mul_i32 s28, s28, 5120
    s_add_u32 s28, s28, {WS_WOUT}
    s_add_u32 s29, s28, 4096
    s_waitcnt vmcnt(0)""")
    for t in range(5):
        ad, o = (12, 64 * (t >> 1) + 8 * (t & 1)) if t < 4 else (13, 128)
        a(f"    ds_read_b64_tr_b16 {vr(16+4*t,2)}, v{ad} offset:{o}")
        a(f"    ds_read_b64_tr_b16 {vr(18+4*t,2)}, v{ad} offset:{o+16*160}")
    for t in range(5):
        a(f"    s_waitcnt lgkmcnt({8-2*t})")
        if t < 4: a(f"    buffer_store_dwordx4 {vr(16+4*t,4)}, v2, s[8:11], s28 offen offset:{1024*t} sc1")
        else: a(f"    buffer_store_dwordx4 {vr(16+4*t,4)}, v2, s[8:11], s29 offen sc1")
    a(f"""L_hdone:
    ; MARK 2
    s_waitcnt vmcnt(0)
    s_barrier
    s_cmp_lg_u32 s20, 0
    s_cbranch_scc1 L_f1b
    v_and_b32 v12, 3, v0
    v_lshlrev_b32 v12, 6, v12""")
    spin(a, "H1", ["    global_load_dword v13, v12, s[66:67] sc1"], ["    v_cmp_gt_u32 vcc, 16, v13"], sleep=8)
    a(f"""    s_lshl_b32 s28, s23, 4
    s_add_u32 s28, s28, {FL_F1B}
    v_mov_b32 v12, 0
    v_mov_b32 v13, 1
    s_mov_b64 exec, 1
    buffer_store_dword v13, v12, s[8:11], s28 offen sc1
    s_mov_b64 exec, -1
L_f1b:
    ; MARK 3""")
    S = Sched(a)
    for u in range(4):
        pre, d = wdma(u); S.now(pre + d)
    for u in range(16):
        S.now(wread(u))
        if u + 4 < 16:
            pre, d = wdma(u + 4)
            S.now([('need', 'lg', [('wr', u)])] + pre + d)
    a(f"""    ; MARK 4
    s_waitcnt lgkmcnt(0)
    s_barrier
    v_min_u32 v3, 23, v0
    v_lshlrev_b32 v3, 4, v3
    s_mul_i32 s29, s20, 384
    s_add_u32 s29, s29, {FL_F1B}""")
    spin(a, "H1b", ["    buffer_load_dword v13, v3, s[8:11], s29 offen sc1"], ["    v_cmp_eq_u32 vcc, -1, v13"], sleep=4)
    a("    s_barrier\n    ; MARK 7\n    s_branch L_common")

def dma_linear(a, sbase, n):
    for q in range(n):
        a(f"    buffer_load_dwordx4 v2, s[8:11], s{sbase} offen offset:{1024*(q&3)} sc1 lds")
        if q & 3 == 3 and q < n - 1: a(f"    s_add_u32 m0, m0, 4096\n    s_add_u32 s{sbase}, s{sbase}, 4096")

def g1(a):
    RING, AB, ACC, BF = 10, 12, 116, [164, 188]
    CS2, CS1, SX, RR, RL = 212, 218, 230, 234, 250
    S = Sched(a)
    a(f"""L_common:
    s_mul_i32 s27, s71, 122880
    s_mul_i32 s28, s20, 30720
    s_add_u32 s27, s27, s28
    s_add_u32 s27, s27, {WS_WIN}
    s_mov_b32 m0, s28""")
    dma_linear(a, 27, 30)
    a(f"""    s_mul_i32 s29, s71, 192
    s_add_u32 s29, s29, {WS_CS}
    s_add_u32 s30, s29, 3072
    s_add_u32 s31, s29, 6144
    s_add_u32 s32, s30, 6144
    v_lshlrev_b32 v8, 2, v5
    v_lshlrev_b32 v9, 4, v6""")
    for t in range(3):
        a(f"""    buffer_load_dword v{CS2+2*t}, v8, s[8:11], s30 offen offset:{64*t} sc1
    buffer_load_dword v{CS2+2*t+1}, v8, s[8:11], s32 offen offset:{64*t} sc1
    buffer_load_dwordx4 {vr(CS1+4*t,4)}, v9, s[8:11], s29 offen offset:{64*t} sc1
    buffer_load_dwordx4 {vr(RR+4*t,4)}, v9, s[8:11], s31 offen offset:{64*t} sc1""")
    XS = BF[1]
    a(f"""    v_min_u32 v3, 39, v0
    s_mul_i32 s28, s20, 640
    s_add_u32 s28, s28, {FL_F2}
    v_lshlrev_b32 v3, 4, v3
    v_lshlrev_b32 v10, 15, v6
    v_lshl_add_u32 v10, v5, 4, v10       ; quad 2g
    v_add_u32 v11, 16384, v10            ; quad 2g+1
    s_lshl_b32 s26, s78, 8
    v_lshrrev_b32 v7, 2, v0
    v_lshlrev_b32 v7, 14, v7
    v_and_b32 v4, 3, v0
    v_lshl_add_u32 v7, v4, 4, v7
    v_lshlrev_b32 v114, 6, v4
    v_and_b32 v4, 12, v0
    v_add_u32 v114, v114, v4
    v_add_u32 v4, 61440, v2
    v_mov_b32 v115, 0x3f803f80
    s_lshl_b32 s29, s70, 4
    s_add_u32 s29, s29, s71
    s_lshl_b32 s30, s29, 6
    s_mul_i32 s31, s20, {40*16384}
    s_add_u32 s30, s30, s31
    s_add_u32 s31, s30, {16*16384}
    s_add_u32 s32, s30, {32*16384}
    s_lshl_b32 s29, s29, 8
    s_lshl_b32 s33, s20, 4
    s_add_u32 s29, s29, s33
    s_add_u32 s29, s29, {FL_L2X}
    s_lshl_b32 s33, s78, 10
    s_add_u32 s33, s33, {FL_L2X}""")
    a("""    v_min_u32 v113, 27, v0
    v_lshrrev_b32 v112, 1, v113
    v_lshlrev_b32 v112, 17, v112
    v_and_b32 v113, 1, v113
    v_lshl_add_u32 v113, v113, 7, v112
    s_and_b32 s34, s71, 7
    s_lshl_b32 s34, s34, 14
    v_add_u32 v113, s34, v113""")
    for k in range(4): a(f"    v_mov_b32 v{XS+8+k}, 0")
    a(f"""    s_cmp_lt_u32 s2, 160
    s_cbranch_scc1 L_s2
    s_lshl_b32 s34, s2, 7
    s_add_u32 s34, s34, {FL_F2P - 160 * 128}
    v_mov_b32 v12, 0""")
    spin(a, "H2p", ["    buffer_load_dword v254, v12, s[8:11], s34 offen sc1"], ["    v_cmp_eq_u32 vcc, -1, v254"], sleep=4)
    a(f"    s_sleep {O['hsleep']}\nL_s2:\n    ; MARK 8")
    spin(a, "S2", ["    buffer_load_dword v254, v3, s[8:11], s28 offen sc1"], ["    v_cmp_eq_u32 vcc, -1, v254"])
    a("    s_barrier\n    ; MARK 9")
    S.now([(f"    buffer_load_dwordx4 {vr(XS,4)}, v7, s[8:11], s30 offen sc1", 'x'), (f"    buffer_load_dwordx4 {vr(XS+4,4)}, v7, s[8:11], s31 offen sc1", 'x'),
           "    s_mov_b32 exec_hi, 0", (f"    buffer_load_dwordx4 {vr(XS+8,4)}, v7, s[8:11], s32 offen sc1", 'x'), "    s_mov_b32 exec_hi, -1"])
    def aload(s):
        b = AB + 10 * (s % RING)
        return [(f"    buffer_load_dwordx4 {vr(b+6,4)}, v10, s[8:11], s26 offen sc1", s), (f"    buffer_load_dwordx4 {vr(b+2,4)}, v11, s[8:11], s26 offen sc1", s),
                f"    s_add_u32 s26, s26, {8*16384}"]
    NPRE = 6
    for s in range(NPRE): S.now(aload(s))
    if O['t1']: S.put("    buffer_load_dword v254, v113, s[8:11], s26 offen sc1")
    def breads(s): return [(f"    ds_read_b128 {vr(BF[s&1]+4*t,4)}, v{2 if s < 10 else 4} offset:{(s%10)*6144+1024*t}", ('b', s, t)) for t in range(6)]
    S.now(breads(0))
    for t in range(3):
        a(f"    v_add_f32 v{CS2+2*t}, v{CS2+2*t}, v{CS2+2*t+1}")
        for k in range(2): a(f"    v_pk_add_f32 {vr(CS1+4*t+2*k,2)}, {vr(CS1+4*t+2*k,2)}, {vr(RR+4*t+2*k,2)}")
    a(f"""    v_lshl_add_u32 v7, v5, 6, v9
    s_lshl_b32 s28, s20, 8
    s_add_u32 s28, s28, 122880
    v_add_u32 v8, s28, v8                ; scratch + 4i
    v_add_u32 v9, s28, v9                ; scratch + 16g
    v_and_b32 v3, 1, v6
    v_lshl_add_u32 v3, v3, 6, v8""")
    S.put(('need', 'vm', ['x']))
    for k in range(6):
        e = XS + 4 * (k >> 1) + (k & 1); o = e + 2
        z = lambda r: f"v{r}" if k else "0"
        a(f"    v_dot2_f32_bf16 v{SX}, v{e}, v115, {z(SX)}\n    v_dot2_f32_bf16 v{SX+1}, v{e}, v{e}, {z(SX+1)}")
        a(f"    v_dot2_f32_bf16 v{SX+2}, v{o}, v115, {z(SX+2)}\n    v_dot2_f32_bf16 v{SX+3}, v{o}, v{o}, {z(SX+3)}")
    def movs(s):
        b = AB + 10 * (s % RING)
        return [('need', 'vm', [s]), f"    v_mov_b64 {vr(b+10,2)}, {vr(b+4,2)}", f"    v_mov_b64 {vr(b,2)}, {vr(b+6,2)}"]
    S.now(movs(0))
    a("    ; MARK 10")
    red = L(f"""v_add_f32_dpp v{SX}, v{SX}, v{SX} row_ror:8 row_mask:0xf bank_mask:0x3
v_add_f32_dpp v{SX+1}, v{SX+1}, v{SX+1} row_ror:8 row_mask:0xf bank_mask:0x3
v_add_f32_dpp v{SX}, v{SX+2}, v{SX+2} row_ror:8 row_mask:0xf bank_mask:0xc
v_add_f32_dpp v{SX+1}, v{SX+3}, v{SX+3} row_ror:8 row_mask:0xf bank_mask:0xc
v_add_f32_dpp v{SX}, v{SX}, v{SX} row_shl:4 row_mask:0xf bank_mask:0x5
v_add_f32_dpp v{SX}, v{SX+1}, v{SX+1} row_shr:4 row_mask:0xf bank_mask:0xa""") + allreduce_g(SX, SX + 1)
    red.append(f"    buffer_store_dword v{SX}, v114, s[8:11], s29 offen sc1")
    l2load = f"    buffer_load_dwordx4 {vr(SX,4)}, v7, s[8:11], s33 offen sc1"
    l2chk = L(f"v_max3_u32 v114, v{SX}, v{SX+1}, v{SX+2}\nv_max_u32 v114, v114, v{SX+3}\nv_cmp_eq_u32 vcc, -1, v114")
    def bcast(t):
        return [(f"    ds_write2_b32 v3, v{t}, v{t+1} offset1:32", 'sw')] + [(f"    ds_read_b128 {vr(RR+4*k,4)}, v9 offset:{64*k}", 'rr') for k in range(4)]
    c0 = -2.0 * math.sqrt(2.0 / math.pi) * LOG2E
    KK = 10
    side = {0: red, 10: [(l2load, 'l2')],
            14: [('need', 'vm', ['l2'])] + recheck("L2", [l2load], l2chk) + row_scalars(SX, 640, 114) + bcast(114)
                + [(f"    ds_read2_b32 {vr(RL,2)}, v8 offset0:0 offset1:16", 'rr'), (f"    ds_read2_b32 {vr(RL+2,2)}, v8 offset0:32 offset1:48", 'rr')]
                + L(f"""v_mov_b32 v{KK}, {f2u(c0)}
v_mov_b32 v{KK+1}, {f2u(c0*0.044715)}
s_lshl_b32 s29, s71, 6
s_add_u32 s29, s29, s78
s_mul_i32 s29, s29, 3072
s_add_u32 s30, s29, {WS_Z1}
s_add_u32 s29, s29, {WS_Z2}
s_lshl_b32 s33, s78, 12
s_add_u32 s33, s33, {FL_L3X}
s_lshl_b32 s31, s71, 8
s_add_u32 s31, s31, s33
v_and_b32 v114, 3, v0
v_cmp_eq_u32 vcc, 1, v114
v_cmp_eq_u32 s[24:25], 2, v114
v_cmp_eq_u32 s[26:27], 3, v114
v_lshlrev_b32 v114, 4, v114
v_lshl_add_u32 v114, v6, 6, v114
v_bfe_u32 v115, v0, 2, 1
v_lshl_add_u32 v114, v115, 3, v114
v_bfe_u32 v115, v0, 3, 1
v_lshl_add_u32 v114, v115, 2, v114""")}
    nxt = NPRE
    for s in range(20):
        b = AB + 10 * (s % RING)
        forced = {k: [] for k in range(12)}
        if s < 19:
            for t, x in enumerate(breads(s + 1)): forced[t].append(x)
            m = movs(s + 1); forced[8] += m[:2]; forced[9] += m[2:]
        for n in range(2 if s < 3 else 1):
            if nxt < 20 and nxt - s < RING:
                x = aload(nxt); nxt += 1
                forced[6 + 4 * n] += x[:1]; forced[7 + 4 * n] += x[1:]
        S.q += side.get(s, [])
        k = 0
        for par in (1, 0):
            af = vr(b + 8, 4) if par else vr(b, 4)
            for t in range(6):
                S.put(('need', 'lg', [('b', s, 5 if s else t)]))
                c = vr(ACC + 8 * t + 4 * par, 4); bf_ = vr(BF[s & 1] + 4 * t, 4); src = c if s else "0"
                a(f"    v_mfma_f32_16x16x32_bf16 {c}, {af}, {bf_}, {src}" if t < 3 else f"    v_mfma_f32_16x16x32_bf16 {c}, {bf_}, {af}, {src}")
                S.gap(8, forced[k]); k += 1
    assert nxt == 20
    S.flush()
    S.put(('need', 'lg', ['rr']))
    a("    ; MARK 11")
    SS, QQ = 12, 20
    for t in range(3):
        prs = [ACC + 8 * t + 2 * k for k in range(4)]
        for k, x in enumerate(prs): a(f"    v_pk_mul_f32 {vr(x,2)}, {vr(x,2)}, {vr(RR+2*k,2)}")
        for k, x in enumerate(prs): a(f"    v_pk_fma_f32 {vr(x,2)}, {vr(RR+8+2*k,2)}, {vr(CS2+2*t,2)}, {vr(x,2)} op_sel_hi:[1,0,1] neg_lo:[1,0,0] neg_hi:[1,0,0]")
        gelu_block(a, prs, 28, KK)
        for k, x in enumerate(prs):
            if t == 0: a(f"    v_pk_mul_f32 {vr(QQ+2*k,2)}, {vr(x,2)}, {vr(x,2)}")
            else:
                a(f"    v_pk_add_f32 {vr(SS+2*k,2)}, {vr(x,2)}, {vr(SS+2*k if t == 2 else ACC+2*k,2)}")
                a(f"    v_pk_fma_f32 {vr(QQ+2*k,2)}, {vr(x,2)}, {vr(x,2)}, {vr(QQ+2*k,2)}")
    for k in range(8): a(f"    v_add_f32_dpp v{SS+k}, v{SS+k}, v{SS+k} row_ror:8 row_mask:0xf bank_mask:0x3")
    for k in range(8): a(f"    v_add_f32_dpp v{SS+k}, v{QQ+k}, v{QQ+k} row_ror:8 row_mask:0xf bank_mask:0xc")
    for k in range(4): a(f"    v_add_f32_dpp v{SS+k}, v{SS+k}, v{SS+k} row_half_mirror row_mask:0xf bank_mask:0x5")
    for k in range(4): a(f"    v_add_f32_dpp v{SS+k}, v{SS+4+k}, v{SS+4+k} row_half_mirror row_mask:0xf bank_mask:0xa")
    for k in range(4): a(f"    v_add_f32_dpp v{SS+k}, v{SS+k}, v{SS+k} quad_perm:[2,3,0,1] row_mask:0xf bank_mask:0xf")
    for k in range(4): a(f"    v_add_f32_dpp v{SS+k}, v{SS+k}, v{SS+k} quad_perm:[1,0,3,2] row_mask:0xf bank_mask:0xf")
    a(f"""    v_cndmask_b32 v{SS}, v{SS}, v{SS+1}, vcc
    v_cndmask_b32 v{SS}, v{SS}, v{SS+2}, s[24:25]
    v_cndmask_b32 v{SS}, v{SS}, v{SS+3}, s[26:27]
    buffer_store_dword v{SS}, v114, s[8:11], s31 offen sc1
    ; MARK 13""")
    for t in range(3):
        prs = [ACC + 8 * (3 + t) + 2 * k for k in range(4)]
        for k, x in enumerate(prs): a(f"    v_pk_mul_f32 {vr(x,2)}, {vr(x,2)}, {vr(RL,2)} op_sel:[0,{k>>1}] op_sel_hi:[1,{k>>1}]")
        for k, x in enumerate(prs): a(f"    v_pk_fma_f32 {vr(x,2)}, {vr(CS1+4*t+2*(k&1),2)}, {vr(RL+2,2)}, {vr(x,2)} op_sel:[0,{k>>1},0] op_sel_hi:[1,{k>>1},1] neg_lo:[1,0,0] neg_hi:[1,0,0]")
        gelu_block(a, prs, 28, KK)
        for k, x in enumerate(prs): a(f"    v_cvt_pk_bf16_f32 v{36+4*t+k}, v{x}, v{x+1}")
    a("    ; MARK 14")
    X3 = 64
    l3 = [f"    buffer_load_dwordx4 {vr(X3+4*j,4)}, v2, s[8:11], s33 offen offset:{1024*j} sc1" for j in range(4)]
    chk = [f"    v_max3_u32 v12, v{X3}, v{X3+1}, v{X3+2}"]
    for k in range(3, 15, 2): chk.append(f"    v_max3_u32 v12, v12, v{X3+k}, v{X3+k+1}")
    chk += [f"    v_max_u32 v12, v12, v{X3+15}", "    v_cmp_eq_u32 vcc, -1, v12"]
    emit(a, l3)
    for t in range(3): a(f"    buffer_store_dwordx4 {vr(36+4*t,4)}, v2, s[8:11], s30 offen offset:{1024*t} sc1")
    a(f"""    s_lshl_b32 s28, s71, 4
    s_add_u32 s28, s28, s70
    s_lshl_b32 s28, s28, 6
    s_add_u32 s28, s28, {FL_F3}
    s_waitcnt vmcnt(3)""")
    emit(a, recheck("L3", l3, chk))
    a("    ; MARK 15")
    for k in range(4): a(f"    v_pk_add_f32 {vr(X3+2*k,2)}, {vr(X3+2*k,2)}, {vr(X3+8+2*k,2)}")
    for k in range(2): a(f"    v_pk_add_f32 {vr(X3+2*k,2)}, {vr(X3+2*k,2)}, {vr(X3+4+2*k,2)}")
    emit(a, row_scalars(X3, 768, 12))
    S.now(bcast(12) + [('need', 'lg', ['rr'])])
    for t in range(3):
        for k in range(4):
            x = ACC + 8 * t + 2 * k
            a(f"    v_pk_fma_f32 {vr(x,2)}, {vr(x,2)}, {vr(RR+2*k,2)}, {vr(RR+8+2*k,2)} neg_lo:[0,0,1] neg_hi:[0,0,1]")
        o = 48 + 4 * t
        for r in range(4): a(f"    v_cvt_pk_bf16_f32 v{o+r}, v{ACC+8*t+r}, v{ACC+8*t+4+r}")
        a(f"    buffer_store_dwordx4 {vr(o,4)}, v2, s[8:11], s29 offen offset:{1024*t} sc1")
    a("    ; MARK 16")

def g2(a):
    NS = 4; ZF = [16, 40]; ACC = 64; Z1R = 112; XB = 124; ZU = 148; BI = 172
    S = Sched(a)
    a(f"""    v_and_b32 v3, 31, v0
    v_lshlrev_b32 v3, 6, v3
    s_lshl_b32 s25, s73, 11
    s_add_u32 s25, s25, {FL_F3}
    s_lshl_b32 s26, s73, 1
    s_add_u32 s26, s26, s76
    s_lshl_b32 s26, s26, 6
    s_lshl_b32 s27, s77, 5
    s_add_u32 s26, s26, s27
    s_mul_i32 s26, s26, 3072
    s_add_u32 s26, s26, {WS_Z2}
    s_mul_i32 s27, s20, 6144
    s_mul_i32 s29, s77, 12288
    v_add_u32 v10, s29, v2
    v_add_u32 v11, 49152, v10
    s_lshl_b32 s34, s72, 1
    s_add_u32 s34, s34, s76
    s_lshl_b32 s30, s34, 5
    s_add_u32 s30, s30, s77
    s_lshl_b32 s30, s30, 1
    v_lshl_add_u32 v12, v5, 2, s30
    v_mov_b32 v{BI}, 0
    global_load_short_d16_hi v{BI}, v12, s[60:61]
    s_add_u32 s29, s27, {NS*24576}
    v_add_u32 v12, s29, v2
    s_xor_b32 s29, s20, 2
    s_mul_i32 s29, s29, 6144
    s_add_u32 s29, s29, {NS*24576}
    v_add_u32 v13, s29, v2
    s_lshl_b32 s30, s34, 1
    s_add_u32 s30, s30, s77
    s_lshl_b32 s30, s30, 3
    s_add_u32 s30, s30, s73
    s_mul_i32 s30, s30, 3072
    s_add_u32 s30, s30, {WS_P}
    s_lshl_b32 s31, s73, 7
    s_add_u32 s31, s31, s34
    s_mul_i32 s31, s31, 3072
    s_lshl_b32 s32, s77, 3
    s_add_u32 s31, s31, s32
    s_add_u32 s31, s31, {WS_Z1}
    s_add_u32 s32, s31, {64*3072}
    v_min_u32 v14, 35, v0
    v_mul_u32_u24 v15, 43, v14
    v_lshrrev_b32 v15, 8, v15            ; l / 6
    v_mul_u32_u24 v15, {6144 - 6*128}, v15
    v_lshl_add_u32 v14, v14, 7, v15
    s_and_b32 s33, s72, 7
    s_mul_i32 s33, s33, 768
    s_add_u32 s33, s33, s26
    s_add_u32 s33, s33, {4*6144}
    s_add_u32 s24, s33, {6*6144}""")
    flag_store(a, "L_f3", 28)
    a(f"""    ; MARK 17
    v_mov_b32 v{BI+1}, v{BI}
    v_mov_b32 v{BI+2}, v{BI}
    v_mov_b32 v{BI+3}, v{BI}
    s_cmp_lg_u32 s20, 0
    s_cbranch_scc1 S3_d""")
    spin(a, "S3", ["    buffer_load_dword v9, v3, s[8:11], s25 offen sc1"], ["    v_cmp_eq_u32 vcc, -1, v9"])
    a("    s_barrier\n    ; MARK 18")
    def dma(st, h):
        pre = [f"    s_add_u32 m0, s27, {(st % NS) * 24576 + 3072 * h}"] + (["    s_add_u32 s26, s26, 3072"] if (st or h) else [])
        return pre, [(f"    buffer_load_dwordx4 v2, s[8:11], s26 offen offset:{1024*k} sc1 lds", st) for k in range(3)]
    def zreads(st, h):
        sl = st % NS
        return [(f"    ds_read_b128 {vr(ZF[h]+4*ft,4)}, v{10 + (sl >> 1)} offset:{(sl & 1)*24576 + (ft//3)*6144 + h*3072 + (ft%3)*1024}", (st, h, ft)) for ft in range(6)]
    for st in range(NS):
        for h in range(2):
            if st == NS - 1 and h: continue
            pre, d = dma(st, h); S.now(pre + d)
    if O['t2']: S.put("    buffer_load_dword v15, v14, s[8:11], s33 offen sc1")
    S.put(('need', 'vm', [0]))
    a("    s_barrier\n    ; MARK 19")
    S.now(zreads(0, 0))
    for st in range(16):
        for h in range(2):
            forced = {k: [] for k in range(12)}
            rd = zreads(st, 1) if h == 0 else (zreads(st + 1, 0) if st < 15 else [])
            for k, x in enumerate(rd): forced[k].append(x)
            ds, dh = (st + NS - 1, 1) if h == 0 else (st + NS, 0)
            if ds < 16:
                pre, d = dma(ds, dh)
                forced[1] += pre
                for k in range(3): forced[2 + 4 * k].append(d[k])
            if h == 0 and st < 15: forced[11] += [('need', 'vm', [st + 1]), ('need', 'lg', [(st, 1, 5)]), "    s_barrier"]
            if (st, h) == (O['t2'] + 1, 0) and O['t2']: forced[8].append("    buffer_load_dword v15, v14, s[8:11], s24 offen sc1")
            if (st, h) == (13, 0):
                S.q += [(f"    buffer_load_dwordx2 {vr(Z1R+2*ft,2)}, v2, s[8:11], s{31+ft//3} offen offset:{1024*(ft%3)} sc1", 'z1') for ft in range(6)]
            if (st, h) == (15, 0):
                S.q += [('need', 'vm', ['z1'])]
                for r in range(12): S.q += [f"    v_lshlrev_b32 v{ZU+2*r}, 16, v{Z1R+r}", f"    v_and_b32 v{ZU+2*r+1}, 0xffff0000, v{Z1R+r}"]
            last = (st, h) == (15, 1)
            order = [(ft, sl) for sl in (1, 0) for ft in range(6)] if last else [(ft, sl) for ft in range(6) for sl in range(2)]
            if last:
                for ft in range(6): forced[6 + ft].append(f"    ds_write_b128 v12, {vr(ACC+24+4*ft,4)} offset:{1024*ft}")
            for k, (ft, sl) in enumerate(order):
                S.put(('need', 'lg', [(st, h, ft if (st, h) == (0, 0) else 5)]))
                c = vr(ACC + 24 * sl + 4 * ft, 4)
                src = c if (st or h) else (vr(BI, 4) if sl == 0 else "0")
                a(f"    v_mfma_f32_16x16x32_bf16 {c}, {vr(ZF[h]+4*ft,4)}, {ar(8*(2*st+h)+4*sl,4)}, {src}")
                S.gap(8, forced[k])
    S.flush()
    a("    ; MARK 20\n    s_waitcnt lgkmcnt(0)\n    s_barrier")
    for ft in range(6): a(f"    ds_read_b128 {vr(XB+4*ft,4)}, v13 offset:{1024*ft}")
    a(f"""    s_lshl_b32 s28, s72, 3
    s_add_u32 s28, s28, s73
    s_lshl_b32 s28, s28, 4
    s_add_u32 s28, s28, {FL_F4}""")
    for ft in range(6):
        a(f"    s_waitcnt lgkmcnt({5-ft})")
        c = ACC + 4 * ft
        for h in range(2): a(f"    v_pk_add_f32 {vr(c+2*h,2)}, {vr(c+2*h,2)}, {vr(XB+4*ft+2*h,2)}")
        for h in range(2): a(f"    v_pk_mul_f32 {vr(c+2*h,2)}, {vr(c+2*h,2)}, {vr(ZU+4*ft+2*h,2)}")
        for h in range(2): a(f"    v_cvt_pk_bf16_f32 v{40+2*ft+h}, v{c+2*h}, v{c+2*h+1}")
        if ft & 1: a(f"    buffer_store_dwordx4 {vr(40+2*(ft-1),4)}, v2, s[8:11], s30 offen offset:{1024*(ft>>1)} sc1")
    a("    ; MARK 21")

def g3(a):
    PF, ACC, WF, HR = 16, 112, [132, 152, 172], 192
    S = Sched(a)
    emit(a, srd(16, 64, 2048 * 1280))
    a(f"""    s_mul_i32 s27, s73, 122880
    s_mul_i32 s29, s20, 30720
    s_add_u32 s27, s27, s29
    s_add_u32 s27, s27, {WS_WOUT}
    s_mov_b32 m0, s29
    s_lshl_b32 s25, s72, 2
    s_add_u32 s25, s25, s20            ; t tile
    s_lshr_b32 s30, s25, 1
    s_lshl_b32 s30, s30, 5
    s_and_b32 s31, s25, 1
    s_add_u32 s30, s30, s31
    s_lshl_b32 s33, s30, 3
    s_mul_i32 s32, s73, {20*16384}
    s_add_u32 s33, s33, s32
    v_lshlrev_b32 v12, 4, v5
    v_lshl_add_u32 v13, v6, 14, v12
    v_lshl_add_u32 v12, v6, 15, v12
    v_and_b32 v3, 7, v0
    v_lshlrev_b32 v3, 4, v3
    s_lshl_b32 s24, s72, 7
    s_add_u32 s24, s24, {FL_F4}
    s_mul_i32 s26, s25, 24576
    s_add_u32 s26, s26, {WS_P}
    v_add_u32 v4, 61440, v2
    s_mul_i32 s31, s30, 1280
    s_mul_i32 s32, s73, 160
    s_add_u32 s31, s31, s32
    v_mul_u32_u24 v10, 2560, v5
    v_lshl_add_u32 v11, v6, 3, v10
    v_lshl_add_u32 v10, v6, 4, v10
    v_min_u32 v14, 23, v0
    v_lshlrev_b32 v14, 9, v14
    s_and_b32 s34, s73, 3
    s_lshl_b32 s34, s34, 7
    s_add_u32 s34, s34, s26
    s_add_u32 s34, s34, 12288""")
    flag_store(a, "L_f4", 28)
    a("    ; MARK 22")
    for t in range(5):
        qd = 8 * (t >> 1) + (t & 1)
        a(f"    s_add_u32 s32, s33, {WS_H + qd*16384}")
        a(f"    buffer_load_dwordx2 {vr(HR+2*t,2)}, v{12 if t < 4 else 13}, s[8:11], s32 offen sc1")
    dma_linear(a, 27, 30)
    a("    s_cmp_lg_u32 s20, 0\n    s_cbranch_scc1 S4_d")
    spin(a, "S4", ["    buffer_load_dword v9, v3, s[8:11], s24 offen sc1"], ["    v_cmp_eq_u32 vcc, -1, v9"])
    a("    s_waitcnt vmcnt(0)\n    s_barrier\n    ; MARK 23")
    def pl(s):
        return [(f"    buffer_load_dwordx4 {vr(PF+4*s,4)}, v2, s[8:11], s26 offen offset:{1024*(s&3)} sc1", s)] + (["    s_add_u32 s26, s26, 4096"] if s & 3 == 3 else [])
    NPRE = 12
    for s in range(NPRE):
        S.now(pl(s))
        if s == 3 and O['t3']: S.put("    buffer_load_dword v15, v14, s[8:11], s34 offen sc1")
    def wreads(s): return [(f"    ds_read_b128 {vr(WF[s%3]+4*t,4)}, v{2 if s < 12 else 4} offset:{(s%12)*5120+1024*t}", s) for t in range(5)]
    S.now(wreads(0) + wreads(1))
    for t in range(5):
        for h in range(2):
            r = HR + 2 * t + h
            a(f"    v_lshlrev_b32 v{ACC+4*t+2*h}, 16, v{r}\n    v_and_b32 v{ACC+4*t+2*h+1}, 0xffff0000, v{r}")
    for s in range(24):
        S.now([('need', 'vm', [s]), ('need', 'lg', [s])])
        rd = wreads(s + 2) if s < 22 else []
        ex = pl(s + NPRE) if s + NPRE < 24 else []
        for t in range(5):
            c = vr(ACC + 4 * t, 4)
            a(f"    v_mfma_f32_16x16x32_bf16 {c}, {vr(WF[s%3]+4*t,4)}, {vr(PF+4*s,4)}, {c}")
            S.gap(8, rd[t:t+1] + ex[t-1:t])
    a("    ; MARK 24")
    for t in range(5):
        for h in range(2): a(f"    v_cvt_pk_bf16_f32 v{20+2*t+h}, v{ACC+4*t+2*h}, v{ACC+4*t+2*h+1}")
    f = {0: "", 1: "sc1", 2: "nt"}[O['outsc1']]
    a(f"""    buffer_store_dwordx4 v[20:23], v10, s[16:19], s31 offen {f}
    buffer_store_dwordx4 v[24:27], v10, s[16:19], s31 offen offset:64 {f}
    buffer_store_dwordx2 v[28:29], v11, s[16:19], s31 offen offset:128 {f}
L_end:
    s_endpgm""")

def build(**kw):
    O.update(kw); TAILS.clear()
    a = Asm()
    a.begin_kernel(NAME + "_kernel", 256, 256, 163840, 512, accum=256)
    a("""    s_load_dwordx16 s[36:51], s[0:1], 0
    s_load_dwordx16 s[52:67], s[0:1], 64
    s_load_dwordx2 s[68:69], s[0:1], 128
    s_cmp_ge_u32 s2, 160
    s_cbranch_scc1 L_help""")
    conv_role(a); g1(a); g2(a); g3(a); helper_role(a)
    for t in TAILS: emit(a, t)
    a.end_kernel()
    a.lines = hazard.fix(a.lines, verbose=True)
    a.lines = align.fix(a.lines, verbose=True)
    a(".p2align 8\n.fill 2048, 4, 0xbf800000")
    return a.text("S4 conv + gMLP block in one persistent launch; written with the author's own generator script", single=True)
if __name__ == "__main__":
    out = sys.argv[1] if len(sys.argv) > 1 else "v3.s"
    kw = {k: int(v) for k, v in (x.split("=") for x in sys.argv[2:])}
    open(out, "w").write(build(**kw))
```

```python
import sys, math, struct
from asmgen import Asm
import hazard, align
NAME = "sequential_preLN__ssm_conv_s4__mixer_gmlp__prompt"
O = dict(kgmarks=0, burst=12, outsc1=0, hsleep=12, x0=2, nwo=8, hdelay=0, xt=1, xp=1, g1marks=0, g2marks=0, npre=4, wa=12, cvmarks=0, xs_at=3, l2_at=11, ct=1)

WS_H, WS_WIN, WS_WOUT, WS_CS, WS_ST1 = 0x0, 0x280000, 0x460000, 0x550000, 0x554000
WS_FL = 0x560000
FL_L3X, FL_L2X, FL_F2, FL_F4, FL_F3, FL_F2P, FL_F1B = [WS_FL + x for x in (0, 0x40000, 0x50000, 0x51000, 0x52000, 0x56000, 0x5C000)]
WS_Z2, WS_P = 0x600000, 0x900000
WS_SIZE = 0xC00000
LOG2E = 1.4426950408889634
def f2u(x): return "0x%08x" % struct.unpack("<I", struct.pack("<f", x))[0]
def vr(b, n): return f"v[{b}:{b+n-1}]" if n > 1 else f"v{b}"
def ar(b, n): return f"a[{b}:{b+n-1}]"
def L(s): return ["    " + x.strip() for x in s.strip().split("\n") if x.strip()]
def emit(a, xs):
    for x in xs: a(x)
def srd(r, lo, size):
    return L(f"s_mov_b32 s{r}, s{lo}\ns_and_b32 s{r+1}, s{lo+1}, 0xffff\ns_mov_b32 s{r+2}, {hex(size)}\ns_mov_b32 s{r+3}, 0x20000")
def cmul(d, x, y):
    return [f"    v_pk_mul_f32 {vr(d,2)}, {vr(x,2)}, {vr(y,2)} op_sel:[0,0] op_sel_hi:[0,1]",
            f"    v_pk_fma_f32 {vr(d,2)}, {vr(x,2)}, {vr(y,2)}, {vr(d,2)} op_sel:[1,1,0] op_sel_hi:[1,0,1] neg_lo:[0,1,0]"]
def rbf(d, s): return [f"    v_cvt_pk_bf16_f32 v{d}, v{s}, v{s}", f"    v_lshlrev_b32 v{d}, 16, v{d}"]
def ln_scalars(vs, vq, n, vm, vrs, t):
    return (L(f"v_mul_f32 v{vm}, {f2u(1.0/n)}, v{vs}\nv_mul_f32 v{t}, {f2u(1.0/n)}, v{vq}\nv_fma_f32 v{t}, -v{vm}, v{vm}, v{t}\nv_max_f32 v{t}, 0, v{t}")
            + rbf(t, t) + L(f"v_add_f32 v{t}, {f2u(1e-5)}, v{t}") + rbf(t, t) + L(f"v_sqrt_f32 v{t}, v{t}") + rbf(vm, vm) + rbf(t, t)
            + L(f"v_rcp_f32 v{vrs}, v{t}\ns_nop 0\nv_mul_f32 v{vm}, v{vm}, v{vrs}"))
def allreduce_g(v, t):
    return L(f"v_mov_b32 v{t}, v{v}\nv_permlane16_swap_b32 v{v}, v{t}\nv_add_f32 v{v}, v{v}, v{t}\nv_mov_b32 v{t}, v{v}\nv_permlane32_swap_b32 v{v}, v{t}\nv_add_f32 v{v}, v{v}, v{t}")
def row_scalars(X, n, t):
    return (L(f"""v_permlane16_swap_b32 v{X}, v{X+2}
v_permlane16_swap_b32 v{X+1}, v{X+3}
v_add_f32 v{X}, v{X}, v{X+2}
v_add_f32 v{X+1}, v{X+1}, v{X+3}
v_mov_b32 v{X+2}, v{X}
v_mov_b32 v{X+3}, v{X+1}
s_nop 0
v_permlane32_swap_b32 v{X}, v{X+2}
v_permlane32_swap_b32 v{X+1}, v{X+3}
v_add_f32 v{X}, v{X}, v{X+2}
v_add_f32 v{X+1}, v{X+1}, v{X+3}""") + ln_scalars(X, X + 1, n, t + 1, t, X + 2))
def gelu_block(a, regs, T, KK, hook=lambda: None):
    ts = [T + 2 * n for n in range(len(regs))]
    for x, t in zip(regs, ts): a(f"    v_pk_mul_f32 {vr(t,2)}, {vr(x,2)}, {vr(x,2)}")
    for x, t in zip(regs, ts): a(f"    v_pk_fma_f32 {vr(t,2)}, {vr(t,2)}, {vr(KK,2)}, {vr(KK,2)} op_sel:[0,1,0] op_sel_hi:[1,1,0]")
    for x, t in zip(regs, ts): a(f"    v_pk_mul_f32 {vr(t,2)}, {vr(t,2)}, {vr(x,2)}")
    hook()
    for x, t in zip(regs, ts): a(f"    v_exp_f32 v{t}, v{t}\n    v_exp_f32 v{t+1}, v{t+1}")
    hook()
    for x, t in zip(regs, ts): a(f"    v_pk_add_f32 {vr(t,2)}, {vr(t,2)}, 1.0 op_sel_hi:[1,0]")
    for x, t in zip(regs, ts): a(f"    v_rcp_f32 v{t}, v{t}\n    v_rcp_f32 v{t+1}, v{t+1}")
    hook()
    for x, t in zip(regs, ts): a(f"    v_pk_mul_f32 {vr(x,2)}, {vr(x,2)}, {vr(t,2)}")

TAILS = []
def spin(a, name, loads, check, sleep=1):
    a(f"    s_movk_i32 s35, 0x7fff\n{name}_l:")
    emit(a, loads); a("    s_waitcnt vmcnt(0)"); emit(a, check)
    a(f"    s_cbranch_vccz {name}_d\n    s_sub_u32 s35, s35, 1\n    s_cbranch_scc1 {name}_d\n    s_sleep {sleep}\n    s_branch {name}_l\n{name}_d:")
def recheck(name, loads, check, sleep=1):
    TAILS.append([f"{name}_r:", "    s_movk_i32 s35, 0x7fff", f"{name}_l:", f"    s_sleep {sleep}"] + loads + ["    s_waitcnt vmcnt(0)"] + check +
                 L(f"s_cbranch_vccz {name}_d\ns_sub_u32 s35, s35, 1\ns_cbranch_scc0 {name}_l\ns_branch {name}_d"))
    return check + [f"    s_cbranch_vccnz {name}_r\n{name}_d:"]

class Cnt:
    def __init__(s, name, mx): s.name, s.mx, s.q = name, mx, []
    def issue(s, tag): s.q.append(tag)
    def need(s, *tags):
        idx = max((i for i, t in enumerate(s.q) if t in tags), default=-1)
        if idx < 0: return []
        n = min(len(s.q) - 1 - idx, s.mx)
        s.q = s.q[len(s.q) - n:] if n else []
        return [f"    s_waitcnt {s.name}({n})"]
class Sched:
    def __init__(s, a): s.a = a; s.vm = Cnt("vmcnt", 63); s.lg = Cnt("lgkmcnt", 15); s.q = []
    def cost(s, x):
        if isinstance(x, tuple):
            if x[0] == 'need': return 1
            x = x[0]
        m = x.split()[0]
        if m.startswith(hazard.TRANS) or m.startswith("v_permlane"): return 8
        if m.startswith("ds_write_b128"): return 20
        if m.startswith("ds_write2"): return 12
        if m.startswith("s_"): return 2
        return 4
    def put(s, x):
        if isinstance(x, tuple) and x[0] == 'need':
            emit(s.a, (s.vm if x[1] == 'vm' else s.lg).need(*x[2])); return
        tag = None
        if isinstance(x, tuple): x, tag = x
        m = x.split()[0]
        if m.startswith("ds_"): s.lg.issue(tag)
        elif m.startswith(("buffer_", "global_")): s.vm.issue(tag)
        s.a(x)
    def now(s, xs):
        for x in xs: s.put(x)
    def gap(s, budget=8, forced=()):
        for x in forced:
            budget -= s.cost(x); s.put(x)
        first = not forced
        while s.q and (s.cost(s.q[0]) <= budget or first):
            budget -= s.cost(s.q[0]); s.put(s.q.pop(0)); first = False
    def flush(s):
        while s.q: s.put(s.q.pop(0))

RS = 272; TW = 64 * RS
YO = 8448
L_U = 4 * TW
L_W = L_U + 4 * 4608
L_R = 98304
L_S = 159744
VW, VWR, WV = 8, 12, 94
def win_addr(s):
    if s < 4: return TW * s
    if s < 7: return L_U + 6144 * (s - 4)
    if s < 10: return TW * (s - 7) + YO
    return L_R + 6144 * (s - 10)
def lds_op(addr, bases=(2, 3, 4)):
    return f"v{bases[addr >> 16]} offset:{addr & 0xffff}"
def lanes():
    return L("""v_mov_b32 v1, v0
v_lshrrev_b32 v4, 6, v0
v_and_b32 v0, 63, v0
v_readfirstlane_b32 s20, v4
s_and_b32 s21, s2, 7
s_lshr_b32 s22, s2, 3""")
def stage_base(stride, base):
    return L(f"""s_mul_i32 s75, s20, {stride}
s_add_u32 s75, s75, {base}
v_lshrrev_b32 v{VWR}, 1, v5
v_xor_b32 v{VWR}, v{VWR}, v6
v_lshlrev_b32 v{VWR}, 4, v{VWR}
v_lshl_add_u32 v{VWR}, v5, 7, v{VWR}
v_add_u32 v{VWR}, s75, v{VWR}
v_xor_b32 v{VWR+1}, 64, v{VWR}""")
def common_ids(stride, base):
    return L(f"""v_lshlrev_b32 v2, 4, v0
v_and_b32 v5, 15, v0
v_lshrrev_b32 v6, 4, v0
s_lshr_b32 s79, s21, 1
s_and_b32 s80, s21, 1
s_and_b32 s81, s22, 7
s_lshr_b32 s82, s22, 3
s_lshl_b32 s70, s79, 2
s_add_u32 s70, s70, s82
s_lshl_b32 s71, s80, 3
s_add_u32 s71, s71, s81
s_lshl_b32 s72, s70, 1
s_and_b32 s79, s71, 1
s_add_u32 s72, s72, s79
s_lshr_b32 s73, s71, 1
s_lshl_b32 s78, s70, 2
s_add_u32 s78, s78, s20
s_lshl_b32 s74, s78, 17
v_lshrrev_b32 v{VW}, 3, v0
v_lshrrev_b32 v{VW+1}, 1, v{VW}
v_and_b32 v{VW+2}, 7, v0
v_xor_b32 v{VW+2}, v{VW+2}, v{VW+1}
v_lshlrev_b32 v{VW}, 13, v{VW}
v_lshl_add_u32 v{VW}, v{VW+2}, 4, v{VW}
v_xor_b32 v{VW+1}, 64, v{VW}
v_add_u32 v{VW+2}, 4096-2048, v{VW}
v_add_u32 v{VW+3}, 65536+4096-3072, v{VW+1}
v_add_u32 v{VW+1}, 65536-1024, v{VW+1}""") + stage_base(stride, base) + srd(8, 68, WS_SIZE) + srd(12, 58, 2048 * 4096)
def wdma(u, slot):
    return ([f"    s_add_u32 m0, s75, {slot * 4096}", f"    s_add_u32 s76, s74, {128 * u}"],
            [(f"    buffer_load_dwordx4 v{VW+q}, s[12:15], s76 offen offset:{1024*q} lds", ('w', u)) for q in range(4)])
def wreg(u, k, par):
    o = 8 * k + 4 * par
    return ar(16 * (u - 16) + o, 4) if u >= 16 else vr(WV + 16 * (u % 10) + o, 4)
def wread(u, slot):
    return [('need', 'vm', [('w', u)])] + [(f"    ds_read_b128 {wreg(u,k,p)}, v{VWR+k} offset:{slot*4096+2048*p}", ('wr', u)) for k in range(2) for p in range(2)]
def step_dma(S, tag):
    S.now([(f"    buffer_load_dwordx4 v2, s[8:11], s27 offen offset:{1024*q} sc1 lds", tag) for q in range(4)])
    S.now(L("s_add_u32 m0, m0, 4096\ns_add_u32 s27, s27, 4096"))
    S.now([(f"    buffer_load_dwordx4 v2, s[8:11], s27 offen offset:{1024*q} sc1 lds", tag) for q in range(2)])
def win_early(S):
    S.now(L(f"""s_mul_i32 s26, s71, 122880
s_add_u32 s26, s26, {WS_WIN}
s_mul_i32 s25, s20, 6144
s_add_u32 s27, s26, s25
s_mul_i32 m0, s20, {TW}"""))
    step_dma(S, 'we')
    S.now(L(f"""s_add_u32 s24, s25, {L_U}
s_add_u32 s25, s25, {4*6144}
s_cmp_eq_u32 s20, 3
s_cselect_b32 m0, {win_addr(19)}, s24
s_cselect_b32 s25, {19*6144}, s25
s_add_u32 s27, s26, s25"""))
    step_dma(S, 'we')

def conv_role(a):
    P0, P2, DT, VPL, CUR = 16, 22, 28, 29, 30
    Z1, Z8, Z256, CB, T = 36, 38, 40, 42, 44
    CV, FR, KA, XR, ST, XF = 86, 100, 164, 180, 196, 212
    AD, VY, VYR, VU, VT, VP = 244, 249, 250, 251, 252, 3
    S = Sched(a)
    a(f"""L_conv:
    s_mul_i32 s23, s21, 20
    s_add_u32 s23, s23, s22            ; quad
    s_lshl_b32 s24, s23, 2
    s_add_u32 s24, s24, s20            ; channel
    s_mul_i32 s25, s24, 384
    v_lshl_add_u32 v7, v0, 1, s25
    v_lshl_add_u32 v14, v0, 2, s25
    s_lshl_b32 s25, s24, 1
    v_mov_b32 v15, s25
    v_mov_b32 v{DT}, 0""")
    for k in range(6): a(f"    v_mov_b32 v{P2+k}, 0")
    a(f"""    s_lshl_b32 s25, s23, 3
    v_mul_u32_u24 v4, 2560, v1
    v_add_u32 v4, s25, v4
    s_waitcnt lgkmcnt(0)""")
    S.put((f"    global_load_short_d16_hi v{DT}, v15, s[50:51]", 'p2'))
    for k in range(6): S.put((f"    global_load_short_d16_hi v{P2+k}, v7, s[{38+2*k}:{39+2*k}] offset:256", 'p2'))
    for k in range(6): S.put((f"    global_load_dword v{P0+k}, v14, s[{38+2*k}:{39+2*k}]", 'p0'))
    a("    s_load_dwordx2 s[30:31], s[52:53], s25")
    if O['xt']:
        a("""    s_mul_i32 s26, s22, 103
    v_lshrrev_b32 v48, 1, v1
    v_add_u32 v48, s26, v48
    v_min_u32 v48, 2047, v48
    v_mul_u32_u24 v48, 1280, v48
    v_and_b32 v49, 1, v1
    v_mul_u32_u24 v49, 156, v49
    s_mul_i32 s26, s21, 160
    v_add3_u32 v48, v48, v49, s26""")
    a("    s_barrier")
    if O['xt']: S.put("    global_load_dword v253, v48, s[36:37]")
    xq = []
    for j in range(4):
        xq += [(f"    global_load_dwordx2 {vr(XR+4*j,2)}, v4, s[36:37]", 'x'), (f"    global_load_dwordx2 {vr(XR+4*j+2,2)}, v4, s[36:37] offset:1280", 'x'),
               f"    v_add_u32 v4, {512*1280}, v4" if j < 3 else "    v_lshlrev_b32 v4, 4, v1"]
    def xnext(n):
        for _ in range(n):
            if xq: S.put(xq.pop(0))
            if xq and isinstance(xq[0], str): S.put(xq.pop(0))
    xnext(1)
    emit(a, common_ids(16384, L_W))
    a(f"""    s_mul_i32 s26, s20, {TW}
    s_mov_b32 m0, s26
    v_and_b32 v7, 31, v0
    v_mul_u32_u24 v7, {RS}, v7
    v_lshrrev_b32 v14, 5, v0
    v_lshl_add_u32 v7, v14, 4, v7
    v_add_u32 v7, s26, v7
    v_mov_b32 v48, 0x3f80
    v_mov_b32 v50, 0
    v_mov_b32 v51, 0
    s_mul_i32 s27, s20, 4608
    s_add_u32 s27, s27, {L_U}
    v_lshl_add_u32 v52, v0, 3, s27
    ds_write_addtid_b32 v48 offset:{32*RS}
    ds_write_b64 v52, v[50:51]
    v_add_u32 v14, 1, v5
    v_lshrrev_b32 v14, 1, v14
    v_lshlrev_b32 v14, 2, v14
    v_lshl_add_u32 v14, v6, 4, v14
    v_and_b32 v15, 1, v5
    v_mul_u32_u24 v15, 4160, v15
    v_add_u32 v14, v14, v15
    s_add_u32 s28, s26, {4160 + 4112 - 512 - 448}
    v_sub_u32 v{AD}, s28, v14
    v_subrev_u32 v{AD+1}, 1024, v{AD}
    v_subrev_u32 v{AD+2}, 2048, v{AD}
    v_subrev_u32 v{AD+3}, 3072, v{AD}
    v_lshlrev_b32 v14, 5, v5
    v_lshlrev_b32 v15, 4, v6
    v_sub_u32 v14, v14, v15
    s_add_u32 s28, s27, {512 + 16 - 448}
    v_add_u32 v{AD+4}, s28, v14
    v_lshlrev_b32 v{VU}, 2, v1
    v_add_u32 v{VU}, {L_U + 512}, v{VU}
    v_bfe_u32 v14, v5, 1, 2
    v_xor_b32 v14, v14, v6
    v_lshlrev_b32 v14, 4, v14
    v_lshl_add_u32 v14, v5, 6, v14
    s_add_u32 s28, s26, {YO}
    v_add_u32 v{VY}, s28, v14
    v_bfe_u32 v14, v1, 4, 2
    v_lshlrev_b32 v14, 4, v14
    v_lshlrev_b32 v15, 3, v1
    v_xor_b32 v14, v14, v15
    v_add_u32 v{VYR}, {YO}, v14
    s_add_u32 s28, s26, 1008
    v_sub_u32 v{VT}, s28, v2
    v_and_b32 v{VP}, 3, v0
    v_lshlrev_b32 v{VP}, 6, v{VP}
    v_mov_b32 v{VPL}, 16
    s_lshl_b32 s28, s22, 8
    v_add_u32 v14, s28, v1
    v_mul_u32_u24 v15, 3277, v14
    v_lshrrev_b32 v15, 16, v15
    v_mul_u32_u24 v15, {4096 - 20*128}, v15
    v_lshl_add_u32 v254, v14, 7, v15
    s_lshl_b32 s34, s21, 20
    s_add_u32 s34, s34, {24*128}""")
    xnext(O['x0'] - 1)
    a(f"""    s_waitcnt lgkmcnt(0)
    s_and_b32 s33, s31, 0xffff0000
    s_lshl_b32 s32, s31, 16
    s_and_b32 s31, s30, 0xffff0000
    s_lshl_b32 s30, s30, 16""")
    S.put(('need', 'vm', ['p2']))
    a(f"    ; MARK 0\n    v_mul_f32 v{DT}, {f2u(LOG2E)}, v{DT}\n    v_exp_f32 v{DT}, v{DT}")
    emit(a, rbf(DT, DT))
    def setup(c):
        R = []
        if c == 0: p = [P2 + k for k in range(6)]
        else:
            p = [CUR + k for k in range(6)]
            for k in range(6): R.append(f"    v_lshlrev_b32 v{CUR+k}, 16, v{P0+k}" if c == 1 else f"    v_and_b32 v{CUR+k}, 0xffff0000, v{P0+k}")
        R += L(f"v_mul_f32 v{T}, v{DT}, v{p[0]}\nv_mul_f32 v{T+1}, v{DT}, v{p[1]}\nv_mul_f32 v{T}, {f2u(LOG2E)}, v{T}\nv_mul_f32 v{T+1}, 0.15915494, v{T+1}")
        ex = L(f"""v_mul_f32 v{CB}, v{p[2]}, v{p[4]}
v_mul_f32 v{CB+1}, v{p[2]}, v{p[5]}
v_fma_f32 v{CB}, -v{p[3]}, v{p[5]}, v{CB}
v_fma_f32 v{CB+1}, v{p[3]}, v{p[4]}, v{CB+1}
v_mul_f32 v{CB}, v{CB}, v{DT}
v_mul_f32 v{CB+1}, v{CB+1}, v{DT}""")
        for z, e in ((Z8, 8), (Z1, 1), (Z256, 256)):
            if e == 1: R += L(f"v_fract_f32 v{T+3}, v{T+1}\nv_exp_f32 v{T+2}, v{T}")
            else: R += L(f"v_mul_f32 v{T+3}, {f2u(float(e))}, v{T+1}\nv_mul_f32 v{T+2}, {f2u(float(e))}, v{T}\nv_fract_f32 v{T+3}, v{T+3}\nv_exp_f32 v{T+2}, v{T+2}")
            R += L(f"v_cos_f32 v{z}, v{T+3}\nv_sin_f32 v{z+1}, v{T+3}") + [ex.pop(0), ex.pop(0)] + L(f"v_mul_f32 v{z}, v{z}, v{T+2}\nv_mul_f32 v{z+1}, v{z+1}, v{T+2}")
        return R
    row = lambda rho, h: 8 * (rho >> 2) + 4 * h + (rho & 3)
    pend = []; nst = [0]; nfl = [0]
    def flushw():
        S.now(pend); pend.clear(); nst[0] = 0; nfl[0] += 1
        if nfl[0] % 2 == O['xp'] % 2: xnext(1)
    def val(ops, reg, rows, neg):
        t = CV + nst[0]; nst[0] += 1
        S.now(ops + [f"    v_cvt_pk_bf16_f32 v{t}, v{reg}, {'-' if neg else ''}v{reg+1}"])
        for r in rows: pend.append(f"    ds_write_addtid_b32 v{t} offset:{r*RS}")
        if len(pend) >= O['burst'] or nst[0] == 14: flushw()
    def chainB():
        val([], Z8, [33], False); prev = Z8
        for j in range(2, 32):
            d = 48 + 2 * (j & 1); val(cmul(d, prev, Z8), d, [32 + j], False); prev = d
        flushw()
    def chainA():
        val([], CB, [row(0, 0)], True); prev = CB; B0 = {0: CB}
        for k in range(1, 9):
            d = 52 + 2 * k; val(cmul(d, prev, Z1), d, [row(k, 0)], True); prev = d; B0[k] = d
        pat = [0, 0, 2, 4, 4, 4, 6, 8, 8]; cur = {}
        for n, off in enumerate([0, 2, 4, 6, 8]):
            d = 70 + 2 * n; cur[off] = d
            val(cmul(d, B0[off], Z256), d, [row(r, 1) for r in range(9) if pat[r] == off], True)
        alt = {0: 80, 4: 82, 8: 84}
        for (blk, offs) in ((2, [0, 4, 8]), (3, [0, 4, 8]), (4, [0, 8]), (5, [0, 8]), (6, [0, 8]), (7, [0, 8])):
            base = {2: 9, 3: 9, 4: 12, 5: 12, 6: 14, 7: 14}[blk]
            for n, off in enumerate(offs):
                d = alt[off]; alt[off] = cur[off]
                val(cmul(d, cur[off], Z256), d, [row(base + n, blk & 1)], True); cur[off] = d
        flushw()
    emit(a, setup(0))
    poll1 = f"    global_load_dword v{VPL}, v{VP}, s[66:67] sc1"
    unpack = []
    for j in range(4):
        for par in range(2):
            for h in range(2):
                r = XR + 4 * j + 2 * par + h
                unpack += [f"    v_lshlrev_b32 v{XF+8*j+4*h+par}, 16, v{r}", f"    v_and_b32 v{XF+8*j+4*h+2+par}, 0xffff0000, v{r}"]
    for c in range(3):
        chainB()
        S.now([(f"    ds_read_b128 {vr(FR+8*kk+4,4)}, v7 offset:{32*kk+32*RS}", ('b', kk)) for kk in range(8)])
        if c == 2:
            assert not xq
            a(f"    s_cmp_lg_u32 s20, 0\n    s_cbranch_scc1 L_np1\n{poll1}\nL_np1:")
        chainA()
        S.now([(f"    ds_read_b128 {vr(FR+8*kk,4)}, v7 offset:{32*kk}", ('a', kk)) for kk in range(8)])
        if O['kgmarks']: a(f"    ; MARK {25 + c}")
        if c == 0: S.put(('need', 'vm', ['p0']))
        if c < 2: S.q = setup(c + 1)
        else:
            a("    s_waitcnt vmcnt(0)"); S.vm.q = []
            if O['kgmarks']: a("    ; MARK 12")
            emit(a, recheck("S1", [poll1], [f"    v_cmp_gt_u32 vcc, 16, v{VPL}"]))
            a(f"    s_barrier\n    ; MARK 1\n    s_mov_b32 s28, {WS_ST1}")
            for j in range(4):
                S.put((f"    buffer_load_dwordx4 {vr(ST+4*j,4)}, v4, s[8:11], s28 offen sc1", ('st', j)))
                if j < 3: a("    s_add_u32 s28, s28, 4096")
            S.q = unpack[:20] + ["    buffer_load_dword v253, v254, s[12:15], s34 offen"] * O['ct'] + unpack[20:] + L("v_and_b32 v14, 1, v0\nv_cmp_eq_u32 vcc, 1, v14\nv_mov_b32 v81, 0\nv_cmp_eq_u32 s[24:25], 0, v0")
        S.gap(24)
        for kk in range(8):
            S.put(('need', 'lg', [('a', kk)]))
            a(f"    v_mfma_f32_32x32x16_bf16 {vr(KA,16)}, {vr(FR+8*kk,4)}, {vr(FR+8*kk+4,4)}, {vr(KA,16) if (c or kk) else '0'}")
            S.gap(24)
        S.flush()
        if O['kgmarks'] and c < 2: a(f"    ; MARK {28 + c}")
    a("    ; MARK 2")
    V = lambda r: KA + r
    a(f"    v_cndmask_b32 v82, v{V(12)}, v{V(13)}, vcc\n    v_cndmask_b32 v83, v{V(14)}, v{V(15)}, vcc")
    a(f"    v_cvt_pk_bf16_f32 v80, v{V(0)}, v81\n    v_cndmask_b32 v80, v81, v80, s[24:25]")
    emap = [[V(k) for k in range(9)], [V(9)] * 3 + [V(10)] * 3 + [V(11)] * 3,
            [V(12)] * 4 + [82] + [V(13)] * 4, [V(14)] * 4 + [83] + [V(15)] * 4]
    tw = []
    for G in range(4):
        e = emap[G]; o = 48 + 8 * G
        for k in range(4): a(f"    v_cvt_pk_bf16_f32 v{o+k}, v{e[7-2*k]}, v{e[6-2*k]}")
        for k in range(4): a(f"    v_cvt_pk_bf16_f32 v{o+4+k}, v{e[8-2*k]}, v{e[7-2*k]}")
        tw += [f"    ds_write_b128 v{VT}, {vr(o,4)} offset:{3072-1024*G}", f"    ds_write_b128 v{VT}, {vr(o+4,4)} offset:{4160+3072-1024*G}"]
        S.put(tw.pop(0))
        if G == 0:
            a("    s_mov_b64 exec, 0xffff")
            S.now(["    ds_write_addtid_b32 v81 offset:4096", f"    ds_write_addtid_b32 v80 offset:{4160+4096}"])
            a("    s_mov_b64 exec, -1")
    ACC, SET, UF = 16, [48, 112], 112
    a("    ; MARK 3")
    for j in range(4):
        S.put(('need', 'vm', [('st', j)]))
        for c in range(4):
            a(f"    v_pk_fma_f32 {vr(UF+8*j+2*c,2)}, {vr(XF+8*j+2*c,2)}, {vr(ST+4*j,2)}, {vr(ST+4*j+2,2)} neg_lo:[0,0,1] neg_hi:[0,0,1]")
        for c in range(4): a(f"    v_cvt_pk_bf16_f32 v{144+4*j+c}, v{UF+8*j+2*c}, v{UF+8*j+2*c+1}")
        S.put(tw.pop(0))
    def rdA(r):
        R = []
        for p in range(8):
            o = (128 if p % 2 == 0 else 0) + 16 * (7 - r); d = SET[r & 1] + 4 * p
            R += [(f"    ds_read2_b32 {vr(d,2)}, v{AD+p//2} offset0:{o} offset1:{o+1}", ('A', r, p)),
                  (f"    ds_read2_b32 {vr(d+2,2)}, v{AD+p//2} offset0:{o+2} offset1:{o+3}", ('A', r, p))]
        return R
    def rdB(r): return [(f"    ds_read_b128 {vr(SET[r&1]+32+4*q,4)}, v{AD+4} offset:{512*q+64*(7-r)}", ('B', r, q)) for q in range(8)]
    for jj in (1, 3):
        for c in range(4): S.put((f"    ds_write2st64_b32 v{VU}, v{144+4*(jj-1)+c}, v{144+4*jj+c} offset0:{18*c+4*(jj-1)} offset1:{18*c+4*jj}", 'uw'))
        if jj == 3: S.now(rdA(0)[:12])
        for j in (jj - 1, jj):
            for c in range(4):
                a(f"    v_pk_fma_f32 {vr(XF+8*j+2*c,2)}, {vr(UF+8*j+2*c,2)}, s[{30+2*(c>>1)}:{31+2*(c>>1)}], {vr(XF+8*j+2*c,2)} op_sel:[0,{c&1},0] op_sel_hi:[1,{c&1},1]")
    S.put(('need', 'lg', ['uw']))
    a("    s_barrier\n    ; MARK 4")
    S.now(rdB(0)[:1] + rdA(0)[12:] + rdB(0)[1:])
    poll1b = f"    buffer_load_dword v14, v{VP}, s[8:11], s29 offen sc1"
    for r in range(8):
        st = r & 1
        rd = rdA(r + 1) + rdB(r + 1) if r < 7 else []
        w0 = wread(16 + 2 * r - 3, (2 * r - 3) & 3) if r >= 2 else []
        w1 = wread(16 + 2 * r - 2, (2 * r - 2) & 3) if r >= 1 else []
        first = w0 + rd[:12]; second = w1 + rd[12:]
        if r == 0: second += L(f"v_min_u32 v{VP}, 23, v0\nv_lshlrev_b32 v{VP}, 4, v{VP}\ns_mul_i32 s29, s20, 384\ns_add_u32 s29, s29, {FL_F1B}\ns_lshl_b32 s28, s23, 14")
        if r == 6: second.append((poll1b, 'p1b'))
        dm = {}
        for hb in range(2):
            u = 2 * r + hb
            pre, d = wdma(16 + u, u & 3)
            for q in range(4): dm[18 * hb + 1 + (9 * q) // 2] = [d[q]]
            dm[18 * hb] = [('need', 'lg', [('wr', 16 + u - 4)])] + pre
        k = 0
        for q in range(8):
            for p in range(8 - q):
                if k == 0: S.q += first
                if k == 16: S.q += second
                S.put(('need', 'lg', [('A', r, p), ('B', r, q)]))
                c = vr(ACC + 4 * (p + q), 4)
                a(f"    v_mfma_f32_16x16x32_bf16 {c}, {vr(SET[st]+4*p,4)}, {vr(SET[st]+32+4*q,4)}, {c if (r or q) else '0'}")
                if r == 7 and p == 2 and q >= 1: S.put(f"    ds_write_b128 v{VY}, {vr(ACC+4*(q-1),4)} offset:{1024*(q-1)}")
                if r or k >= 4 or k in dm: S.gap(8 if k in dm else 5, dm.get(k, ()))
                k += 1
        S.flush()
        if O['cvmarks'] and r in (1, 3, 5): a(f"    ; MARK {25 + r // 2}")
    a("    ; MARK 5")
    S.put(('need', 'vm', ['p1b']))
    emit(a, recheck("S1b", [poll1b], ["    v_cmp_eq_u32 vcc, -1, v14"]))
    for J in range(5, 8): S.put(f"    ds_write_b128 v{VY}, {vr(ACC+4*J,4)} offset:{1024*J}")
    a("    s_waitcnt lgkmcnt(0)\n    s_barrier")
    S.lg.q = []
    for j in range(4):
        for c in range(4): S.put((f"    ds_read_b64 {vr(48+8*j+2*c,2)}, v{VYR} offset:{TW*c+2048*j}", ('y', j)))
    for j in range(4):
        S.put(('need', 'lg', [('y', j)]))
        b = 48 + 8 * j
        for c in range(4): a(f"    v_pk_add_f32 {vr(b+2*c,2)}, {vr(b+2*c,2)}, {vr(XF+8*j+2*c,2)}")
        for par in range(2):
            for h in range(2): a(f"    v_cvt_pk_bf16_f32 v{80+4*j+2*par+h}, v{b+4*h+par}, v{b+4*h+2+par}")
        S.put((f"    buffer_store_dwordx4 {vr(80+4*j,4)}, v4, s[8:11], s28 offen sc1", 'h'))
        if j < 3: a("    s_add_u32 s28, s28, 4096")
    a("    ; MARK 6")
    S.now(wread(29, 1) + wread(30, 2) + wread(31, 3))
    win_early(S)
    a(f"""    s_lshl_b32 s28, s2, 4
    s_add_u32 s28, s28, {FL_F2}
    s_lshl_b32 s29, s2, 7
    s_add_u32 s29, s29, {FL_F2P}
    v_mov_b32 v14, s28
    v_mov_b32 v15, 1
    v_writelane_b32 v14, s29, 1""")
    S.put(('need', 'vm', ['h']))
    a(f"""    s_waitcnt lgkmcnt(0)
    s_barrier
    ; MARK 7
    s_cmp_lg_u32 s20, 0
    s_cbranch_scc1 L_common
    s_mov_b64 exec, 3
    buffer_store_dword v15, v14, s[8:11], 0 offen sc1
    s_mov_b64 exec, -1""")

def flag_store(a, skip, saddr):
    a(f"""    s_barrier
    s_cmp_lg_u32 s20, 0
    s_cbranch_scc1 {skip}
    s_mov_b64 exec, 1
    buffer_store_dword v0, v0, s[8:11], s{saddr} offen sc1
    s_mov_b64 exec, -1
{skip}:""")

def helper_role(a):
    HS, HB, HN = 20480, 81920, 5
    TL = "    buffer_load_dword v61, v60, s[12:15], s33 offen"
    def touch_set(line0, lg, rows):
        return L(f"""{rows}
s_lshl_b32 s33, s21, 20
s_add_u32 s33, s33, s34
s_add_u32 s33, s33, {128*line0}
v_lshrrev_b32 v60, {lg}, v1
v_lshlrev_b32 v60, 12, v60
v_and_b32 v61, {(1 << lg) - 1}, v1
v_lshl_add_u32 v60, v61, 7, v60""")
    a("L_help:")
    emit(a, common_ids(HS, HB))
    a(f"""    v_mov_b32 v56, -1
    v_mov_b32 v57, -1
    v_mov_b32 v58, -1
    v_mov_b32 v59, -1
    v_lshlrev_b32 v4, 4, v1
    s_lshl_b32 s28, s23, 13
    s_add_u32 s28, s28, {WS_FL}
    s_add_u32 s29, s28, 4096
    buffer_store_dwordx4 v[56:59], v4, s[8:11], s28 offen sc1
    buffer_store_dwordx4 v[56:59], v4, s[8:11], s29 offen sc1
    v_mov_b32 v62, 0x3f803f80
    v_lshrrev_b32 v7, 1, v3
    v_lshlrev_b32 v7, 4, v7
    v_and_b32 v15, 1, v3
    v_lshl_add_u32 v7, v15, 2, v7
    v_lshl_add_u32 v7, v14, 3, v7
    v_cmp_eq_u32 vcc, 1, v14
    s_mov_b32 s28, {WS_ST1}""")
    for q in range(10):
        a(f"    s_waitcnt vmcnt({11-q})")
        if q == 9: a("    ; MARK 0")
        for k in range(4):
            z = (q or k)
            a(f"    v_dot2_f32_bf16 v60, v{16+4*q+k}, v62, {'v60' if z else '0'}")
            a(f"    v_dot2_f32_bf16 v61, v{16+4*q+k}, v{16+4*q+k}, {'v61' if z else '0'}")
    for m in ("row_half_mirror", "quad_perm:[2,3,0,1]", "quad_perm:[1,0,3,2]"):
        a(f"    v_add_f32_dpp v60, v60, v60 {m} row_mask:0xf bank_mask:0xf")
        a(f"    v_add_f32_dpp v61, v61, v61 {m} row_mask:0xf bank_mask:0xf")
    emit(a, ln_scalars(60, 61, 640, 64, 63, 65))
    a(f"""    v_cndmask_b32 v63, v63, v64, vcc
    s_mov_b32 exec_lo, 0x03030303
    s_mov_b32 exec_hi, 0x03030303
    buffer_store_dword v63, v7, s[8:11], s28 offen sc1
    s_mov_b64 exec, -1
    s_and_b32 s29, s2, 3
    s_lshl_b32 s29, s29, 6
    v_mov_b32 v66, s29
    v_mov_b32 v67, 1
    s_waitcnt vmcnt(0)
    s_barrier
    s_cmp_lg_u32 s20, 0
    s_cbranch_scc1 L_ar
    s_mov_b64 exec, 1
    global_atomic_add v66, v67, s[66:67] sc1
    s_mov_b64 exec, -1
L_ar:
    ; MARK 1
    s_cmp_lt_u32 s23, 48
    s_cbranch_scc1 L_hout""")
    emit(a, touch_set(16, 3, "s_sub_u32 s34, s22, 20\ns_lshl_b32 s34, s34, 17"))
    a(f"""{TL}
    s_branch L_hdone
L_nostat:
    s_waitcnt lgkmcnt(0)""")
    emit(a, common_ids(HS, HB))
    if O['hdelay']: a("    s_waitcnt vmcnt(0)")
    a("    ; MARK 1\n    s_cmp_lt_u32 s23, 88\n    s_cbranch_scc1 L_hin")
    emit(a, touch_set(12, 2, "s_mov_b32 s34, 0"))
    for q in range(4): a(f"{TL}\n    s_add_u32 s33, s33, {64*4096}")
    a("    s_branch L_hdone\nL_hin:")
    emit(a, srd(16, 56, 640 * 1536 * 2))
    a(f"""    s_sub_u32 s25, s23, 64
    v_lshrrev_b32 v7, 3, v0
    v_mul_u32_u24 v7, 3072, v7
    v_and_b32 v3, 7, v0
    v_lshl_add_u32 v7, v3, 4, v7
    s_mul_i32 s27, s20, {8*3072}
    s_lshl_b32 s28, s25, 7
    s_add_u32 s27, s27, s28
    s_lshl_b32 m0, s20, 10""")
    for q in range(20):
        a("    buffer_load_dwordx4 v7, s[16:19], s27 offen lds")
        if q < 19: a(f"    s_add_u32 m0, m0, 4096\n    s_add_u32 s27, s27, {32*3072}")
    a(f"""    v_bfe_u32 v7, v0, 2, 2
    v_lshl_add_u32 v7, v6, 3, v7
    v_lshlrev_b32 v7, 7, v7
    v_and_b32 v3, 3, v0
    v_lshl_add_u32 v7, v3, 3, v7
    s_lshl_b32 s28, s20, 5
    v_add_u32 v7, s28, v7
    s_lshl_b32 s27, s25, 2
    s_add_u32 s27, s27, s20
    s_cmp_ge_u32 s27, 48
    s_cselect_b32 s28, 48, 0
    s_cselect_b32 s29, 0, 3
    s_sub_u32 s28, s27, s28
    s_mul_i32 s30, s28, 43691
    s_lshr_b32 s30, s30, 17
    s_mul_i32 s31, s30, 3
    s_sub_u32 s31, s28, s31
    s_add_u32 s31, s31, s29            ; slot
    s_mul_i32 s30, s30, 120
    s_add_u32 s30, s30, s31
    s_lshl_b32 s30, s30, 10
    s_add_u32 s30, s30, {WS_WIN}
    v_mov_b32 v96, 0
    v_mov_b32 v98, 0x3f803f80""")
    for hf in range(2):
        a(f"    s_waitcnt vmcnt(10)\n    s_barrier")
        for ks in range(10):
            a(f"    ds_read_b64_tr_b16 {vr(16+40*hf+4*ks,2)}, v7 offset:{4096*ks}")
            a(f"    ds_read_b64_tr_b16 {vr(18+40*hf+4*ks,2)}, v7 offset:{4096*ks+512}")
        if hf == 0: a("    v_add_u32 v7, 40960, v7")
        for ks in range(10):
            a(f"    s_waitcnt lgkmcnt({min(15,18-2*ks)})")
            a(f"    buffer_store_dwordx4 {vr(16+40*hf+4*ks,4)}, v2, s[8:11], s30 offen sc1")
            a(f"    s_add_u32 s30, s30, 6144")
            for k in range(4): a(f"    v_dot2_f32_bf16 v96, v{16+40*hf+4*ks+k}, v98, v96")
    emit(a, allreduce_g(96, 97))
    a(f"""    s_lshl_b32 s27, s27, 6
    s_add_u32 s27, s27, {WS_CS}
    v_lshlrev_b32 v7, 2, v5
    buffer_store_dword v96, v7, s[8:11], s27 offen sc1
    s_branch L_hdone
L_hout:""")
    S = Sched(a)
    emit(a, srd(16, 62, 768 * 640 * 2))
    a(f"""    s_and_b32 s24, s23, 7              ; d block
    s_lshr_b32 s25, s23, 3
    s_lshl_b32 s25, s25, 2
    s_add_u32 s25, s25, s20            ; k step
    s_mul_i32 s30, s25, 43691
    s_lshr_b32 s30, s30, 17
    s_mul_i32 s31, s30, 3
    s_sub_u32 s31, s25, s31            ; 0 / 1 (mixed) / 2
    s_mul_i32 s30, s30, 96
    s_mul_i32 s32, s31, 24
    s_cmp_eq_u32 s31, 1
    s_cselect_b32 s32, 32, s32
    s_cselect_b32 s33, {32*1280}, 0
    s_movk_i32 s34, {4*160}
    s_cmovk_i32 s34, {8*160}
    s_movk_i32 s79, {16*160}
    s_cmovk_i32 s79, {4*160}
    s_add_u32 s30, s30, s32
    s_mul_i32 s26, s30, 1280
    s_mul_i32 s27, s24, 160
    s_add_u32 s26, s26, s27
    s_mul_i32 s27, s20, 5120
    s_mov_b32 m0, s27""")
    for q in range(5):
        a(f"""    v_add_u32 v7, {64*q}, v0
    v_mul_u32_u24 v3, 6554, v7
    v_lshrrev_b32 v3, 16, v3
    v_lshrrev_b32 v15, 4, v3
    v_mul_u32_u24 v3, 1120, v3
    v_lshl_add_u32 v7, v7, 4, v3
    v_mad_u32_u24 v7, v15, s33, v7""")
        S.put(("    buffer_load_dwordx4 v7, s[16:19], s26 offen lds", 'r'))
        if q < 4: a("    s_add_u32 m0, m0, 1024")
    a(f"""    v_bfe_u32 v56, v0, 2, 2
    v_mul_u32_u24 v56, 160, v56
    v_mad_u32_u24 v56, v6, s34, v56
    v_add_u32 v56, s27, v56
    v_and_b32 v3, 3, v0
    v_lshl_add_u32 v57, v3, 3, v56
    v_lshl_add_u32 v56, v3, 4, v56
    v_add_u32 v58, s79, v56
    v_add_u32 v59, s79, v57""")
    emit(a, touch_set(16, 3, "s_sub_u32 s34, s22, 20\ns_lshl_b32 s34, s34, 17"))
    S.put((TL, 't'))
    a(f"""    s_mul_i32 s28, s24, 24
    s_add_u32 s28, s28, s25
    s_mul_i32 s28, s28, 5120
    s_add_u32 s28, s28, {WS_WOUT}
    s_add_u32 s29, s28, 4096""")
    S.put(('need', 'vm', ['r']))
    for t in range(5):
        ad, o = (56, 64 * (t >> 1) + 8 * (t & 1)) if t < 4 else (57, 128)
        a(f"    ds_read_b64_tr_b16 {vr(16+4*t,2)}, v{ad} offset:{o}")
        a(f"    ds_read_b64_tr_b16 {vr(18+4*t,2)}, v{ad+2} offset:{o}")
    for t in range(5):
        a(f"    s_waitcnt lgkmcnt({8-2*t})")
        if t < 4: a(f"    buffer_store_dwordx4 {vr(16+4*t,4)}, v2, s[8:11], s28 offen offset:{1024*t} sc1")
        else: a(f"    buffer_store_dwordx4 {vr(16+4*t,4)}, v2, s[8:11], s29 offen sc1")
    a("L_hdone:\n    ; MARK 2")
    S = Sched(a)
    for u in range(3):
        pre, d = wdma(16 + u, u); S.now(pre + d)
    a(f"""    s_waitcnt vmcnt(12)
    s_barrier
    s_cmp_lg_u32 s20, 0
    s_cbranch_scc1 L_f1b
    v_and_b32 v7, 3, v0
    v_lshlrev_b32 v7, 6, v7""")
    spin(a, "H1", ["    global_load_dword v14, v7, s[66:67] sc1"], ["    v_cmp_gt_u32 vcc, 16, v14"], sleep=8)
    a(f"""    s_lshl_b32 s28, s23, 4
    s_add_u32 s28, s28, {FL_F1B}
    s_mov_b64 exec, 1
    buffer_store_dword v0, v0, s[8:11], s28 offen sc1
    s_mov_b64 exec, -1
L_f1b:
    ; MARK 3""")
    for u in range(3, HN):
        pre, d = wdma(16 + u, u); S.now(pre + d)
    for u in range(16):
        S.now(wread(16 + u, u % HN))
        if u + HN < 16:
            pre, d = wdma(16 + u + HN, u % HN)
            S.now([('need', 'lg', [('wr', 16 + u)])] + pre + d)
    a(f"""    ; MARK 4
    s_waitcnt lgkmcnt(0)
    s_barrier
    v_min_u32 v3, 23, v0
    v_lshlrev_b32 v3, 4, v3
    s_mul_i32 s29, s20, 384
    s_add_u32 s29, s29, {FL_F1B}""")
    spin(a, "H1b", ["    buffer_load_dword v14, v3, s[8:11], s29 offen sc1"], ["    v_cmp_eq_u32 vcc, -1, v14"], sleep=4)
    a("    s_barrier\n    ; MARK 7")
    win_early(S)
    a("    s_branch L_common")

def g1(a, S):
    RING, AB, BF, ACC, RR = 9, 50, [142, 166], 190, 238
    CS2, CS1, SX, RL, SA, T0, VPL = 16, 22, 34, 38, 42, 46, 45
    a(f"""L_common:
    s_mul_i32 s25, s20, {3*6144}
    s_add_u32 s27, s26, s25
    s_add_u32 s27, s27, {7*6144}
    s_add_u32 s24, s25, {L_R - 3*6144}
    s_cmp_eq_u32 s20, 0
    s_cselect_b32 m0, {YO}, s24
    s_movk_i32 s24, 2048
    s_cmovk_i32 s24, {TW - 4096}""")
    for j in range(3):
        step_dma(S, 'wl')
        if j < 2: a("    s_add_u32 m0, m0, s24\n    s_add_u32 s27, s27, 2048")
    a(f"""    s_mul_i32 s29, s71, 192
    s_add_u32 s29, s29, {WS_CS}
    s_add_u32 s30, s29, 3072
    v_lshlrev_b32 v{SA}, 2, v5
    v_lshlrev_b32 v{SA+1}, 4, v6""")
    for t in range(3):
        a(f"""    buffer_load_dword v{CS2+2*t}, v{SA}, s[8:11], s30 offen offset:{64*t} sc1
    buffer_load_dwordx4 {vr(CS1+4*t,4)}, v{SA+1}, s[8:11], s29 offen offset:{64*t} sc1""")
    XS = RR
    emit(a, stage_base(24576, 0))
    a(f"""    v_min_u32 v48, 39, v0
    s_mul_i32 s28, s20, 640
    s_add_u32 s28, s28, {FL_F2}
    v_lshlrev_b32 v48, 4, v48
    v_lshlrev_b32 v14, 15, v6
    v_lshl_add_u32 v14, v5, 4, v14       ; quad 2g
    v_add_u32 v15, 16384, v14            ; quad 2g+1
    s_lshl_b32 s26, s78, 8
    v_lshrrev_b32 v7, 2, v0
    v_lshlrev_b32 v7, 14, v7
    v_and_b32 v4, 3, v0
    v_lshl_add_u32 v7, v4, 4, v7
    v_lshlrev_b32 v{T0}, 6, v4
    v_and_b32 v4, 12, v0
    v_add_u32 v{T0}, v{T0}, v4
    v_add_u32 v3, 65536, v2
    v_add_u32 v4, 131072, v2
    v_mov_b32 v{T0+1}, 0x3f803f80
    s_lshl_b32 s29, s70, 4
    s_add_u32 s29, s29, s71
    s_lshl_b32 s30, s29, 6
    s_mul_i32 s31, s20, {40*16384}
    s_add_u32 s30, s30, s31
    s_add_u32 s31, s30, {16*16384}
    s_add_u32 s32, s30, {32*16384}
    s_lshl_b32 s29, s29, 8
    s_lshl_b32 s33, s20, 4
    s_add_u32 s29, s29, s33
    s_add_u32 s29, s29, {FL_L2X}
    s_lshl_b32 s33, s78, 10
    s_add_u32 s33, s33, {FL_L2X}""")
    for k in range(4): a(f"    v_mov_b32 v{XS+8+k}, 0")
    a(f"""    s_cmp_lt_u32 s2, 160
    s_cbranch_scc1 L_s2
    s_lshl_b32 s34, s2, 7
    s_add_u32 s34, s34, {FL_F2P - 160 * 128}""")
    spin(a, "H2p", [f"    buffer_load_dword v{VPL}, off, s[8:11], s34 sc1"], [f"    v_cmp_eq_u32 vcc, -1, v{VPL}"], sleep=4)
    a(f"    s_cmp_eq_u32 s35, 0x7fff\n    s_cbranch_scc1 L_s2\n    s_sleep {O['hsleep']}\nL_s2:\n    ; MARK 8")
    spin(a, "S2", [f"    buffer_load_dword v{VPL}, v48, s[8:11], s28 offen sc1"], [f"    v_cmp_eq_u32 vcc, -1, v{VPL}"])
    a("    s_barrier\n    ; MARK 9")
    S.vm.q = []; S.lg.q = []
    xsl = [(f"    buffer_load_dwordx4 {vr(XS,4)}, v7, s[8:11], s30 offen sc1", 'x'), (f"    buffer_load_dwordx4 {vr(XS+4,4)}, v7, s[8:11], s31 offen sc1", 'x'),
           "    s_mov_b32 exec_hi, 0", (f"    buffer_load_dwordx4 {vr(XS+8,4)}, v7, s[8:11], s32 offen sc1", 'x'), "    s_mov_b32 exec_hi, -1"]
    def aload(s):
        b = AB + 10 * (s % RING)
        return [(f"    buffer_load_dwordx4 {vr(b+6,4)}, v14, s[8:11], s26 offen sc1", s), (f"    buffer_load_dwordx4 {vr(b+2,4)}, v15, s[8:11], s26 offen sc1", s),
                f"    s_add_u32 s26, s26, {8*16384}"]
    NPRE = O['npre']
    for s in range(NPRE): S.now(aload(s))
    S.now(xsl)
    def breads(s): return [(f"    ds_read_b128 {vr(BF[s&1]+4*t,4)}, {lds_op(win_addr(s)+1024*t)}", ('b', s, t)) for t in range(6)]
    S.now(breads(0))
    a(f"""    v_lshl_add_u32 v7, v5, 6, v{SA+1}
    s_lshl_b32 s28, s20, 8
    s_add_u32 s28, s28, {L_S}
    v_add_u32 v{SA}, s28, v{SA}          ; scratch + 4i
    v_add_u32 v{SA+1}, s28, v{SA+1}      ; scratch + 16g
    v_and_b32 v{SA+2}, 1, v6
    v_lshl_add_u32 v{SA+2}, v{SA+2}, 6, v{SA}""")
    def dots():
        S.put(('need', 'vm', ['x']))
        for k in range(6):
            e = XS + 4 * (k >> 1) + (k & 1); o = e + 2
            z = lambda r: f"v{r}" if k else "0"
            a(f"    v_dot2_f32_bf16 v{SX}, v{e}, v{T0+1}, {z(SX)}\n    v_dot2_f32_bf16 v{SX+1}, v{e}, v{e}, {z(SX+1)}")
            a(f"    v_dot2_f32_bf16 v{SX+2}, v{o}, v{T0+1}, {z(SX+2)}\n    v_dot2_f32_bf16 v{SX+3}, v{o}, v{o}, {z(SX+3)}")
    def movs(s):
        b = AB + 10 * (s % RING)
        return [('need', 'vm', [s]), f"    v_mov_b64 {vr(b+10,2)}, {vr(b+4,2)}", f"    v_mov_b64 {vr(b,2)}, {vr(b+6,2)}"]
    S.now(movs(0))
    a("    ; MARK 10")
    red = L(f"""v_add_f32_dpp v{SX}, v{SX}, v{SX} row_ror:8 row_mask:0xf bank_mask:0x3
v_add_f32_dpp v{SX+1}, v{SX+1}, v{SX+1} row_ror:8 row_mask:0xf bank_mask:0x3
v_add_f32_dpp v{SX}, v{SX+2}, v{SX+2} row_ror:8 row_mask:0xf bank_mask:0xc
v_add_f32_dpp v{SX+1}, v{SX+3}, v{SX+3} row_ror:8 row_mask:0xf bank_mask:0xc
v_add_f32_dpp v{SX}, v{SX}, v{SX} row_shl:4 row_mask:0xf bank_mask:0x5
v_add_f32_dpp v{SX}, v{SX+1}, v{SX+1} row_shr:4 row_mask:0xf bank_mask:0xa""") + allreduce_g(SX, SX + 1)
    red.append(f"    buffer_store_dword v{SX}, v{T0}, s[8:11], s29 offen sc1")
    l2load = f"    buffer_load_dwordx4 {vr(SX,4)}, v7, s[8:11], s33 offen sc1"
    l2chk = L(f"v_max3_u32 v{T0}, v{SX}, v{SX+1}, v{SX+2}\nv_max_u32 v{T0}, v{T0}, v{SX+3}\nv_cmp_eq_u32 vcc, -1, v{T0}")
    def bcast(t):
        return [(f"    ds_write2_b32 v{SA+2}, v{t}, v{t+1} offset1:32", 'sw')] + [(f"    ds_read_b128 {vr(RR+4*k,4)}, v{SA+1} offset:{64*k}", 'rr') for k in range(4)]
    c0 = -2.0 * math.sqrt(2.0 / math.pi) * LOG2E
    KK = 14
    side = {O['xs_at'] + 1: red, O['l2_at']: [(l2load, 'l2')],
            O['l2_at'] + 3: [('need', 'vm', ['l2'])] + recheck("L2", [l2load], l2chk) + row_scalars(SX, 640, T0) + bcast(T0)
                + [(f"    ds_read2_b32 {vr(RL,2)}, v{SA} offset0:0 offset1:16", 'rr'), (f"    ds_read2_b32 {vr(RL+2,2)}, v{SA} offset0:32 offset1:48", 'rr')]
                + L(f"""v_mov_b32 v{KK}, {f2u(c0)}
v_mov_b32 v{KK+1}, {f2u(c0*0.044715)}
s_lshl_b32 s29, s71, 6
s_add_u32 s29, s29, s78
s_mul_i32 s29, s29, 3072
s_add_u32 s29, s29, {WS_Z2}
s_lshl_b32 s33, s78, 12
s_add_u32 s33, s33, {FL_L3X}
s_lshl_b32 s31, s71, 8
s_add_u32 s31, s31, s33
v_and_b32 v{T0}, 3, v0
v_cmp_eq_u32 vcc, 1, v{T0}
v_cmp_eq_u32 s[24:25], 2, v{T0}
v_cmp_eq_u32 s[26:27], 3, v{T0}
v_lshlrev_b32 v{T0}, 4, v{T0}
v_lshl_add_u32 v{T0}, v6, 6, v{T0}
v_bfe_u32 v{T0+1}, v0, 2, 1
v_lshl_add_u32 v{T0}, v{T0+1}, 3, v{T0}
v_bfe_u32 v{T0+1}, v0, 3, 1
v_lshl_add_u32 v{T0}, v{T0+1}, 2, v{T0}""")}
    wq = []
    for u in range(6):
        pre, d = wdma(u, u); wq += [pre + d[:1], d[1:2], d[2:3], d[3:]]
    nxt = NPRE
    for s in range(20):
        b = AB + 10 * (s % RING)
        forced = {k: [] for k in range(12)}
        if s < 19:
            for t, x in enumerate(breads(s + 1)): forced[t].append(x)
            m = movs(s + 1); forced[8] += m[:2]; forced[9] += m[2:]
        for n in range(2 if nxt - s < RING - 1 else 1):
            if nxt < 20 and nxt - s < RING:
                x = aload(nxt); nxt += 1
                forced[6 + 4 * n] += x[:1]; forced[7 + 4 * n] += x[1:]
        if s == 11: forced[11].append("    s_barrier")
        if s >= 12:
            for k in (2, 6, 10): forced[k] += wq.pop(0)
        S.q += side.get(s, [])
        k = 0
        for par in (1, 0):
            af = vr(b + 8, 4) if par else vr(b, 4)
            for t in range(6):
                S.put(('need', 'lg', [('b', s, 5 if s else t)]))
                c = vr(ACC + 8 * t + 4 * par, 4); bf_ = vr(BF[s & 1] + 4 * t, 4); src = c if s else "0"
                a(f"    v_mfma_f32_16x16x32_bf16 {c}, {af}, {bf_}, {src}" if t < 3 else f"    v_mfma_f32_16x16x32_bf16 {c}, {bf_}, {af}, {src}")
                S.gap(8, forced[k]); k += 1
        if s == O['xs_at']: dots()
        if O['g1marks'] == 1 and s in (3, 7, 11, 15): a(f"    ; MARK {25 + s // 4}")
    assert nxt == 20 and not wq
    S.flush()
    S.put(('need', 'lg', ['rr']))
    a("    ; MARK 11")
    SS, QQ, GT, Z1P = 50, 58, 66, 82
    for t in range(3):
        prs = [ACC + 8 * t + 2 * k for k in range(4)]
        for k, x in enumerate(prs): a(f"    v_pk_mul_f32 {vr(x,2)}, {vr(x,2)}, {vr(RR+2*k,2)}")
        for k, x in enumerate(prs): a(f"    v_pk_fma_f32 {vr(x,2)}, {vr(RR+8+2*k,2)}, {vr(CS2+2*t,2)}, {vr(x,2)} op_sel_hi:[1,0,1] neg_lo:[1,0,0] neg_hi:[1,0,0]")
        gelu_block(a, prs, GT, KK)
        for k, x in enumerate(prs):
            if t == 0: a(f"    v_pk_mul_f32 {vr(QQ+2*k,2)}, {vr(x,2)}, {vr(x,2)}")
            else:
                a(f"    v_pk_add_f32 {vr(SS+2*k,2)}, {vr(x,2)}, {vr(SS+2*k if t == 2 else ACC+2*k,2)}")
                a(f"    v_pk_fma_f32 {vr(QQ+2*k,2)}, {vr(x,2)}, {vr(x,2)}, {vr(QQ+2*k,2)}")
    for k in range(8): a(f"    v_add_f32_dpp v{SS+k}, v{SS+k}, v{SS+k} row_ror:8 row_mask:0xf bank_mask:0x3")
    for k in range(8): a(f"    v_add_f32_dpp v{SS+k}, v{QQ+k}, v{QQ+k} row_ror:8 row_mask:0xf bank_mask:0xc")
    for k in range(4): a(f"    v_add_f32_dpp v{SS+k}, v{SS+k}, v{SS+k} row_half_mirror row_mask:0xf bank_mask:0x5")
    for k in range(4): a(f"    v_add_f32_dpp v{SS+k}, v{SS+4+k}, v{SS+4+k} row_half_mirror row_mask:0xf bank_mask:0xa")
    for k in range(4): a(f"    v_add_f32_dpp v{SS+k}, v{SS+k}, v{SS+k} quad_perm:[2,3,0,1] row_mask:0xf bank_mask:0xf")
    for k in range(4): a(f"    v_add_f32_dpp v{SS+k}, v{SS+k}, v{SS+k} quad_perm:[1,0,3,2] row_mask:0xf bank_mask:0xf")
    a(f"""    v_cndmask_b32 v{SS}, v{SS}, v{SS+1}, vcc
    v_cndmask_b32 v{SS}, v{SS}, v{SS+2}, s[24:25]
    v_cndmask_b32 v{SS}, v{SS}, v{SS+3}, s[26:27]""")
    S.put(f"    buffer_store_dword v{SS}, v{T0}, s[8:11], s31 offen sc1")
    a("    ; MARK 13")
    hk = []
    for u in range(3): hk.append(wread(2 * u, 2 * u) + wread(2 * u + 1, 2 * u + 1))
    for u in (6, 7):
        pre, d = wdma(u, u % 6); hk += [[('need', 'lg', [('wr', u - 6)])] + pre + d[:2], d[2:]]
    def hook():
        if hk: S.now(hk.pop(0))
    hook()
    for t in range(3):
        prs = [ACC + 8 * (3 + t) + 2 * k for k in range(4)]
        for k, x in enumerate(prs): a(f"    v_pk_mul_f32 {vr(x,2)}, {vr(x,2)}, {vr(RL,2)} op_sel:[0,{k>>1}] op_sel_hi:[1,{k>>1}]")
        for k, x in enumerate(prs): a(f"    v_pk_fma_f32 {vr(x,2)}, {vr(CS1+4*t+2*(k&1),2)}, {vr(RL+2,2)}, {vr(x,2)} op_sel:[0,{k>>1},0] op_sel_hi:[1,{k>>1},1] neg_lo:[1,0,0] neg_hi:[1,0,0]")
        gelu_block(a, prs, GT, KK, hook)
        for k, x in enumerate(prs): a(f"    v_cvt_pk_bf16_f32 v{Z1P+4*t+k}, v{x}, v{x+1}")
    assert not hk
    a("    ; MARK 14")
    X3 = 50
    l3 = [f"    buffer_load_dwordx4 {vr(X3+4*j,4)}, v2, s[8:11], s33 offen offset:{1024*j} sc1" for j in range(4)]
    chk = [f"    v_max3_u32 v{T0}, v{X3}, v{X3+1}, v{X3+2}"]
    for k in range(3, 15, 2): chk.append(f"    v_max3_u32 v{T0}, v{T0}, v{X3+k}, v{X3+k+1}")
    chk += [f"    v_max_u32 v{T0}, v{T0}, v{X3+15}", f"    v_cmp_eq_u32 vcc, -1, v{T0}"]
    S.now([(x, 'l3') for x in l3])
    a(f"""    s_lshl_b32 s30, s78, 6
    v_lshl_add_u32 v48, v5, 2, s30""")
    S.put(("    global_load_dword v49, v48, s[60:61]", 'bias'))
    for u in (8, 9):
        pre, d = wdma(u, u % 6); S.now([('need', 'lg', [('wr', u - 6)])] + pre + d)
    S.put(('need', 'vm', ['l3']))
    emit(a, recheck("L3", l3, chk))
    a("    ; MARK 15")
    for k in range(4): a(f"    v_pk_add_f32 {vr(X3+2*k,2)}, {vr(X3+2*k,2)}, {vr(X3+8+2*k,2)}")
    for k in range(2): a(f"    v_pk_add_f32 {vr(X3+2*k,2)}, {vr(X3+2*k,2)}, {vr(X3+4+2*k,2)}")
    emit(a, row_scalars(X3, 768, T0))
    S.now(bcast(T0) + [('need', 'lg', ['rr'])])
    for t in range(3):
        for k in range(4):
            x = ACC + 8 * t + 2 * k
            a(f"    v_pk_fma_f32 {vr(x,2)}, {vr(x,2)}, {vr(RR+2*k,2)}, {vr(RR+8+2*k,2)} neg_lo:[0,0,1] neg_hi:[0,0,1]")
        o = GT + 4 * t
        for r in range(4): a(f"    v_cvt_pk_bf16_f32 v{o+r}, v{ACC+8*t+r}, v{ACC+8*t+4+r}")
        S.put((f"    buffer_store_dwordx4 {vr(o,4)}, v2, s[8:11], s29 offen offset:{1024*t} sc1", 'z2'))
    a("    ; MARK 16")

def g2(a, S):
    NS, ACC, ZF, Z1P, ZU = 5, 16, 40, 82, WV
    for u in (10, 11):
        pre, d = wdma(u, u % 6); S.now(pre + d)
    for u in (6, 7, 8, 9): S.now(wread(u, u % 6))
    S.put(('need', 'vm', ['bias']))
    for par in range(2):
        a(f"    v_lshlrev_b32 v{ACC}, 16, v49" if par == 0 else f"    v_and_b32 v{ACC+12}, 0xffff0000, v49")
        for k in range(1, 12): a(f"    v_mov_b32 v{ACC+12*par+k}, v{ACC+12*par}")
    pre, d = wdma(12, 0); S.now([('need', 'lg', [('wr', 6)])] + pre + d)
    a(f"""    s_lshl_b32 s25, s71, 10
    s_add_u32 s25, s25, {FL_F3}
    s_lshl_b32 s28, s70, 6
    s_add_u32 s28, s28, s25
    v_lshlrev_b32 v7, 6, v5
    s_mul_i32 s27, s20, 3072
    s_mul_i32 s26, s71, {64*3072}
    s_add_u32 s26, s26, s27
    s_add_u32 s26, s26, {WS_Z2}
    s_add_u32 s27, s27, {L_R}
    s_mul_i32 s30, s78, 49152
    s_mul_i32 s31, s73, 3072
    s_add_u32 s30, s30, s31
    s_add_u32 s30, s30, {WS_P}
    s_and_b32 s32, s71, 1
    s_lshl_b32 s31, s32, 9
    s_add_u32 s31, s31, s30
    s_add_u32 s31, s31, 1024
    s_lshl_b32 s32, s32, 11
    s_add_u32 s30, s30, s32
    s_add_u32 s32, s30, 24576
    v_and_b32 v14, 1, v6
    v_mul_u32_u24 v14, 24576, v14
    v_lshrrev_b32 v15, 1, v6
    v_lshl_add_u32 v14, v15, 8, v14
    v_lshl_add_u32 v14, v5, 4, v14
    s_mul_i32 s33, s73, 122880
    s_mul_i32 s34, s20, 30720
    s_add_u32 s33, s33, s34
    s_add_u32 s33, s33, {WS_WOUT}""")
    S.put(('need', 'vm', ['z2']))
    flag_store(a, "L_f3", 28)
    a("    ; MARK 17")
    for u in (13, 14, 15):
        pre, d = wdma(u, u % 6); S.now([('need', 'lg', [('wr', u - 6)])] + pre + d)
    a("    s_cmp_lg_u32 s20, 0\n    s_cbranch_scc1 S3_d")
    spin(a, "S3", ["    buffer_load_dword v15, v7, s[8:11], s25 offen sc1"], ["    v_cmp_eq_u32 vcc, -1, v15"])
    a("    s_barrier\n    ; MARK 18")
    def dma(st):
        pre = [f"    s_add_u32 m0, s27, {(st % NS) * 12288}"] + (["    s_add_u32 s26, s26, 12288"] if st else [])
        return pre, [(f"    buffer_load_dwordx4 v2, s[8:11], s26 offen offset:{1024*k} sc1 lds", ('z', st)) for k in range(3)]
    def zreads(s):
        return [(f"    ds_read_b128 {vr(ZF+12*(s%3)+4*ft,4)}, {lds_op(L_R + ((s >> 2) % NS) * 12288 + (s & 3) * 3072 + 1024 * ft)}", ('zr', s, ft)) for ft in range(3)]
    def wopiece(n):
        return [f"    s_add_u32 m0, s75, {1024*n}", f"    s_add_u32 s76, s33, {1024*n}", ("    buffer_load_dwordx4 v2, s[8:11], s76 offen sc1 lds", 'wo')]
    for st in range(NS - 1):
        pre, d = dma(st); S.now(pre + d)
    S.put(('need', 'vm', [('z', 0)]))
    a("    s_barrier\n    ; MARK 19")
    S.now(zreads(0) + zreads(1))
    zq = []; nwo = 0
    for s in range(64):
        st, ph = s >> 2, s & 3
        forced = {k: [] for k in range(6)}
        if s + 2 < 64:
            for k, x in enumerate(zreads(s + 2)): forced[k].append(x)
        if ph == 1 and st < 15: forced[5] += [('need', 'vm', [('z', st + 1)]), "    s_barrier"]
        if ph == 2 and st + NS - 1 < 16:
            pre, d = dma(st + NS - 1); forced[3] += pre; zq = d
        if zq and ph != 1: forced[4].append(zq.pop(0))
        if 2 <= s < 14:
            u = 10 + (s - 2) // 2; w = wread(u, u % 6)
            if s & 1 == 0: forced[3] += w[:2]; forced[5] += w[2:3]
            else: forced[3] += w[3:4]; forced[4 if ph == 1 else 5] += w[4:]
        if ph == 1 and st >= 4 and nwo < O['nwo']:
            w = wopiece(nwo); nwo += 1
            forced[3] += [('need', 'lg', [('wr', 15)])] + w[:2]; forced[4] += w[2:]
        if s == 40:
            for r in range(12): S.q += [f"    v_lshlrev_b32 v{ZU+2*r}, 16, v{Z1P+r}", f"    v_and_b32 v{ZU+2*r+1}, 0xffff0000, v{Z1P+r}"]
        k = 0
        for ft in range(3):
            for par in range(2):
                S.put(('need', 'lg', [('zr', s, ft if s == 0 else 2), ('wr', s >> 1)]))
                c = vr(ACC + 12 * par + 4 * ft, 4)
                a(f"    v_mfma_f32_16x16x32_bf16 {c}, {vr(ZF+12*(s%3)+4*ft,4)}, {wreg(s >> 1, s & 1, par)}, {c}")
                S.gap(8, forced[k]); k += 1
        if O['g2marks'] and s in (15, 31, 47): a(f"    ; MARK {25 + s // 16}")
    S.flush()
    a("    ; MARK 20")
    PO = 40
    for ft in range(3):
        for par in range(2):
            c = ACC + 12 * par + 4 * ft
            for h in range(2): a(f"    v_pk_mul_f32 {vr(c+2*h,2)}, {vr(c+2*h,2)}, {vr(ZU+8*ft+4*par+2*h,2)}")
        for par in range(2):
            c = ACC + 12 * par + 4 * ft
            o = PO + 4 * par + 2 * ft if ft < 2 else PO + 8 + 2 * par
            for h in range(2): a(f"    v_cvt_pk_bf16_f32 v{o+h}, v{c+2*h}, v{c+2*h+1}")
        if ft == 1:
            S.now([(f"    buffer_store_dwordx4 {vr(PO,4)}, v2, s[8:11], s30 offen sc1", 'p'), (f"    buffer_store_dwordx4 {vr(PO+4,4)}, v2, s[8:11], s32 offen sc1", 'p')])
    a(f"    v_permlane16_swap_b32 v{PO+8}, v{PO+10}\n    v_permlane16_swap_b32 v{PO+9}, v{PO+11}")
    S.put((f"    buffer_store_dwordx4 {vr(PO+8,4)}, v14, s[8:11], s31 offen sc1", 'p'))
    a("    ; MARK 21")
    return nwo

def g3(a, S, nwo):
    PF, ACC, WF, HR = 56, 16, [152, 172, 192], 212
    def pieces(lo, hi):
        n = lo
        while n < hi:
            m = min(hi, n + 4, 24 if n < 24 else 30)
            S.now([f"    s_add_u32 m0, s75, {1024*n}" if n < 24 else f"    s_add_u32 m0, s34, {1024*(n-24)}", f"    s_add_u32 s76, s33, {1024*n}"])
            S.now([(f"    buffer_load_dwordx4 v2, s[8:11], s76 offen offset:{1024*(q-n)} sc1 lds", 'wo') for q in range(n, m)])
            n = m
    mid = min(24, nwo + 10)
    pieces(nwo, mid)
    emit(a, srd(16, 64, 2048 * 1280))
    a(f"""    s_lshl_b32 s24, s70, 8
    s_add_u32 s24, s24, {FL_F4}
    s_lshl_b32 s28, s71, 4
    s_add_u32 s28, s28, s24
    s_mul_i32 s34, s20, 6144
    s_add_u32 s34, s34, {L_R}
    s_lshl_b32 s25, s72, 2
    s_add_u32 s25, s25, s20            ; t tile
    s_lshr_b32 s30, s25, 1
    s_lshl_b32 s30, s30, 5
    s_and_b32 s31, s25, 1
    s_add_u32 s30, s30, s31
    s_lshl_b32 s29, s30, 3
    s_mul_i32 s32, s73, {20*16384}
    s_add_u32 s29, s29, s32
    v_lshlrev_b32 v7, 4, v5
    v_lshl_add_u32 v15, v6, 14, v7
    v_lshl_add_u32 v14, v6, 15, v7
    s_mul_i32 s26, s25, 24576
    s_add_u32 s26, s26, {WS_P}
    s_mul_i32 s31, s30, 1280
    s_mul_i32 s32, s73, 160
    s_add_u32 s31, s31, s32
    v_mul_u32_u24 v10, 2560, v5
    v_lshl_add_u32 v11, v6, 3, v10
    v_lshl_add_u32 v10, v6, 4, v10""")
    S.put(('need', 'vm', ['p']))
    flag_store(a, "L_f4", 28)
    a("    ; MARK 22")
    for t in range(5):
        qd = 8 * (t >> 1) + (t & 1)
        a(f"    s_add_u32 s32, s29, {WS_H + qd*16384}")
        a(f"    buffer_load_dwordx2 {vr(HR+2*t,2)}, v{14 if t < 4 else 15}, s[8:11], s32 offen sc1")
    pieces(mid, 30)
    a("    s_cmp_lg_u32 s20, 0\n    s_cbranch_scc1 S4_d")
    spin(a, "S4", ["    buffer_load_dword v9, v7, s[8:11], s24 offen sc1"], ["    v_cmp_eq_u32 vcc, -1, v9"])
    a("    s_waitcnt vmcnt(0)\n    s_barrier\n    ; MARK 23")
    S.vm.q = []; S.lg.q = []
    def pl(s):
        return [(f"    buffer_load_dwordx4 {vr(PF+4*s,4)}, v2, s[8:11], s26 offen offset:{1024*(s&3)} sc1", s)] + (["    s_add_u32 s26, s26, 4096"] if s & 3 == 3 else [])
    NPRE = 12
    for s in range(NPRE): S.now(pl(s))
    def waddr(s, t):
        w, n = s // 6, (s % 6) * 5 + t
        return 24576 * w + 1024 * n if n < 24 else L_R + 6144 * w + 1024 * (n - 24)
    def wreads(s): return [(f"    ds_read_b128 {vr(WF[s%3]+4*t,4)}, {lds_op(waddr(s, t))}", s) for t in range(5)]
    S.now(wreads(0) + wreads(1))
    for t in range(5):
        for h in range(2):
            r = HR + 2 * t + h
            a(f"    v_lshlrev_b32 v{ACC+4*t+2*h}, 16, v{r}\n    v_and_b32 v{ACC+4*t+2*h+1}, 0xffff0000, v{r}")
    for s in range(24):
        S.now([('need', 'vm', [s]), ('need', 'lg', [s])])
        rd = wreads(s + 2) if s < 22 else []
        ex = pl(s + NPRE) if s + NPRE < 24 else []
        for t in range(5):
            c = vr(ACC + 4 * t, 4)
            a(f"    v_mfma_f32_16x16x32_bf16 {c}, {vr(WF[s%3]+4*t,4)}, {vr(PF+4*s,4)}, {c}")
            S.gap(8, rd[t:t+1] + ex[t-1:t])
    a("    ; MARK 24")
    for t in range(5):
        for h in range(2): a(f"    v_cvt_pk_bf16_f32 v{40+2*t+h}, v{ACC+4*t+2*h}, v{ACC+4*t+2*h+1}")
    f = {0: "", 1: "sc1", 2: "nt"}[O['outsc1']]
    a(f"""    buffer_store_dwordx4 v[40:43], v10, s[16:19], s31 offen {f}
    buffer_store_dwordx4 v[44:47], v10, s[16:19], s31 offen offset:64 {f}
    buffer_store_dwordx2 v[48:49], v11, s[16:19], s31 offen offset:128 {f}
L_end:
    s_endpgm""")

def build(**kw):
    O.update(kw); TAILS.clear()
    a = Asm()
    a.begin_kernel(NAME + "_kernel", 256, 256, 163840, 512, accum=256)
    a(f"""    s_load_dwordx16 s[36:51], s[0:1], 0
    s_load_dwordx16 s[52:67], s[0:1], 64
    s_load_dwordx2 s[68:69], s[0:1], 128
    s_cmp_lt_u32 s2, 224
    s_cbranch_scc1 L_e1
    s_cmp_ge_u32 s2, 256
    s_cbranch_scc1 L_end
    s_getpc_b64 s[30:31]
    v_lshlrev_b32 v7, 7, v0
    global_load_dword v14, v7, s[30:31]
    v_lshrrev_b32 v7, 1, v7
    v_add_u32 v7, 32768, v7
    global_load_dword v15, v7, s[30:31]
L_e1:""")
    emit(a, lanes())
    a(f"""    s_cmp_lt_u32 s2, 160
    s_cbranch_scc1 L_conv
    s_sub_u32 s23, s2, 160
    s_cmp_ge_u32 s23, 64
    s_cbranch_scc1 L_nostat
    s_lshl_b32 s24, s23, 5
    v_lshrrev_b32 v3, 3, v1
    v_add_u32 v3, s24, v3              ; row
    v_mul_u32_u24 v7, 1280, v3
    v_and_b32 v14, 7, v0
    v_lshl_add_u32 v7, v14, 4, v7
    s_waitcnt lgkmcnt(0)""")
    for q in range(10): a(f"    global_load_dwordx4 {vr(16+4*q,4)}, v7, s[36:37] offset:{128*q}")
    a("    s_branch L_help")
    conv_role(a)
    S = Sched(a)
    g1(a, S); nwo = g2(a, S); g3(a, S, nwo); helper_role(a)
    for t in TAILS: emit(a, t)
    a.end_kernel()
    a.lines = hazard.fix(a.lines, verbose=True)
    a.lines = align.fix(a.lines, verbose=True)
    a(".p2align 8\n.fill 3072, 4, 0xbf800000")
    return a.text("S4 conv + gMLP block in one persistent launch; written with the author's own generator script", single=True)
if __name__ == "__main__":
    out = sys.argv[1] if len(sys.argv) > 1 else "v6.s"
    kw = {k: int(v) for k, v in (x.split("=") for x in sys.argv[2:])}
    open(out, "w").write(build(**kw))
```

```python
import sys, math, struct
from asmgen import Asm
import hazard, align
NAME = "sequential_preLN__ssm_conv_s4__mixer_gmlp__prompt"
O = dict(kgmarks=0, burst=12, hsleep=12, x0=2, hdelay=0, xt=1, xp=1, g1marks=0, g2marks=0, cvmarks=0, npre=3, xs_at=2, ct=1, wpre=0, ctpos=0, k00=20, wend=16,
         lead=6, l2_ld=15, nz=15, l3_at=8, l3_chk=13, nT=0, nS=14, nT2=2, pa=8, pb_ld=9, pb_chk=6, oP=10, oC1=0, oC2=8, xw=16, xl=9, xsp=2, xfp=2, xmap=0, g3map=0)

WS_H, WS_WIN, WS_WOUT, WS_CS, WS_ST1 = 0x0, 0x280000, 0x460000, 0x550000, 0x554000
WS_FL = 0x560000
FL_L3X, FL_L2X, FL_F2, FL_F4, FL_F3, FL_F2P, FL_F1B = [WS_FL + x for x in (0, 0x40000, 0x50000, 0x60000, 0x52000, 0x56000, 0x5C000)]
FL_FX = WS_FL + 0x68000
WS_Z2, WS_P, WS_X = 0x600000, 0x900000, 0xC00000
WS_SIZE = 0xF00000
LOG2E = 1.4426950408889634
def f2u(x): return "0x%08x" % struct.unpack("<I", struct.pack("<f", x))[0]
def vr(b, n): return f"v[{b}:{b+n-1}]" if n > 1 else f"v{b}"
def ar(b, n): return f"a[{b}:{b+n-1}]"
def L(s): return ["    " + x.strip() for x in s.strip().split("\n") if x.strip()]
def emit(a, xs):
    for x in xs: a(x)
def srd(r, lo, size):
    return L(f"s_mov_b32 s{r}, s{lo}\ns_and_b32 s{r+1}, s{lo+1}, 0xffff\ns_mov_b32 s{r+2}, {hex(size)}\ns_mov_b32 s{r+3}, 0x20000")
def cmul(d, x, y):
    return [f"    v_pk_mul_f32 {vr(d,2)}, {vr(x,2)}, {vr(y,2)} op_sel:[0,0] op_sel_hi:[0,1]",
            f"    v_pk_fma_f32 {vr(d,2)}, {vr(x,2)}, {vr(y,2)}, {vr(d,2)} op_sel:[1,1,0] op_sel_hi:[1,0,1] neg_lo:[0,1,0]"]
def rbf(d, s): return [f"    v_cvt_pk_bf16_f32 v{d}, v{s}, v{s}", f"    v_lshlrev_b32 v{d}, 16, v{d}"]
def ln_scalars(vs, vq, n, vm, vrs, t):
    return (L(f"v_mul_f32 v{vm}, {f2u(1.0/n)}, v{vs}\nv_mul_f32 v{t}, {f2u(1.0/n)}, v{vq}\nv_fma_f32 v{t}, -v{vm}, v{vm}, v{t}\nv_max_f32 v{t}, 0, v{t}")
            + rbf(t, t) + L(f"v_add_f32 v{t}, {f2u(1e-5)}, v{t}") + rbf(t, t) + L(f"v_sqrt_f32 v{t}, v{t}") + rbf(vm, vm) + rbf(t, t)
            + L(f"v_rcp_f32 v{vrs}, v{t}\ns_nop 0\nv_mul_f32 v{vm}, v{vm}, v{vrs}"))
def allreduce_g(v, t):
    return L(f"v_mov_b32 v{t}, v{v}\nv_permlane16_swap_b32 v{v}, v{t}\nv_add_f32 v{v}, v{v}, v{t}\nv_mov_b32 v{t}, v{v}\nv_permlane32_swap_b32 v{v}, v{t}\nv_add_f32 v{v}, v{v}, v{t}")
def row_scalars(X, n, t):
    return (L(f"""v_permlane16_swap_b32 v{X}, v{X+2}
v_permlane16_swap_b32 v{X+1}, v{X+3}
v_add_f32 v{X}, v{X}, v{X+2}
v_add_f32 v{X+1}, v{X+1}, v{X+3}
v_mov_b32 v{X+2}, v{X}
v_mov_b32 v{X+3}, v{X+1}
s_nop 0
v_permlane32_swap_b32 v{X}, v{X+2}
v_permlane32_swap_b32 v{X+1}, v{X+3}
v_add_f32 v{X}, v{X}, v{X+2}
v_add_f32 v{X+1}, v{X+1}, v{X+3}""") + ln_scalars(X, X + 1, n, t + 1, t, X + 2))
def gelu_block(a, regs, T, KK, hook=lambda: None):
    ts = [T + 2 * n for n in range(len(regs))]
    for x, t in zip(regs, ts): a(f"    v_pk_mul_f32 {vr(t,2)}, {vr(x,2)}, {vr(x,2)}")
    for x, t in zip(regs, ts): a(f"    v_pk_fma_f32 {vr(t,2)}, {vr(t,2)}, {vr(KK,2)}, {vr(KK,2)} op_sel:[0,1,0] op_sel_hi:[1,1,0]")
    for x, t in zip(regs, ts): a(f"    v_pk_mul_f32 {vr(t,2)}, {vr(t,2)}, {vr(x,2)}")
    hook()
    for x, t in zip(regs, ts): a(f"    v_exp_f32 v{t}, v{t}\n    v_exp_f32 v{t+1}, v{t+1}")
    hook()
    for x, t in zip(regs, ts): a(f"    v_pk_add_f32 {vr(t,2)}, {vr(t,2)}, 1.0 op_sel_hi:[1,0]")
    for x, t in zip(regs, ts): a(f"    v_rcp_f32 v{t}, v{t}\n    v_rcp_f32 v{t+1}, v{t+1}")
    hook()
    for x, t in zip(regs, ts): a(f"    v_pk_mul_f32 {vr(x,2)}, {vr(x,2)}, {vr(t,2)}")

TAILS = []
def spin(a, name, loads, check, sleep=1):
    a(f"    s_movk_i32 s35, 0x7fff\n{name}_l:")
    emit(a, loads); a("    s_waitcnt vmcnt(0)"); emit(a, check)
    a(f"    s_cbranch_vccz {name}_d\n    s_sub_u32 s35, s35, 1\n    s_cbranch_scc1 {name}_d\n    s_sleep {sleep}\n    s_branch {name}_l\n{name}_d:")
def recheck(name, loads, check, sleep=1):
    TAILS.append([f"{name}_r:", "    s_movk_i32 s35, 0x7fff", f"{name}_l:", f"    s_sleep {sleep}"] + loads + ["    s_waitcnt vmcnt(0)"] + check +
                 L(f"s_cbranch_vccz {name}_d\ns_sub_u32 s35, s35, 1\ns_cbranch_scc0 {name}_l\ns_branch {name}_d"))
    return check + [f"    s_cbranch_vccnz {name}_r\n{name}_d:"]

class Cnt:
    def __init__(s, name, mx): s.name, s.mx, s.q = name, mx, []
    def issue(s, tag): s.q.append(tag)
    def need(s, *tags):
        idx = max((i for i, t in enumerate(s.q) if t in tags), default=-1)
        if idx < 0: return []
        n = min(len(s.q) - 1 - idx, s.mx)
        s.q = s.q[len(s.q) - n:] if n else []
        return [f"    s_waitcnt {s.name}({n})"]
class Sched:
    def __init__(s, a): s.a = a; s.vm = Cnt("vmcnt", 63); s.lg = Cnt("lgkmcnt", 15); s.q = []
    def cost(s, x):
        if isinstance(x, tuple):
            if x[0] == 'need': return 4 if any(t in x[2] for t in (s.vm if x[1] == 'vm' else s.lg).q) else 0
            x = x[0]
        m = x.split()[0]
        if m.startswith(hazard.TRANS) or m.startswith("v_permlane"): return 8
        if m.startswith("ds_write_b128"): return 20
        if m.startswith("ds_write2"): return 12
        return 4
    def put(s, x):
        if isinstance(x, tuple) and x[0] == 'need':
            emit(s.a, (s.vm if x[1] == 'vm' else s.lg).need(*x[2])); return
        tag = None
        if isinstance(x, tuple): x, tag = x
        m = x.split()[0]
        if m.startswith("ds_"): s.lg.issue(tag)
        elif m.startswith(("buffer_", "global_")): s.vm.issue(tag)
        s.a(x)
    def now(s, xs):
        for x in xs: s.put(x)
    def gap(s, budget=8, forced=()):
        for x in forced:
            budget -= s.cost(x); s.put(x)
        first = not forced
        while s.q and (s.cost(s.q[0]) <= budget or first):
            budget -= s.cost(s.q[0]); s.put(s.q.pop(0)); first = False
    def flush(s):
        while s.q: s.put(s.q.pop(0))

RS = 272; TW = 64 * RS
YO = 8448
L_U = 4 * TW
L_W = L_U + 4 * 4608
L_R = 98304
L_Z = 73728
L_S = 159744
VW, VWR, WV = 8, 12, 94
def win_addr(half, s, t):
    n = 3 * s + t
    if half: return L_R + 1024 * n
    w, i = divmod(n, 15)
    return TW * w + 1024 * i if i < 8 else L_U + 4096 * w + 1024 * (i - 8) if i < 12 else TW * w + YO + 1024 * (i - 12)
def lds_op(addr, bases=(2, 3, 4)):
    return f"v{bases[addr >> 16]} offset:{addr & 0xffff}"
def lanes():
    return L("""v_mov_b32 v1, v0
v_lshrrev_b32 v4, 6, v0
v_and_b32 v0, 63, v0
v_readfirstlane_b32 s20, v4
s_and_b32 s21, s2, 7
s_lshr_b32 s22, s2, 3""")
def stage_base(stride, base):
    return L(f"""s_mul_i32 s75, s20, {stride}
s_add_u32 s75, s75, {base}
v_lshrrev_b32 v{VWR}, 1, v5
v_xor_b32 v{VWR}, v{VWR}, v6
v_lshlrev_b32 v{VWR}, 4, v{VWR}
v_lshl_add_u32 v{VWR}, v5, 7, v{VWR}
v_add_u32 v{VWR}, s75, v{VWR}
v_xor_b32 v{VWR+1}, 64, v{VWR}""")
def idmap():
    m = {0: """s_lshr_b32 s79, s21, 1
s_and_b32 s80, s21, 1
s_and_b32 s81, s22, 7
s_lshr_b32 s82, s22, 3
s_lshl_b32 s70, s79, 2
s_add_u32 s70, s70, s82
s_lshl_b32 s71, s80, 3
s_add_u32 s71, s71, s81""",
         1: """s_lshr_b32 s79, s21, 1
s_and_b32 s80, s21, 1
s_and_b32 s81, s22, 7
s_lshr_b32 s82, s22, 3
s_lshl_b32 s70, s79, 2
s_add_u32 s70, s70, s82
s_lshl_b32 s71, s81, 1
s_add_u32 s71, s71, s80""",
         2: """s_lshr_b32 s79, s21, 2
s_lshr_b32 s82, s22, 2
s_lshl_b32 s70, s79, 3
s_add_u32 s70, s70, s82
s_and_b32 s80, s21, 1
s_and_b32 s81, s21, 2
s_lshl_b32 s81, s81, 2
s_add_u32 s80, s80, s81
s_and_b32 s81, s22, 3
s_lshl_b32 s71, s81, 1
s_add_u32 s71, s71, s80"""}[O['xmap']]
    g = {0: """s_and_b32 s79, s71, 1
s_lshl_b32 s72, s70, 1
s_add_u32 s72, s72, s79
s_lshr_b32 s73, s71, 1""",
         1: """s_lshl_b32 s72, s21, 2
s_lshr_b32 s79, s22, 3
s_add_u32 s72, s72, s79
s_and_b32 s73, s22, 7
s_and_b32 s79, s71, 1""",
         2: """s_lshr_b32 s72, s21, 1
s_lshl_b32 s72, s72, 3
s_lshr_b32 s79, s22, 2
s_add_u32 s72, s72, s79
s_and_b32 s73, s21, 1
s_lshl_b32 s73, s73, 2
s_and_b32 s79, s22, 3
s_add_u32 s73, s73, s79
s_and_b32 s79, s71, 1"""}[O['g3map']]
    return m + "\n" + g
def common_ids(stride, base):
    return L(f"""v_lshlrev_b32 v2, 4, v0
v_and_b32 v5, 15, v0
v_lshrrev_b32 v6, 4, v0
{idmap()}
s_lshl_b32 s78, s70, 2
s_add_u32 s78, s78, s20
s_lshl_b32 s74, s78, 17
s_lshl_b32 s79, s79, 11
s_add_u32 s74, s74, s79
s_lshl_b32 s85, s78, 4
s_add_u32 s85, s85, s71
s_mul_i32 s86, s85, 3072
s_add_u32 s86, s86, {WS_X}
s_xor_b32 s87, s85, 1
s_mul_i32 s87, s87, 3072
s_add_u32 s87, s87, {WS_X}
v_lshrrev_b32 v{VW}, 3, v0
v_lshrrev_b32 v{VW+1}, 1, v{VW}
v_and_b32 v{VW+2}, 7, v0
v_xor_b32 v{VW+2}, v{VW+2}, v{VW+1}
v_lshlrev_b32 v{VW}, 13, v{VW}
v_lshl_add_u32 v{VW}, v{VW+2}, 4, v{VW}
v_xor_b32 v{VW+1}, 64, v{VW}
v_add_u32 v{VW+2}, 4096-2048, v{VW}
v_add_u32 v{VW+3}, 65536+4096-3072, v{VW+1}
v_add_u32 v{VW+1}, 65536-1024, v{VW+1}""") + stage_base(stride, base) + srd(8, 68, WS_SIZE) + srd(12, 58, 2048 * 4096)
def wdma(u, slot):
    return ([f"    s_add_u32 m0, s75, {slot * 4096}", f"    s_add_u32 s76, s74, {128 * u}"],
            [(f"    buffer_load_dwordx4 v{VW+q}, s[12:15], s76 offen offset:{1024*q} lds", ('w', u)) for q in range(4)])
def wreg(u, k, par): return ar(16 * u + 8 * k + 4 * par, 4)
def wread(u, slot):
    return [('need', 'vm', [('w', u)])] + [(f"    ds_read_b128 {wreg(u,k,p)}, v{VWR+k} offset:{slot*4096+2048*p}", ('wr', u)) for k in range(2) for p in range(2)]
def xfill(r):
    return [f"    v_mov_b32 v{r+k}, -1" for k in range(4)], [f"    buffer_store_dwordx4 {vr(r,4)}, v2, s[8:11], s87 offen offset:{1024*n} sc1" for n in range(3)]
def f1b_addr(v, t):
    return L(f"""v_subrev_u32 v{t}, 24, v0
v_min_u32 v{t}, 5, v{t}
v_lshl_add_u32 v{t}, v{t}, 3, s73
v_add_u32 v{v}, 64, v0
v_cmp_gt_u32 vcc, 24, v0
s_mov_b32 s29, {FL_F1B}
s_nop 0
v_cndmask_b32 v{v}, v{t}, v{v}, vcc
v_lshlrev_b32 v{v}, 4, v{v}""")
def wo_addr(w, n): return 18432 * w + 1024 * n if n < 18 else L_Z + 12288 * (2 + (n - 18) // 3) + 3072 * w + 1024 * ((n - 18) % 3)
def wo_pieces(lo, hi, tag):
    R = []
    while lo < hi:
        m = min(hi, lo + 4, 18) if lo < 18 else lo + 3
        R += [f"    s_add_u32 m0, s75, {1024*lo}" if lo < 18 else f"    s_add_u32 m0, s27, {wo_addr(0, lo) - L_Z}", f"    s_add_u32 s76, s84, {1024*lo}"] + lin_dma(m - lo, tag, 76)
        lo = m
    return R
def lin_dma(n, tag, sreg=27):
    return [(f"    buffer_load_dwordx4 v2, s[8:11], s{sreg} offen offset:{1024*q} sc1 lds", tag) for q in range(n)]
def win_early(S, mid=lambda: None):
    S.now(L(f"""s_mul_i32 s27, s71, 122880
s_mul_i32 s25, s20, 15360
s_add_u32 s27, s27, s25
s_add_u32 s27, s27, {WS_WIN}
s_mul_i32 s26, s20, {TW}
s_mov_b32 m0, s26
s_lshl_b32 s24, s20, 12""") + lin_dma(4, 'we') + L("s_add_u32 m0, m0, 4096\ns_add_u32 s27, s27, 4096") + lin_dma(4, 'we'))
    mid()
    S.now(L(f"s_add_u32 m0, s24, {L_U}\ns_add_u32 s27, s27, 4096") + lin_dma(4, 'we'))

def conv_role(a):
    P0, P2, DT, VPL, CUR = 16, 22, 28, 29, 30
    Z1, Z8, Z256, CB, T = 36, 38, 40, 42, 44
    CV, FR, KA, XR, ST, XF = 86, 100, 164, 180, 196, 212
    AD, VY, VYR, VU, VT, VP = 244, 249, 250, 251, 252, 3
    S = Sched(a)
    a(f"""L_conv:
    s_mul_i32 s23, s21, 20
    s_add_u32 s23, s23, s22            ; quad
    s_lshl_b32 s24, s23, 2
    s_add_u32 s24, s24, s20            ; channel
    s_mul_i32 s25, s24, 384
    v_lshl_add_u32 v7, v0, 1, s25
    v_lshl_add_u32 v14, v0, 2, s25
    s_lshl_b32 s25, s24, 1
    v_mov_b32 v15, s25
    v_mov_b32 v{DT}, 0""")
    for k in range(6): a(f"    v_mov_b32 v{P2+k}, 0")
    a(f"""    s_lshl_b32 s25, s23, 3
    v_mul_u32_u24 v4, 2560, v1
    v_add_u32 v4, s25, v4
    s_waitcnt lgkmcnt(0)""")
    S.put((f"    global_load_short_d16_hi v{DT}, v15, s[50:51]", 'p2'))
    for k in range(6): S.put((f"    global_load_short_d16_hi v{P2+k}, v7, s[{38+2*k}:{39+2*k}] offset:256", 'p2'))
    for k in range(6): S.put((f"    global_load_dword v{P0+k}, v14, s[{38+2*k}:{39+2*k}]", 'p0'))
    a("    s_load_dwordx2 s[30:31], s[52:53], s25")
    if O['xt']:
        a("""    s_mul_i32 s26, s22, 103
    v_lshrrev_b32 v48, 1, v1
    v_add_u32 v48, s26, v48
    v_min_u32 v48, 2047, v48
    v_mul_u32_u24 v48, 1280, v48
    v_and_b32 v49, 1, v1
    v_mul_u32_u24 v49, 156, v49
    s_mul_i32 s26, s21, 160
    v_add3_u32 v48, v48, v49, s26""")
    a("    s_barrier")
    if O['xt']: S.put("    global_load_dword v253, v48, s[36:37]")
    xq = []
    for j in range(4):
        xq += [(f"    global_load_dwordx2 {vr(XR+4*j,2)}, v4, s[36:37]", 'x'), (f"    global_load_dwordx2 {vr(XR+4*j+2,2)}, v4, s[36:37] offset:1280", 'x'),
               f"    v_add_u32 v4, {512*1280}, v4" if j < 3 else "    v_lshlrev_b32 v4, 4, v1"]
    def xnext(n):
        for _ in range(n):
            if xq: S.put(xq.pop(0))
            if xq and isinstance(xq[0], str): S.put(xq.pop(0))
    xnext(1)
    emit(a, common_ids(16384, L_W))
    mv, stx = xfill(ST)
    if O['xfp'] in (1, 3): S.now(mv)
    if O['xfp'] == 1: S.now(stx)
    a(f"""    s_mul_i32 s26, s20, {TW}
    s_mov_b32 m0, s26
    v_and_b32 v7, 31, v0
    v_mul_u32_u24 v7, {RS}, v7
    v_lshrrev_b32 v14, 5, v0
    v_lshl_add_u32 v7, v14, 4, v7
    v_add_u32 v7, s26, v7
    v_mov_b32 v48, 0x3f80
    v_mov_b32 v50, 0
    v_mov_b32 v51, 0
    s_mul_i32 s27, s20, 4608
    s_add_u32 s27, s27, {L_U}
    v_lshl_add_u32 v52, v0, 3, s27
    ds_write_addtid_b32 v48 offset:{32*RS}
    ds_write_b64 v52, v[50:51]
    v_add_u32 v14, 1, v5
    v_lshrrev_b32 v14, 1, v14
    v_lshlrev_b32 v14, 2, v14
    v_lshl_add_u32 v14, v6, 4, v14
    v_and_b32 v15, 1, v5
    v_mul_u32_u24 v15, 4160, v15
    v_add_u32 v14, v14, v15
    s_add_u32 s28, s26, {4160 + 4112 - 512 - 448}
    v_sub_u32 v{AD}, s28, v14
    v_subrev_u32 v{AD+1}, 1024, v{AD}
    v_subrev_u32 v{AD+2}, 2048, v{AD}
    v_subrev_u32 v{AD+3}, 3072, v{AD}
    v_lshlrev_b32 v14, 5, v5
    v_lshlrev_b32 v15, 4, v6
    v_sub_u32 v14, v14, v15
    s_add_u32 s28, s27, {512 + 16 - 448}
    v_add_u32 v{AD+4}, s28, v14
    v_lshlrev_b32 v{VU}, 2, v1
    v_add_u32 v{VU}, {L_U + 512}, v{VU}
    v_bfe_u32 v14, v5, 1, 2
    v_xor_b32 v14, v14, v6
    v_lshlrev_b32 v14, 4, v14
    v_lshl_add_u32 v14, v5, 6, v14
    s_add_u32 s28, s26, {YO}
    v_add_u32 v{VY}, s28, v14
    v_bfe_u32 v14, v1, 4, 2
    v_lshlrev_b32 v14, 4, v14
    v_lshlrev_b32 v15, 3, v1
    v_xor_b32 v14, v14, v15
    v_add_u32 v{VYR}, {YO}, v14
    s_add_u32 s28, s26, 1008
    v_sub_u32 v{VT}, s28, v2
    v_and_b32 v{VP}, 3, v0
    v_lshlrev_b32 v{VP}, 6, v{VP}
    v_mov_b32 v{VPL}, 16
    s_lshl_b32 s28, s22, 8
    v_add_u32 v14, s28, v1
    v_mul_u32_u24 v15, 6554, v14
    v_lshrrev_b32 v15, 16, v15
    v_mul_u32_u24 v15, {2048 - 10*128}, v15
    v_lshl_add_u32 v254, v14, 7, v15
    s_lshl_b32 s34, s21, 20
    s_add_u32 s34, s34, {6*128}""")
    emit(a, f1b_addr(15, 14))
    xnext(O['x0'] - 1)
    a(f"""    s_waitcnt lgkmcnt(0)
    s_and_b32 s33, s31, 0xffff0000
    s_lshl_b32 s32, s31, 16
    s_and_b32 s31, s30, 0xffff0000
    s_lshl_b32 s30, s30, 16""")
    S.put(('need', 'vm', ['p2']))
    a(f"    ; MARK 0\n    v_mul_f32 v{DT}, {f2u(LOG2E)}, v{DT}\n    v_exp_f32 v{DT}, v{DT}")
    emit(a, rbf(DT, DT))
    def setup(c):
        R = []
        if c == 0: p = [P2 + k for k in range(6)]
        else:
            p = [CUR + k for k in range(6)]
            for k in range(6): R.append(f"    v_lshlrev_b32 v{CUR+k}, 16, v{P0+k}" if c == 1 else f"    v_and_b32 v{CUR+k}, 0xffff0000, v{P0+k}")
        R += L(f"v_mul_f32 v{T}, v{DT}, v{p[0]}\nv_mul_f32 v{T+1}, v{DT}, v{p[1]}\nv_mul_f32 v{T}, {f2u(LOG2E)}, v{T}\nv_mul_f32 v{T+1}, 0.15915494, v{T+1}")
        ex = L(f"""v_mul_f32 v{CB}, v{p[2]}, v{p[4]}
v_mul_f32 v{CB+1}, v{p[2]}, v{p[5]}
v_fma_f32 v{CB}, -v{p[3]}, v{p[5]}, v{CB}
v_fma_f32 v{CB+1}, v{p[3]}, v{p[4]}, v{CB+1}
v_mul_f32 v{CB}, v{CB}, v{DT}
v_mul_f32 v{CB+1}, v{CB+1}, v{DT}""")
        for z, e in ((Z8, 8), (Z1, 1), (Z256, 256)):
            if e == 1: R += L(f"v_fract_f32 v{T+3}, v{T+1}\nv_exp_f32 v{T+2}, v{T}")
            else: R += L(f"v_mul_f32 v{T+3}, {f2u(float(e))}, v{T+1}\nv_mul_f32 v{T+2}, {f2u(float(e))}, v{T}\nv_fract_f32 v{T+3}, v{T+3}\nv_exp_f32 v{T+2}, v{T+2}")
            R += L(f"v_cos_f32 v{z}, v{T+3}\nv_sin_f32 v{z+1}, v{T+3}") + [ex.pop(0), ex.pop(0)] + L(f"v_mul_f32 v{z}, v{z}, v{T+2}\nv_mul_f32 v{z+1}, v{z+1}, v{T+2}")
        return R
    row = lambda rho, h: 8 * (rho >> 2) + 4 * h + (rho & 3)
    pend = []; nst = [0]; nfl = [0]
    def flushw():
        S.now(pend); pend.clear(); nst[0] = 0; nfl[0] += 1
        if nfl[0] % 2 == O['xp'] % 2: xnext(1)
    def val(ops, reg, rows, neg):
        t = CV + nst[0]; nst[0] += 1
        S.now(ops + [f"    v_cvt_pk_bf16_f32 v{t}, v{reg}, {'-' if neg else ''}v{reg+1}"])
        for r in rows: pend.append(f"    ds_write_addtid_b32 v{t} offset:{r*RS}")
        if len(pend) >= O['burst'] or nst[0] == 14: flushw()
    def chainB():
        val([], Z8, [33], False); prev = Z8
        for j in range(2, 32):
            d = 48 + 2 * (j & 1); val(cmul(d, prev, Z8), d, [32 + j], False); prev = d
        flushw()
    def chainA():
        val([], CB, [row(0, 0)], True); prev = CB; B0 = {0: CB}
        for k in range(1, 9):
            d = 52 + 2 * k; val(cmul(d, prev, Z1), d, [row(k, 0)], True); prev = d; B0[k] = d
        pat = [0, 0, 2, 4, 4, 4, 6, 8, 8]; cur = {}
        for n, off in enumerate([0, 2, 4, 6, 8]):
            d = 70 + 2 * n; cur[off] = d
            val(cmul(d, B0[off], Z256), d, [row(r, 1) for r in range(9) if pat[r] == off], True)
        alt = {0: 80, 4: 82, 8: 84}
        for (blk, offs) in ((2, [0, 4, 8]), (3, [0, 4, 8]), (4, [0, 8]), (5, [0, 8]), (6, [0, 8]), (7, [0, 8])):
            base = {2: 9, 3: 9, 4: 12, 5: 12, 6: 14, 7: 14}[blk]
            for n, off in enumerate(offs):
                d = alt[off]; alt[off] = cur[off]
                val(cmul(d, cur[off], Z256), d, [row(base + n, blk & 1)], True); cur[off] = d
        flushw()
    emit(a, setup(0))
    poll1 = f"    global_load_dword v{VPL}, v{VP}, s[66:67] sc1"
    unpack = []
    for j in range(4):
        for par in range(2):
            for h in range(2):
                r = XR + 4 * j + 2 * par + h
                unpack += [f"    v_lshlrev_b32 v{XF+8*j+4*h+par}, 16, v{r}", f"    v_and_b32 v{XF+8*j+4*h+2+par}, 0xffff0000, v{r}"]
    wp = []
    def wnext():
        if wp: S.now(wp.pop(0))
    for c in range(3):
        chainB()
        S.now([(f"    ds_read_b128 {vr(FR+8*kk+4,4)}, v7 offset:{32*kk+32*RS}", ('b', kk)) for kk in range(8)])
        if c == 2:
            assert not xq
            a(f"    s_cmp_lg_u32 s20, 0\n    s_cbranch_scc1 L_np1\n{poll1}\nL_np1:")
        chainA()
        S.now([(f"    ds_read_b128 {vr(FR+8*kk,4)}, v7 offset:{32*kk}", ('a', kk)) for kk in range(8)])
        if O['kgmarks']: a(f"    ; MARK {25 + c}")
        if c == 0: S.put(('need', 'vm', ['p0']))
        if c < 2:
            S.q = setup(c + 1)
            if O['xfp'] == 3: S.q = S.q[:8] + stx[c:c+1] + S.q[8:24] + stx[c+2:c+3] + S.q[24:]
        else:
            a("    s_waitcnt vmcnt(0)"); S.vm.q = []
            if O['kgmarks']: a("    ; MARK 12")
            emit(a, recheck("S1", [poll1], [f"    v_cmp_gt_u32 vcc, 16, v{VPL}"]))
            a(f"    s_barrier\n    ; MARK 1\n    s_mov_b32 s28, {WS_ST1}")
            for j in range(4):
                S.put((f"    buffer_load_dwordx4 {vr(ST+4*j,4)}, v4, s[8:11], s28 offen sc1", ('st', j)))
                if j < 3: a("    s_add_u32 s28, s28, 4096")
            for u in range(O['wpre']):
                pre, d = wdma(u, u); wp.extend([pre + d[:1], d[1:2], d[2:3], d[3:]])
            wp.insert(min(len(wp), O['ctpos']), ["    buffer_load_dword v253, v254, s[12:15], s34 offen"] * O['ct'])
            mix = unpack
            S.q = mix + L("v_lshl_add_u32 v84, v0, 2, s26") + L("v_and_b32 v14, 1, v0\nv_cmp_eq_u32 vcc, 1, v14\nv_mov_b32 v81, 0\nv_cmp_eq_u32 s[24:25], 0, v0")
        S.gap(24)
        for kk in range(8):
            S.put(('need', 'lg', [('a', kk)]))
            a(f"    v_mfma_f32_32x32x16_bf16 {vr(KA,16)}, {vr(FR+8*kk,4)}, {vr(FR+8*kk+4,4)}, {vr(KA,16) if (c or kk) else '0'}")
            S.gap(24, wp.pop(0) if (wp and kk in (3, 5, 7)) else ())
        S.flush()
        if O['kgmarks'] and c < 2: a(f"    ; MARK {28 + c}")
    a("    ; MARK 2")
    V = lambda r: KA + r
    a(f"    v_cndmask_b32 v82, v{V(12)}, v{V(13)}, vcc\n    v_cndmask_b32 v83, v{V(14)}, v{V(15)}, vcc")
    a(f"    v_cvt_pk_bf16_f32 v80, v{V(0)}, v81\n    v_cndmask_b32 v80, v81, v80, s[24:25]")
    emap = [[V(k) for k in range(9)], [V(9)] * 3 + [V(10)] * 3 + [V(11)] * 3,
            [V(12)] * 4 + [82] + [V(13)] * 4, [V(14)] * 4 + [83] + [V(15)] * 4]
    tw = []
    for G in range(4):
        e = emap[G]; o = 48 + 8 * G
        for k in range(4): a(f"    v_cvt_pk_bf16_f32 v{o+k}, v{e[7-2*k]}, v{e[6-2*k]}")
        for k in range(4): a(f"    v_cvt_pk_bf16_f32 v{o+4+k}, v{e[8-2*k]}, v{e[7-2*k]}")
        tw += [f"    ds_write_b128 v{VT}, {vr(o,4)} offset:{3072-1024*G}", f"    ds_write_b128 v{VT}, {vr(o+4,4)} offset:{4160+3072-1024*G}"]
        S.put(tw.pop(0)); wnext()
        if G == 0:
            a("    s_mov_b64 exec, 0xffff")
            S.now(["    ds_write_b32 v84, v81 offset:4096", f"    ds_write_b32 v84, v80 offset:{4160+4096}"])
            a("    s_mov_b64 exec, -1")
    ACC, SET, UF = 16, [48, 112], 112
    a("    ; MARK 3")
    for j in range(4):
        S.put(('need', 'vm', [('st', j)]))
        for c in range(4):
            a(f"    v_pk_fma_f32 {vr(UF+8*j+2*c,2)}, {vr(XF+8*j+2*c,2)}, {vr(ST+4*j,2)}, {vr(ST+4*j+2,2)} neg_lo:[0,0,1] neg_hi:[0,0,1]")
        for c in range(4): a(f"    v_cvt_pk_bf16_f32 v{144+4*j+c}, v{UF+8*j+2*c}, v{UF+8*j+2*c+1}")
        S.put(tw.pop(0)); wnext()
    def rdA(r):
        R = []
        for p in range(8):
            o = (128 if p % 2 == 0 else 0) + 16 * (7 - r); d = SET[r & 1] + 4 * p
            R += [(f"    ds_read2_b32 {vr(d,2)}, v{AD+p//2} offset0:{o} offset1:{o+1}", ('A', r, p)),
                  (f"    ds_read2_b32 {vr(d+2,2)}, v{AD+p//2} offset0:{o+2} offset1:{o+3}", ('A', r, p))]
        return R
    def rdB(r): return [(f"    ds_read_b128 {vr(SET[r&1]+32+4*q,4)}, v{AD+4} offset:{512*q+64*(7-r)}", ('B', r, q)) for q in range(8)]
    for jj in (1, 3):
        for c in range(4): S.put((f"    ds_write2st64_b32 v{VU}, v{144+4*(jj-1)+c}, v{144+4*jj+c} offset0:{18*c+4*(jj-1)} offset1:{18*c+4*jj}", 'uw'))
        wnext()
        if jj == 3: S.now(rdA(0)[:12])
        for j in (jj - 1, jj):
            for c in range(4):
                a(f"    v_pk_fma_f32 {vr(XF+8*j+2*c,2)}, {vr(UF+8*j+2*c,2)}, s[{30+2*(c>>1)}:{31+2*(c>>1)}], {vr(XF+8*j+2*c,2)} op_sel:[0,{c&1},0] op_sel_hi:[1,{c&1},1]")
    while wp: wnext()
    S.put(('need', 'lg', ['uw']))
    a("    s_barrier\n    ; MARK 4")
    S.now(rdB(0)[:1] + rdA(0)[12:] + rdB(0)[1:])
    poll1b = f"    buffer_load_dword v14, v15, s[8:11], s29 offen sc1"
    NP = O['wpre']; ev = {}
    def at(k, xs): ev.setdefault(k, []).extend(xs)
    span = (288 - O['wend'] - O['k00'] + 14) // (16 - NP)
    for u in range(NP, 16):
        k0 = O['k00'] + span * (u - NP)
        pre, d = wdma(u, u & 3)
        if u >= 4:
            w = wread(u - 4, u & 3)
            at(k0 - 13, w[:1])
            for q, o in enumerate((12, 11, 8, 7)): at(k0 - o, w[1+q:2+q])
            at(k0 - 1, [('need', 'lg', [('wr', u - 4)])])
        at(k0 - 3, pre[:1]); at(k0 - 2, pre[1:])
        for q in range(4): at(k0 + (q * (span - 4)) // 3, d[q:q+1])
    late = []
    for n, u in enumerate(range(12, 16)):
        w = wread(u, u & 3); k0 = max(252 + 5 + 7 * n, O['k00'] + span * (u - NP + 1) + 36)
        if k0 + 5 > 288: late += w; continue
        at(k0, w[:1])
        for q in range(4): at(k0 + 1 + q, w[1+q:2+q])
    assert max(ev) < 288 and min(ev) >= 0
    kk = 0
    for r in range(8):
        st = r & 1
        S.q += rdA(r + 1) + rdB(r + 1) if r < 7 else []
        if r == 0: S.q += L("s_lshl_b32 s28, s23, 14")
        if r == 6: S.q.append((poll1b, 'p1b'))
        for q in range(8):
            for p in range(8 - q):
                if r == 0: S.put(('need', 'lg', [('A', r, p), ('B', r, q)]))
                elif p == 0 and q == 0: S.put(('need', 'lg', [('A', r, 7), ('B', r, 1)]))
                elif p == 0 and q == 2: S.put(('need', 'lg', [('B', r, 7)]))
                c = vr(ACC + 4 * (p + q), 4)
                a(f"    v_mfma_f32_16x16x32_bf16 {c}, {vr(SET[st]+4*p,4)}, {vr(SET[st]+32+4*q,4)}, {c if (r or q) else '0'}")
                if r == 7 and p == 2 and q >= 1: S.put(f"    ds_write_b128 v{VY}, {vr(ACC+4*(q-1),4)} offset:{1024*(q-1)}")
                e = ev.get(kk, [])
                isds = any(isinstance(x, tuple) and x[0].split()[0].startswith("ds_") for x in e)
                left = 36 * (r + 1) - kk - 4
                if kk >= 4 or e: S.gap(4 if (not e or (isds and len(S.q) < left - 6)) else 8, e)
                kk += 1
        S.flush()
        if O['cvmarks'] and r in (1, 3, 5): a(f"    ; MARK {25 + r // 2}")
    a("    ; MARK 5")
    S.put(('need', 'vm', ['p1b']))
    emit(a, recheck("S1b", [poll1b], ["    v_cmp_eq_u32 vcc, -1, v14"]))
    for J in range(5, 8): S.put(f"    ds_write_b128 v{VY}, {vr(ACC+4*J,4)} offset:{1024*J}")
    a("    s_waitcnt lgkmcnt(0)\n    s_barrier")
    S.lg.q = []
    for j in range(4):
        for c in range(4): S.put((f"    ds_read_b64 {vr(48+8*j+2*c,2)}, v{VYR} offset:{TW*c+2048*j}", ('y', j)))
    for j in range(4):
        S.put(('need', 'lg', [('y', j)]))
        b = 48 + 8 * j
        for c in range(4): a(f"    v_pk_add_f32 {vr(b+2*c,2)}, {vr(b+2*c,2)}, {vr(XF+8*j+2*c,2)}")
        for par in range(2):
            for h in range(2): a(f"    v_cvt_pk_bf16_f32 v{80+4*j+2*par+h}, v{b+4*h+par}, v{b+4*h+2+par}")
        S.put((f"    buffer_store_dwordx4 {vr(80+4*j,4)}, v4, s[8:11], s28 offen sc1", 'h'))
        if j < 3: a("    s_add_u32 s28, s28, 4096")
    a("    ; MARK 6")
    S.now(late)
    win_early(S)
    a(f"""    s_lshl_b32 s28, s2, 4
    s_add_u32 s28, s28, {FL_F2}
    s_lshl_b32 s29, s2, 7
    s_add_u32 s29, s29, {FL_F2P}
    v_mov_b32 v14, s28
    v_mov_b32 v15, 1
    v_writelane_b32 v14, s29, 1""")
    S.put(('need', 'vm', ['h']))
    a(f"""    s_waitcnt lgkmcnt(0)
    s_barrier
    ; MARK 7
    s_cmp_lg_u32 s20, 0
    s_cbranch_scc1 L_common
    s_mov_b64 exec, 3
    buffer_store_dword v15, v14, s[8:11], 0 offen sc1
    s_mov_b64 exec, -1""")

def flag_store(a, skip, saddr):
    a(f"""    s_barrier
    s_cmp_lg_u32 s20, 0
    s_cbranch_scc1 {skip}
    s_mov_b64 exec, 1
    buffer_store_dword v0, v0, s[8:11], s{saddr} offen sc1
    s_mov_b64 exec, -1
{skip}:""")

TL = "    buffer_load_dword v61, v60, s[12:15], s33 offen"
def touch_set(line0, lg, rows):
    return L(f"""{rows}
s_lshl_b32 s33, s21, 20
s_add_u32 s33, s33, s34
s_add_u32 s33, s33, {128*line0}
v_lshrrev_b32 v60, {lg}, v1
v_lshlrev_b32 v60, 11, v60
v_and_b32 v61, {(1 << lg) - 1}, v1
v_lshl_add_u32 v60, v61, 7, v60""")
def helper_role(a):
    HS, HB, HN = 20480, 81920, 5
    a("L_help:")
    emit(a, common_ids(HS, HB))
    a(f"""    v_mov_b32 v56, -1
    v_mov_b32 v57, -1
    v_mov_b32 v58, -1
    v_mov_b32 v59, -1
    v_lshlrev_b32 v4, 4, v1
    s_lshl_b32 s28, s23, 13
    s_add_u32 s28, s28, {WS_FL}
    s_add_u32 s29, s28, 4096
    buffer_store_dwordx4 v[56:59], v4, s[8:11], s28 offen sc1
    buffer_store_dwordx4 v[56:59], v4, s[8:11], s29 offen sc1
    v_mov_b32 v62, 0x3f803f80
    v_lshrrev_b32 v7, 1, v3
    v_lshlrev_b32 v7, 4, v7
    v_and_b32 v15, 1, v3
    v_lshl_add_u32 v7, v15, 2, v7
    v_lshl_add_u32 v7, v14, 3, v7
    v_cmp_eq_u32 vcc, 1, v14
    s_mov_b32 s28, {WS_ST1}""")
    for q in range(10):
        a(f"    s_waitcnt vmcnt({11-q})")
        if q == 9: a("    ; MARK 0")
        for k in range(4):
            z = (q or k)
            a(f"    v_dot2_f32_bf16 v60, v{16+4*q+k}, v62, {'v60' if z else '0'}")
            a(f"    v_dot2_f32_bf16 v61, v{16+4*q+k}, v{16+4*q+k}, {'v61' if z else '0'}")
    for m in ("row_half_mirror", "quad_perm:[2,3,0,1]", "quad_perm:[1,0,3,2]"):
        a(f"    v_add_f32_dpp v60, v60, v60 {m} row_mask:0xf bank_mask:0xf")
        a(f"    v_add_f32_dpp v61, v61, v61 {m} row_mask:0xf bank_mask:0xf")
    emit(a, ln_scalars(60, 61, 640, 64, 63, 65))
    a(f"""    v_cndmask_b32 v63, v63, v64, vcc
    s_mov_b32 exec_lo, 0x03030303
    s_mov_b32 exec_hi, 0x03030303
    buffer_store_dword v63, v7, s[8:11], s28 offen sc1
    s_mov_b64 exec, -1
    s_and_b32 s29, s2, 3
    s_lshl_b32 s29, s29, 6
    v_mov_b32 v66, s29
    v_mov_b32 v67, 1
    s_waitcnt vmcnt(0)
    s_barrier
    s_cmp_lg_u32 s20, 0
    s_cbranch_scc1 L_ar
    s_mov_b64 exec, 1
    global_atomic_add v66, v67, s[66:67] sc1
    s_mov_b64 exec, -1
L_ar:
    ; MARK 1
    s_cmp_lt_u32 s23, 48
    s_cbranch_scc1 L_hout""")
    emit(a, touch_set(2, 2, "s_sub_u32 s34, s22, 20\ns_lshl_b32 s34, s34, 17"))
    a(TL)
    a(f"""    s_branch L_hdone
L_nostat:
    s_waitcnt lgkmcnt(0)""")
    emit(a, common_ids(HS, HB))
    if O['hdelay']: a("    s_waitcnt vmcnt(0)")
    a("    ; MARK 1\n    s_cmp_lt_u32 s23, 88\n    s_cbranch_scc1 L_hin")
    emit(a, touch_set(0, 1, "s_mov_b32 s34, 0"))
    for q in range(4): a(f"{TL}\n    s_add_u32 s33, s33, {128*2048}")
    a("    s_branch L_hdone\nL_hin:")
    emit(a, srd(16, 56, 640 * 1536 * 2))
    a(f"""    s_sub_u32 s25, s23, 64
    v_lshrrev_b32 v7, 3, v0
    v_mul_u32_u24 v7, 3072, v7
    v_and_b32 v3, 7, v0
    v_lshl_add_u32 v7, v3, 4, v7
    s_mul_i32 s27, s20, {8*3072}
    s_lshl_b32 s28, s25, 7
    s_add_u32 s27, s27, s28
    s_lshl_b32 m0, s20, 10""")
    for q in range(20):
        a("    buffer_load_dwordx4 v7, s[16:19], s27 offen lds")
        if q < 19: a(f"    s_add_u32 m0, m0, 4096\n    s_add_u32 s27, s27, {32*3072}")
    a(f"""    v_bfe_u32 v7, v0, 2, 2
    v_lshl_add_u32 v7, v6, 3, v7
    v_lshlrev_b32 v7, 7, v7
    v_and_b32 v3, 3, v0
    v_lshl_add_u32 v7, v3, 3, v7
    s_lshl_b32 s28, s20, 5
    v_add_u32 v7, s28, v7
    s_lshl_b32 s27, s25, 2
    s_add_u32 s27, s27, s20
    s_cmp_ge_u32 s27, 48
    s_cselect_b32 s28, 48, 0
    s_cselect_b32 s29, 0, 60
    s_sub_u32 s28, s27, s28
    s_mul_i32 s30, s28, 43691
    s_lshr_b32 s30, s30, 17
    s_mul_i32 s31, s30, 3
    s_sub_u32 s31, s28, s31
    s_add_u32 s31, s31, s29            ; slot
    s_mul_i32 s30, s30, 120
    s_add_u32 s30, s30, s31
    s_lshl_b32 s30, s30, 10
    s_add_u32 s30, s30, {WS_WIN}
    v_mov_b32 v96, 0
    v_mov_b32 v98, 0x3f803f80""")
    for hf in range(2):
        a(f"    s_waitcnt vmcnt(10)\n    s_barrier")
        for ks in range(10):
            a(f"    ds_read_b64_tr_b16 {vr(16+40*hf+4*ks,2)}, v7 offset:{4096*ks}")
            a(f"    ds_read_b64_tr_b16 {vr(18+40*hf+4*ks,2)}, v7 offset:{4096*ks+512}")
        if hf == 0: a("    v_add_u32 v7, 40960, v7")
        for ks in range(10):
            a(f"    s_waitcnt lgkmcnt({min(15,18-2*ks)})")
            a(f"    buffer_store_dwordx4 {vr(16+40*hf+4*ks,4)}, v2, s[8:11], s30 offen sc1")
            a(f"    s_add_u32 s30, s30, 3072")
            for k in range(4): a(f"    v_dot2_f32_bf16 v96, v{16+40*hf+4*ks+k}, v98, v96")
    emit(a, allreduce_g(96, 97))
    a(f"""    s_lshl_b32 s27, s27, 6
    s_add_u32 s27, s27, {WS_CS}
    v_lshlrev_b32 v7, 2, v5
    buffer_store_dword v96, v7, s[8:11], s27 offen sc1
    s_branch L_hdone
L_hout:""")
    S = Sched(a)
    emit(a, srd(16, 62, 768 * 640 * 2))
    a(f"""    s_and_b32 s24, s23, 7              ; d block
    s_lshr_b32 s25, s23, 3
    s_lshl_b32 s25, s25, 2
    s_add_u32 s25, s25, s20            ; k step
    s_mul_i32 s30, s25, 43691
    s_lshr_b32 s30, s30, 17
    s_mul_i32 s31, s30, 3
    s_sub_u32 s31, s25, s31            ; 0 / 1 (mixed) / 2
    s_mul_i32 s30, s30, 96
    s_mul_i32 s32, s31, 24
    s_cmp_eq_u32 s31, 1
    s_cselect_b32 s32, 32, s32
    s_cselect_b32 s33, {32*1280}, 0
    s_movk_i32 s34, {4*160}
    s_cmovk_i32 s34, {8*160}
    s_movk_i32 s79, {16*160}
    s_cmovk_i32 s79, {4*160}
    s_add_u32 s30, s30, s32
    s_mul_i32 s26, s30, 1280
    s_mul_i32 s27, s24, 160
    s_add_u32 s26, s26, s27
    s_mul_i32 s27, s20, 5120
    s_mov_b32 m0, s27""")
    for q in range(5):
        a(f"""    v_add_u32 v7, {64*q}, v0
    v_mul_u32_u24 v3, 6554, v7
    v_lshrrev_b32 v3, 16, v3
    v_lshrrev_b32 v15, 4, v3
    v_mul_u32_u24 v3, 1120, v3
    v_lshl_add_u32 v7, v7, 4, v3
    v_mad_u32_u24 v7, v15, s33, v7""")
        S.put(("    buffer_load_dwordx4 v7, s[16:19], s26 offen lds", 'r'))
        if q < 4: a("    s_add_u32 m0, m0, 1024")
    a(f"""    v_bfe_u32 v56, v0, 2, 2
    v_mul_u32_u24 v56, 160, v56
    v_mad_u32_u24 v56, v6, s34, v56
    v_add_u32 v56, s27, v56
    v_and_b32 v3, 3, v0
    v_lshl_add_u32 v57, v3, 3, v56
    v_lshl_add_u32 v56, v3, 4, v56
    v_add_u32 v58, s79, v56
    v_add_u32 v59, s79, v57""")
    emit(a, touch_set(2, 2, "s_sub_u32 s34, s22, 20\ns_lshl_b32 s34, s34, 17"))
    S.put((TL, 't'))
    a(f"""    s_mul_i32 s28, s25, 43691
    s_lshr_b32 s28, s28, 18
    s_mul_i32 s28, s28, 6
    s_sub_u32 s29, s25, s28
    s_lshl_b32 s29, s29, 2
    s_lshr_b32 s29, 0x352140, s29
    s_and_b32 s29, s29, 15
    s_add_u32 s25, s28, s29
    s_mul_i32 s28, s24, 24
    s_add_u32 s28, s28, s25
    s_mul_i32 s28, s28, 5120
    s_add_u32 s28, s28, {WS_WOUT}
    s_add_u32 s29, s28, 4096""")
    S.put(('need', 'vm', ['r']))
    for t in range(5):
        ad, o = (56, 64 * (t >> 1) + 8 * (t & 1)) if t < 4 else (57, 128)
        a(f"    ds_read_b64_tr_b16 {vr(16+4*t,2)}, v{ad} offset:{o}")
        a(f"    ds_read_b64_tr_b16 {vr(18+4*t,2)}, v{ad+2} offset:{o}")
    for t in range(5):
        a(f"    s_waitcnt lgkmcnt({8-2*t})")
        if t < 4: a(f"    buffer_store_dwordx4 {vr(16+4*t,4)}, v2, s[8:11], s28 offen offset:{1024*t} sc1")
        else: a(f"    buffer_store_dwordx4 {vr(16+4*t,4)}, v2, s[8:11], s29 offen sc1")
    a("L_hdone:\n    ; MARK 2")
    S = Sched(a)
    p1 = "    global_load_dword v14, v7, s[66:67] sc1"
    p1b = "    buffer_load_dword v14, v3, s[8:11], s29 offen sc1"
    a(f"""    v_and_b32 v7, 3, v0
    v_lshlrev_b32 v7, 6, v7""")
    emit(a, f1b_addr(3, 4))
    mv, stx = xfill(100)
    if O['xfp'] != 2: emit(a, mv + stx)
    for u in range(3):
        pre, d = wdma(u, u); S.now(pre + d)
        if u == 1: S.put((p1, 'p1'))
    S.put(('need', 'vm', ['p1']))
    emit(a, recheck("H1", [p1], ["    v_cmp_gt_u32 vcc, 16, v14"], sleep=8))
    a(f"""    s_barrier
    s_cmp_lg_u32 s20, 0
    s_cbranch_scc1 L_f1b
    s_lshl_b32 s28, s23, 4
    s_add_u32 s28, s28, s29
    s_mov_b64 exec, 1
    buffer_store_dword v0, v0, s[8:11], s28 offen sc1
    s_mov_b64 exec, -1
L_f1b:
    ; MARK 3""")
    for u in range(3, HN):
        pre, d = wdma(u, u); S.now(pre + d)
    for u in range(16 - HN):
        S.now(wread(u, u % HN))
        if u + HN == 14: S.put((p1b, 'p1b'))
        pre, d = wdma(u + HN, u % HN)
        S.now([('need', 'lg', [('wr', u)])] + pre + d)
    S.put(('need', 'vm', ['p1b']))
    emit(a, recheck("H1b", [p1b], ["    v_cmp_eq_u32 vcc, -1, v14"], sleep=4))
    a("    ; MARK 4")
    def mid():
        for u in range(16 - HN, 16): S.now(wread(u, u % HN))
        a("    s_waitcnt lgkmcnt(0)\n    s_barrier\n    ; MARK 7")
    win_early(S, mid)
    a("    s_branch L_common")

def g1(a, S):
    A2, BF, RR, CS2, SX, SA, T0, VB = 16, [40, 52], 64, 80, 84, 88, 92, 91
    A1, CS1, RL, X3, R3 = 64, 206, 218, 222, 238
    XS, VA, KK = RR, 1, 14
    HB = lambda s: WV + 8 * s
    def z1dma(lo, hi):
        R = []
        while lo < hi:
            m = min(hi, lo + 4)
            R += L(f"s_add_u32 m0, s25, {L_R + 1024*lo}\ns_add_u32 s76, s27, {1024*lo}") + lin_dma(m - lo, 'w1', 76); lo = m
        return R
    a("L_common:")
    S.now(L(f"s_add_u32 m0, s26, {YO}\ns_add_u32 s27, s27, 4096") + lin_dma(3, 'wl') + L(f"s_add_u32 s27, s27, {61440 - 12288}") + z1dma(0, O['nz']))
    a(f"""    s_mul_i32 s79, s71, 192
    s_add_u32 s79, s79, {WS_CS}
    v_lshlrev_b32 v{SA}, 2, v5
    v_lshlrev_b32 v{SA+1}, 4, v6""")
    for t in range(3): a(f"    buffer_load_dword v{CS2+t}, v{SA}, s[8:11], s79 offen offset:{3072+64*t} sc1")
    a(f"""    s_mul_i32 s75, s20, 18432
    s_mul_i32 s84, s73, 122880
    s_mul_i32 s76, s20, 30720
    s_add_u32 s84, s84, s76
    s_add_u32 s84, s84, {WS_WOUT}""")
    a(f"""    v_min_u32 v40, 39, v0
    s_mul_i32 s28, s20, 640
    s_add_u32 s28, s28, {FL_F2}
    v_lshlrev_b32 v40, 4, v40
    v_lshlrev_b32 v14, 15, v6
    v_lshl_add_u32 v14, v5, 4, v14       ; quad 2g
    v_add_u32 v15, 16384, v14            ; quad 2g+1
    s_lshl_b32 s26, s78, 8
    v_lshrrev_b32 v7, 2, v0
    v_lshlrev_b32 v7, 14, v7
    v_and_b32 v4, 3, v0
    v_lshl_add_u32 v7, v4, 4, v7
    v_lshlrev_b32 v{T0}, 4, v4
    v_cmp_eq_u32 s[80:81], 1, v4
    v_cmp_eq_u32 s[82:83], 2, v4
    v_cmp_eq_u32 s[18:19], 3, v4
    v_lshlrev_b32 v{VA}, 4, v4
    v_lshl_add_u32 v{VA}, v6, 6, v{VA}
    v_bfe_u32 v4, v0, 2, 1
    v_lshl_add_u32 v{VA}, v4, 3, v{VA}
    v_bfe_u32 v4, v0, 3, 1
    v_lshl_add_u32 v{VA}, v4, 2, v{VA}
    v_and_b32 v4, 12, v0
    v_add_u32 v{T0}, v{T0}, v4
    v_add_u32 v3, 65536, v2
    v_add_u32 v4, 131072, v2
    v_mov_b32 v{T0+1}, 0x3f803f80
    s_lshl_b32 s29, s70, 4
    s_add_u32 s29, s29, s71
    s_lshl_b32 s30, s29, 6
    s_mul_i32 s31, s20, {40*16384}
    s_add_u32 s30, s30, s31
    s_add_u32 s31, s30, {16*16384}
    s_add_u32 s32, s30, {32*16384}
    s_and_b32 s33, s29, 3
    s_lshl_b32 s33, s33, 6
    s_and_b32 s29, s29, -4
    s_add_u32 s29, s29, s20
    s_lshl_b32 s29, s29, 8
    s_add_u32 s29, s29, s33
    s_add_u32 s29, s29, {FL_L2X}
    s_lshl_b32 s33, s78, 10
    s_add_u32 s33, s33, {FL_L2X}
    s_lshl_b32 s24, s20, 8
    s_add_u32 s24, s24, {L_S}""")
    for k in range(4): a(f"    v_mov_b32 v{XS+8+k}, 0")
    a(f"""    s_cmp_lt_u32 s2, 160
    s_cbranch_scc1 L_s2
    s_lshl_b32 s34, s2, 7
    s_add_u32 s34, s34, {FL_F2P - 160 * 128}""")
    spin(a, "H2p", [f"    buffer_load_dword v41, off, s[8:11], s34 sc1"], [f"    v_cmp_eq_u32 vcc, -1, v41"], sleep=4)
    a(f"    s_cmp_eq_u32 s35, 0x7fff\n    s_cbranch_scc1 L_s2\n    s_sleep {O['hsleep']}\nL_s2:\n    ; MARK 8")
    spin(a, "S2", [f"    buffer_load_dword v41, v40, s[8:11], s28 offen sc1"], [f"    v_cmp_eq_u32 vcc, -1, v41"])
    a("    s_barrier\n    ; MARK 9")
    S.vm.q = []; S.lg.q = []
    xsl = [(f"    buffer_load_dwordx4 {vr(XS,4)}, v7, s[8:11], s30 offen sc1", 'x'), (f"    buffer_load_dwordx4 {vr(XS+4,4)}, v7, s[8:11], s31 offen sc1", 'x'),
           "    s_mov_b32 exec_hi, 0", (f"    buffer_load_dwordx4 {vr(XS+8,4)}, v7, s[8:11], s32 offen sc1", 'x'), "    s_mov_b32 exec_hi, -1"]
    def aload(s):
        return [(f"    buffer_load_dwordx4 {vr(HB(s),4)}, v14, s[8:11], s26 offen sc1", s), (f"    buffer_load_dwordx4 {vr(HB(s)+4,4)}, v15, s[8:11], s26 offen sc1", s),
                f"    s_add_u32 s26, s26, {8*16384}"]
    NPRE = O['npre']
    for s in range(NPRE): S.now(aload(s))
    S.now(xsl)
    def bread(half, idx, s, t): return (f"    ds_read_b128 {vr(BF[idx&1]+4*t,4)}, {lds_op(win_addr(half, s, t))}", ('b', half, idx, t))
    S.now([bread(0, s, s, t) for s in range(2) for t in range(3)])
    a(f"""    v_add_u32 v{SA}, s24, v{SA}          ; scratch + 4i
    v_add_u32 v{SA+1}, s24, v{SA+1}      ; scratch + 16g
    v_and_b32 v{SA+2}, 1, v6
    v_lshl_add_u32 v{SA+2}, v{SA+2}, 6, v{SA}""")
    def dots():
        S.put(('need', 'vm', ['x']))
        for k in range(6):
            e = XS + 4 * (k >> 1) + (k & 1); o = e + 2
            z = lambda r: f"v{r}" if k else "0"
            a(f"    v_dot2_f32_bf16 v{SX}, v{e}, v{T0+1}, {z(SX)}\n    v_dot2_f32_bf16 v{SX+1}, v{e}, v{e}, {z(SX+1)}")
            a(f"    v_dot2_f32_bf16 v{SX+2}, v{o}, v{T0+1}, {z(SX+2)}\n    v_dot2_f32_bf16 v{SX+3}, v{o}, v{o}, {z(SX+3)}")
        S.now(L(f"""v_add_f32_dpp v{SX}, v{SX}, v{SX} row_ror:8 row_mask:0xf bank_mask:0x3
v_add_f32_dpp v{SX+1}, v{SX+1}, v{SX+1} row_ror:8 row_mask:0xf bank_mask:0x3
v_add_f32_dpp v{SX}, v{SX+2}, v{SX+2} row_ror:8 row_mask:0xf bank_mask:0xc
v_add_f32_dpp v{SX+1}, v{SX+3}, v{SX+3} row_ror:8 row_mask:0xf bank_mask:0xc
v_add_f32_dpp v{SX}, v{SX}, v{SX} row_shl:4 row_mask:0xf bank_mask:0x5
v_add_f32_dpp v{SX}, v{SX+1}, v{SX+1} row_shr:4 row_mask:0xf bank_mask:0xa""") + allreduce_g(SX, SX + 1)
              + [f"    buffer_store_dword v{SX}, v{T0}, s[8:11], s29 offen sc1"])
    def swaps(s): return [('need', 'vm', [s]), f"    v_swap_b32 v{HB(s)+2}, v{HB(s)+4}", f"    v_swap_b32 v{HB(s)+3}, v{HB(s)+5}"]
    S.now(swaps(0))
    a("    ; MARK 10")
    l2load = f"    buffer_load_dwordx4 {vr(SX,4)}, v2, s[8:11], s33 offen sc1"
    l2chk = L(f"v_max3_u32 v{T0}, v{SX}, v{SX+1}, v{SX+2}\nv_max_u32 v{T0}, v{T0}, v{SX+3}\nv_cmp_eq_u32 vcc, -1, v{T0}")
    def bcast(t, R):
        return [(f"    ds_write2_b32 v{SA+2}, v{t}, v{t+1} offset1:32", 'sw')] + [(f"    ds_read_b128 {vr(R+4*k,4)}, v{SA+1} offset:{64*k}", 'rr') for k in range(4)]
    c0 = -2.0 * math.sqrt(2.0 / math.pi) * LOG2E
    nxt = NPRE
    tailq = z1dma(O['nz'], 15)
    for s in range(20):
        forced = {k: [] for k in range(6)}
        for n in range(2):
            if nxt < 20 and nxt - s <= O['lead']:
                x = aload(nxt); forced[2 * n] += x[:1]; forced[2 * n + 1] += x[1:]
                if nxt == O['l2_ld']: forced[2 * n + 1].append((l2load, 'l2'))
                nxt += 1
        if nxt == 20 and not forced[0]:
            for k in ((0, 1, 2, 3) if len(tailq) > 8 else (0, 2)): forced[k] += tailq[:1]; tailq = tailq[1:]
        if s + 2 < 20:
            for t in range(3): forced[2 * t + 1].append(bread(0, s + 2, s + 2, t))
        if s < 19: forced[4] += swaps(s + 1)
        S.put(('need', 'lg', [('b', 0, s, 2)]))
        for t in range(3):
            for par in range(2):
                c = vr(A2 + 8 * t + 4 * par, 4)
                a(f"    v_mfma_f32_16x16x32_bf16 {c}, {vr(HB(s)+4*par,4)}, {vr(BF[s&1]+4*t,4)}, {c if s else '0'}")
                S.gap(0, forced[2 * t + par])
        if s == O['xs_at']: dots()
        if s == O['l2_ld']:
            S.now([('need', 'vm', ['l2'])] + recheck("L2", [l2load], l2chk) + row_scalars(SX, 640, T0) + bcast(T0, RR))
        if O['g1marks'] == 1 and s in (3, 7, 11, 15): a(f"    ; MARK {25 + s // 4}")
    S.now(tailq)
    a(f"""    v_mov_b32 v{KK}, {f2u(c0)}
    v_mov_b32 v{KK+1}, {f2u(c0*0.044715)}
    s_lshr_b32 s30, s70, 3
    s_and_b32 s34, s71, 14
    s_add_u32 s34, s34, s30
    s_cmp_eq_u32 s34, s71
    s_cselect_b32 s30, 96, 0
    s_mul_i32 s31, s34, 192
    s_add_u32 s30, s30, s31
    s_add_u32 s30, s30, {WS_Z2 >> 10}
    s_and_b32 s31, s78, 31
    s_add_u32 s33, s30, s31
    s_add_u32 s29, s33, s31
    s_add_u32 s33, s33, 64
    s_lshl_b32 s29, s29, 10
    s_lshl_b32 s33, s33, 10
    s_lshl_b32 s32, s78, 12
    s_add_u32 s32, s32, {FL_L3X}
    s_lshl_b32 s31, s71, 8
    s_add_u32 s31, s31, s32""")
    S.put(('need', 'lg', ['rr']))
    a("    ; MARK 11")
    if O['xfp'] == 2:
        mv, stx = xfill(8); S.now(mv + [(x, 'xf') for x in stx])
    hk = []; S.hk = hk
    def hook():
        if hk: S.now(hk.pop(0))
    def singles(xs):
        R = [[]]
        for x in xs:
            R[-1].append(x)
            if isinstance(x, tuple): R.append([])
        return R[:-1]
    GT, QQ, SS = 40, 48, 56
    for t in range(3):
        prs = [A2 + 8 * t + 2 * k for k in range(4)]
        hook()
        for k, x in enumerate(prs): a(f"    v_pk_mul_f32 {vr(x,2)}, {vr(x,2)}, {vr(RR+2*k,2)}")
        for k, x in enumerate(prs): a(f"    v_pk_fma_f32 {vr(x,2)}, {vr(RR+8+2*k,2)}, {vr(CS2+(t&2),2)}, {vr(x,2)} op_sel:[0,{t&1},0] op_sel_hi:[1,{t&1},1] neg_lo:[1,0,0] neg_hi:[1,0,0]")
        gelu_block(a, prs, GT, KK)
        for k, x in enumerate(prs):
            if t == 0: a(f"    v_pk_mul_f32 {vr(QQ+2*k,2)}, {vr(x,2)}, {vr(x,2)}")
            else:
                a(f"    v_pk_add_f32 {vr(SS+2*k,2)}, {vr(x,2)}, {vr(SS+2*k if t == 2 else A2+2*k,2)}")
                a(f"    v_pk_fma_f32 {vr(QQ+2*k,2)}, {vr(x,2)}, {vr(x,2)}, {vr(QQ+2*k,2)}")
    assert not hk
    order = list(range(14, 20)) + list(range(14))
    for k in range(8): a(f"    v_add_f32_dpp v{SS+k}, v{SS+k}, v{SS+k} row_ror:8 row_mask:0xf bank_mask:0x3")
    for k in range(8): a(f"    v_add_f32_dpp v{SS+k}, v{QQ+k}, v{QQ+k} row_ror:8 row_mask:0xf bank_mask:0xc")
    for k in range(4): a(f"    v_add_f32_dpp v{SS+k}, v{SS+k}, v{SS+k} row_half_mirror row_mask:0xf bank_mask:0x5")
    for k in range(4): a(f"    v_add_f32_dpp v{SS+k}, v{SS+4+k}, v{SS+4+k} row_half_mirror row_mask:0xf bank_mask:0xa")
    for k in range(4): a(f"    v_add_f32_dpp v{SS+k}, v{SS+k}, v{SS+k} quad_perm:[2,3,0,1] row_mask:0xf bank_mask:0xf")
    for k in range(4): a(f"    v_add_f32_dpp v{SS+k}, v{SS+k}, v{SS+k} quad_perm:[1,0,3,2] row_mask:0xf bank_mask:0xf")
    a(f"""    v_cndmask_b32 v{T0}, v{SS}, v{SS+1}, s[80:81]
    v_cndmask_b32 v{T0}, v{T0}, v{SS+2}, s[82:83]
    v_cndmask_b32 v{T0}, v{T0}, v{SS+3}, s[18:19]""")
    S.put(('need', 'vm', ['xf']))
    S.put(f"    buffer_store_dword v{T0}, v{VA}, s[8:11], s31 offen sc1")
    S.put(('need', 'vm', ['w1'])); a("    s_barrier")
    a("    ; MARK 13")
    S.now([bread(1, i, order[i], t) for i in range(2) for t in range(3)])
    wq = wo_pieces(0, O['oP'], 'wo')
    l3 = [f"    buffer_load_dwordx4 {vr(X3+4*j,4)}, v2, s[8:11], s32 offen offset:{1024*j} sc1" for j in range(4)]
    chk = [f"    v_max3_u32 v{T0}, v{X3}, v{X3+1}, v{X3+2}"]
    for k in range(3, 15, 2): chk.append(f"    v_max3_u32 v{T0}, v{T0}, v{X3+k}, v{X3+k+1}")
    chk += [f"    v_max_u32 v{T0}, v{T0}, v{X3+15}", f"    v_cmp_eq_u32 vcc, -1, v{T0}"]
    side = {}
    side[6] = L(f"s_lshl_b32 s30, s78, 6\nv_lshl_add_u32 v7, v5, 2, s30") + [(f"    global_load_dword v{VB}, v7, s[60:61]", 'bias'), "    v_lshlrev_b32 v7, 4, v6"]
    side[6] += [(f"    buffer_load_dwordx4 {vr(CS1+4*t,4)}, v7, s[8:11], s79 offen offset:{64*t} sc1", 'bias') for t in range(3)]
    side[6] += [(f"    ds_read2_b32 {vr(RL,2)}, v{SA} offset0:0 offset1:16", 'rl'), (f"    ds_read2_b32 {vr(RL+2,2)}, v{SA} offset0:32 offset1:48", 'rl')]
    side.setdefault(O['l3_at'], []).extend([(x, 'l3') for x in l3])
    side.setdefault(O['l3_chk'], []).extend([('need', 'vm', ['l3'])] + recheck("L3", l3, chk)
        + [f"    v_add_f32 v{X3+k}, v{X3+k}, v{X3+8+k}" for k in range(8)] + [f"    v_add_f32 v{X3+k}, v{X3+k}, v{X3+4+k}" for k in range(4)]
        + row_scalars(X3, 768, T0) + bcast(T0, R3))
    def z2out():
        a("    ; MARK 14")
        S.q += side.get(O['nS'], [])
        S.flush()
        S.put(('need', 'lg', ['rr']))
        a("    ; MARK 15")
        for t in range(3):
            for k in range(4):
                x = A2 + 8 * t + 2 * k
                a(f"    v_pk_fma_f32 {vr(x,2)}, {vr(x,2)}, {vr(R3+2*k,2)}, {vr(R3+8+2*k,2)} neg_lo:[0,0,1] neg_hi:[0,0,1]")
            o = X3 + 4 + 4 * t
            for r in range(4): a(f"    v_cvt_pk_bf16_f32 v{o+r}, v{A2+8*t+r}, v{A2+8*t+4+r}")
            S.put((f"    buffer_store_dwordx4 {vr(o,4)}, v2, s[8:11], {'s29' if t < 2 else 's33'} offen offset:{1024*(t&1)} sc1", 'z2'))
        a("    ; MARK 16")
    assert O['l3_chk'] <= O['nS']
    nw = len(wq); put = 0
    for i, s in enumerate(order):
        forced = {k: [] for k in range(6)}
        if i + 2 < 20:
            for t in range(3): forced[2 * t + 1].append(bread(1, i + 2, order[i + 2], t))
        for k in (1, 3):
            if put < nw and put * 38 <= (2 * i + (k >> 1)) * nw: forced[k].append(wq[put]); put += 1
        if i != O['nS']: S.q += side.get(i, [])
        for t in range(3):
            for par in range(2):
                if par == 0: S.put(('need', 'lg', [('b', 1, i, 2 if i else t)]))
                c = vr(A1 + 8 * t + 4 * par, 4)
                a(f"    v_mfma_f32_16x16x32_bf16 {c}, {vr(BF[i&1]+4*t,4)}, {vr(HB(s)+4*par,4)}, {c if i else '0'}")
                S.gap(4 if (t, par) == (2, 1) else 8, forced[2 * t + par])
        if i + 1 == O['nS']: z2out()
    assert put == nw
    S.flush()
    def z1tile(t):
        prs = [A1 + 8 * t + 2 * k for k in range(4)]
        hook()
        for k, x in enumerate(prs): a(f"    v_pk_mul_f32 {vr(x,2)}, {vr(x,2)}, {vr(RL,2)} op_sel:[0,{k>>1}] op_sel_hi:[1,{k>>1}]")
        for k, x in enumerate(prs): a(f"    v_pk_fma_f32 {vr(x,2)}, {vr(CS1+4*t+2*(k&1),2)}, {vr(RL+2,2)}, {vr(x,2)} op_sel:[0,{k>>1},0] op_sel_hi:[1,{k>>1},1] neg_lo:[1,0,0] neg_hi:[1,0,0]")
        gelu_block(a, prs, 52, KK, hook)
        for k in (3, 2, 1, 0): a(f"    v_cvt_pk_bf16_f32 v{76+4*t+k}, v{prs[k]}, v{prs[k]+1}")
    a(f"""    s_lshl_b32 s25, s71, 10
    s_add_u32 s25, s25, {FL_F3}
    s_lshl_b32 s28, s34, 1
    s_and_b32 s30, s71, 1
    s_add_u32 s28, s28, s30
    s_lshl_b32 s28, s28, 3
    s_and_b32 s30, s70, 7
    s_add_u32 s28, s28, s30
    s_lshl_b32 s28, s28, 6
    s_add_u32 s28, s28, {FL_F3}""")
    S.put(('need', 'vm', ['bias']))
    n1 = O['oP'] + O['oC1']; S.nwo = n1 + O['oC2']; assert S.nwo <= 18
    hk += singles(wo_pieces(O['oP'], n1, 'wo'))
    tiles = [2, 1, 0]
    for t in tiles[:O['nT']]: z1tile(t)
    while hk: hook()
    S.put(('need', 'vm', ['z2']))
    flag_store(a, "L_f3", 28)
    a("    ; MARK 17")
    hk += singles(wo_pieces(n1, S.nwo, 'wo'))
    for t in tiles[O['nT']:3-O['nT2']]: z1tile(t)
    while hk: hook()
    S.rest = lambda: [z1tile(t) for t in tiles[3-O['nT2']:]]

def g2(a, S):
    NS, ACC, ZF, Z1P, AX, XI, ZU = 7, 16, 40, 76, 96, 120, 144
    half = [(k, t) for k in range(32) for t in range(2)] + [(k, 2) for k in range(32)]
    seq = [(k, t, AX) for k, t in half] + [(k, t, ACC) for k, t in half]
    for par in range(2):
        a(f"    v_lshlrev_b32 v{ACC}, 16, v91" if par == 0 else f"    v_and_b32 v{ACC+12}, 0xffff0000, v91")
        for k in range(1, 12): a(f"    v_mov_b32 v{ACC+12*par+k}, v{ACC+12*par}")
    a(f"""    v_lshl_add_u32 v7, v5, 6, s25
    s_mul_i32 s27, s20, 3072
    s_mul_i32 s26, s71, {64*3072}
    s_add_u32 s26, s26, s27
    s_add_u32 s26, s26, {WS_Z2}
    s_add_u32 s27, s27, {L_Z}
    s_mul_i32 s30, s78, 49152
    s_lshr_b32 s31, s71, 1
    s_mul_i32 s31, s31, 3072
    s_add_u32 s30, s30, s31
    s_add_u32 s30, s30, {WS_P}
    s_and_b32 s32, s71, 1
    s_lshl_b32 s31, s32, 9
    s_add_u32 s31, s31, s30
    s_add_u32 s31, s31, 1024
    s_lshl_b32 s32, s32, 11
    s_add_u32 s30, s30, s32
    s_add_u32 s32, s30, 24576
    v_and_b32 v88, 1, v6
    v_mul_u32_u24 v88, 24576, v88
    v_lshrrev_b32 v89, 1, v6
    v_lshl_add_u32 v88, v89, 8, v88
    v_lshl_add_u32 v88, v5, 4, v88
    s_lshl_b32 s28, s85, 4
    s_add_u32 s28, s28, {FL_F4}""")
    a("    s_cmp_lg_u32 s20, 0\n    s_cbranch_scc1 S3_d")
    spin(a, "S3", ["    buffer_load_dword v89, v7, s[8:11], 0 offen sc1"], ["    v_cmp_eq_u32 vcc, -1, v89"])
    a("    s_barrier\n    ; MARK 18")
    def dma(st):
        pre = [f"    s_add_u32 m0, s27, {(st % NS) * 12288}"] + (["    s_add_u32 s26, s26, 12288"] if st else [])
        return pre, [(f"    buffer_load_dwordx4 v2, s[8:11], s26 offen offset:{1024*k} sc1 lds", ('z', st)) for k in range(3)]
    def zreads(s):
        return [(f"    ds_read_b128 {vr(ZF+12*(s%3)+4*ft,4)}, {lds_op(L_Z + ((s >> 2) % NS) * 12288 + (s & 3) * 3072 + 1024 * ft)}", ('zr', s, ft)) for ft in range(3)]
    def wopiece(n):
        return [f"    s_add_u32 m0, s75, {1024*n}", f"    s_add_u32 s76, s33, {1024*n}", ("    buffer_load_dwordx4 v2, s[8:11], s76 offen sc1 lds", 'wo')]
    pre, d = dma(0); S.now(pre + d)
    for st in range(1, 4):
        pre, d = dma(st); S.hk.extend([pre + d[:1], d[1:2], d[2:]])
    S.rest()
    while S.hk: S.now(S.hk.pop(0))
    S.put(('need', 'vm', [('z', 0)]))
    a("    s_barrier\n    ; MARK 19")
    S.now(zreads(0) + zreads(1))
    nwo = S.nwo
    side = {}
    def at(s, xs): side.setdefault(s, []).extend(xs)
    one = lambda x: ["    s_mov_b64 exec, 1\n" + x + "\n    s_mov_b64 exec, -1"]
    unp = []
    for r in range(12): unp += [f"    v_lshlrev_b32 v{ZU+2*r}, 16, v{Z1P+r}", f"    v_and_b32 v{ZU+2*r+1}, 0xffff0000, v{Z1P+r}"]
    at(2, unp)
    flags = {}
    XO, XP = 168, 180
    for e, (s0, tiles) in enumerate(((22, (0, 1)), (33, (2,)))):
        for n, ft in enumerate(tiles):
            at(s0 + n * O['xsp'], [f"    v_cvt_pk_bf16_f32 v{XO+4*ft+2*par+h}, v{AX+12*par+4*ft+2*h}, v{AX+12*par+4*ft+2*h+1}" for par in range(2) for h in range(2)]
               + [(f"    buffer_store_dwordx4 {vr(XO+4*ft,4)}, v2, s[8:11], s87 offen offset:{1024*ft} sc1", ('xs', e))])
        ld = [f"    buffer_load_dwordx4 {vr(XP+4*ft,4)}, v2, s[8:11], s86 offen offset:{1024*ft} sc1" for ft in tiles]
        for n, x in enumerate(ld): flags[s0 + O['xw'] + n * O['xsp']] = (x, ('xl', e))
        b = XP + 4 * tiles[0]; nr = 4 * len(tiles)
        chk = [f"    v_max_u32 v92, v{b}, v{b+1}"] + [f"    v_max3_u32 v92, v92, v{b+r}, v{b+r+1}" for r in range(2, nr, 2)] + ["    v_cmp_eq_u32 vcc, -1, v92"]
        s1 = s0 + O['xw'] + (len(tiles) - 1) * O['xsp'] + O['xl']
        assert s1 < (54, 64)[e]
        R = [('need', 'vm', [('xl', e)])] + recheck(f"X{e}", ld, chk)
        for r in range(4 * tiles[0], 4 * tiles[-1] + 4):
            R += L(f"v_lshlrev_b32 v{XI+2*r}, 16, v{XP+r}\nv_and_b32 v{XI+2*r+1}, 0xffff0000, v{XP+r}\nv_mul_f32 v{XI+2*r}, v{XI+2*r}, v{ZU+2*r}\nv_mul_f32 v{XI+2*r+1}, v{XI+2*r+1}, v{ZU+2*r+1}")
        at(s1, R)
    R = []
    for par in range(2):
        for ft in range(2):
            c = ACC + 12 * par + 4 * ft; o = 8 * ft + 4 * par
            R += [f"    v_fma_f32 v{c+r}, v{c+r}, v{ZU+o+r}, v{XI+o+r}" for r in range(4)]
            R += [f"    v_cvt_pk_bf16_f32 v{ACC+12*par+2*ft+h}, v{c+2*h}, v{c+2*h+1}" for h in range(2)]
        R.append((f"    buffer_store_dwordx4 {vr(ACC+12*par,4)}, v2, s[8:11], s{30+2*par} offen sc1", 'pa'))
    at(54, R)
    dcar = []; zn = 4
    for s in range(64):
        st, ph = s >> 2, s & 3
        forced = {k: [] for k in range(6)}
        if s + 2 < 64:
            for k, x in enumerate(zreads(s + 2)): forced[k].append(x)
        if ph == 1 and st < 15: forced[4].append(('need', 'vm', [('z', st + 1)])); forced[5].append("    s_barrier")
        w = None
        if zn < 16 and ((ph == 2 and zn <= st + NS - 1) or (ph == 0 and zn <= st + NS - 2)):
            pre, d = dma(zn); w = pre + d; zn += 1
        elif ph == 0 and nwo < 18:
            w = wo_pieces(nwo, min(18, nwo + 2), 'wo'); nwo = min(18, nwo + 2)
        elif ph == 2 and st >= 10 and nwo < 30:
            assert nwo == 18 + 3 * (st - 10)
            w = wo_pieces(nwo, nwo + 3, 'wo'); nwo += 3
        if w:
            assert not dcar
            forced[0] += w[:1]; forced[1] += w[1:2]; forced[2] += w[2:3]; dcar = w[3:]
        elif dcar:
            forced[0] += dcar[:1]; forced[3] += dcar[1:]; dcar = []
        S.q += side.get(s, [])
        if s in flags: forced[3].append(flags[s])
        k = 0
        for j in range(3):
            ks, ft, base = seq[3 * s + j]
            for par in range(2):
                S.put(('need', 'lg', [('zr', s, j if s == 0 else 2)]))
                c = vr(base + 12 * par + 4 * ft, 4)
                a(f"    v_mfma_f32_16x16x32_bf16 {c}, {vr(ZF+12*(s%3)+4*j,4)}, {wreg(ks >> 1, ks & 1, par)}, {'0' if (base == AX and ks == 0) else c}")
                S.gap(4 if k == 5 else 8, forced[k]); k += 1
        if O['g2marks'] and s in (21, 29, 37, 45, 53): a(f"    ; MARK {25 + (s - 21) // 8}")
    S.flush()
    assert nwo == 30
    a("    ; MARK 20")
    a(f"""    s_lshl_b32 s25, s72, 2
    s_add_u32 s25, s25, s20            ; t tile
    s_lshr_b32 s30, s25, 1
    s_lshl_b32 s24, s30, 8
    s_add_u32 s24, s24, {FL_F4}
    v_lshlrev_b32 v7, 4, v5""")
    PO = 40
    for par in range(2):
        c = ACC + 12 * par + 8
        for h in range(2): a(f"    v_pk_fma_f32 {vr(c+2*h,2)}, {vr(c+2*h,2)}, {vr(ZU+16+4*par+2*h,2)}, {vr(XI+16+4*par+2*h,2)}")
    for par in range(2):
        c = ACC + 12 * par + 8
        for h in range(2): a(f"    v_cvt_pk_bf16_f32 v{PO+2*par+h}, v{c+2*h}, v{c+2*h+1}")
    a(f"    v_permlane16_swap_b32 v{PO}, v{PO+2}\n    v_permlane16_swap_b32 v{PO+1}, v{PO+3}")
    S.put((f"    buffer_store_dwordx4 {vr(PO,4)}, v88, s[8:11], s31 offen sc1", 'pb'))
    S.now([('need', 'vm', ['pa']), "    s_mov_b64 exec, 1", "    buffer_store_dword v0, v0, s[8:11], s28 offen sc1", "    s_mov_b64 exec, -1"])
    a("    ; MARK 21")
    return nwo

def g3(a, S, nwo):
    PF, ACC, WF, HR = 56, 16, [152, 172, 192], 212
    order = [k for k in range(24) if k % 3 != 1] + [k for k in range(24) if k % 3 == 1]
    def waddr(k, t): return wo_addr(k // 6, [0, 4, 1, 2, 5, 3][k % 6] * 5 + t)
    def wreads(i): return [(f"    ds_read_b128 {vr(WF[i%3]+4*t,4)}, {lds_op(waddr(order[i], t))}", i) for t in range(5)]
    def pre3():
        S.now(wreads(0) + wreads(1))
        for t in range(5):
            for h in range(2):
                r = HR + 2 * t + h
                a(f"    v_lshlrev_b32 v{ACC+4*t+2*h}, 16, v{r}\n    v_and_b32 v{ACC+4*t+2*h+1}, 0xffff0000, v{r}")
        R = L("""s_mul_i32 s30, s20, 2816
s_add_u32 s30, s30, 147456
v_mul_u32_u24 v8, 176, v5
v_add_u32 v8, s30, v8
v_lshl_add_u32 v46, v6, 3, v8
v_lshl_add_u32 v8, v6, 4, v8""")
        for q, (vl, vg) in enumerate(((12, 10), (13, 11), (1, 14))):
            R += L(f"""v_add_u32 v15, {64*q}, v0
v_min_u32 v15, 159, v15
v_mul_u32_u24 v47, 6554, v15
v_lshrrev_b32 v47, 16, v47
v_add_u32 v{vl}, v15, v47
v_lshl_add_u32 v{vl}, v{vl}, 4, s30
v_mul_u32_u24 v47, {2560-160}, v47
v_lshl_add_u32 v{vg}, v15, 4, v47""")
        S.now(R)
    pA = "    buffer_load_dword v9, v7, s[8:11], s24 offen sc1"
    pB = "    buffer_load_dword v44, v45, s[8:11], s24 offen sc1"
    a(f"""    s_lshl_b32 s30, s30, 5
    s_and_b32 s31, s25, 1
    s_add_u32 s30, s30, s31
    s_lshl_b32 s29, s30, 3
    s_mul_i32 s32, s73, {20*16384}
    s_add_u32 s29, s29, s32
    v_lshl_add_u32 v15, v6, 14, v7
    v_lshl_add_u32 v14, v6, 15, v7""")
    for t in range(5):
        qd = 8 * (t >> 1) + (t & 1)
        S.now([f"    s_add_u32 s32, s29, {WS_H + qd*16384}", (f"    buffer_load_dwordx2 {vr(HR+2*t,2)}, v{14 if t < 4 else 15}, s[8:11], s32 offen sc1", 'wo')])
    emit(a, srd(16, 64, 2048 * 1280))
    a(f"""    s_mul_i32 s40, s25, 24576
    s_add_u32 s40, s40, {WS_P}
    s_mul_i32 s31, s30, 1280
    s_mul_i32 s32, s73, 160
    s_add_u32 s31, s31, s32
    s_add_u32 s28, s28, 16384
    v_add_u32 v45, 16384, v7""")
    for j in range(1, 6): a(f"    s_add_u32 s{40+j}, s40, {4096*j}")
    S.put(('need', 'vm', ['pb']))
    S.put((pA, 'fa'))
    a("    s_mov_b64 exec, 1")
    S.put("    buffer_store_dword v0, v0, s[8:11], s28 offen sc1")
    a("    s_mov_b64 exec, -1\n    ; MARK 22")
    S.now([('need', 'vm', ['wo']), "    s_barrier"])
    pre3()
    S.put(('need', 'vm', ['fa']))
    emit(a, recheck("S4", [pA], ["    v_cmp_eq_u32 vcc, -1, v9"]))
    a("    ; MARK 23")
    def pl(i):
        k = order[i]
        return (f"    buffer_load_dwordx4 {vr(PF+4*i,4)}, v2, s[8:11], s{40+(k>>2)} offen offset:{1024*(k&3)} sc1", i)
    S.now([pl(i) for i in range(O['pa'])])
    for i in range(O['pa'], 16):
        S.q.append(pl(i))
        if i == O['pb_ld']: S.q.append((pB, 'fb'))
    if O['pb_ld'] >= 16: S.q.append((pB, 'fb'))
    for i in range(24):
        if i == O['pb_chk']:
            S.flush()
            S.now([('need', 'vm', ['fb'])] + recheck("S5", [pB], ["    v_cmp_eq_u32 vcc, -1, v44"]))
            a("    ; MARK 12")
            S.q += [pl(j) for j in range(16, 24)]
        S.now([('need', 'vm', [i]), ('need', 'lg', [i])])
        rd = wreads(i + 2) if i < 22 else []
        for t in range(5):
            c = vr(ACC + 4 * t, 4)
            a(f"    v_mfma_f32_16x16x32_bf16 {c}, {vr(WF[i%3]+4*t,4)}, {vr(PF+4*i,4)}, {c}")
            S.gap(8 if t < 3 else 4, rd[t:t+1])
    assert not S.q
    a("    ; MARK 24")
    for t in range(5):
        for h in range(2): a(f"    v_cvt_pk_bf16_f32 v{36+2*t+h}, v{ACC+4*t+2*h}, v{ACC+4*t+2*h+1}")
    a(f"""    ds_write_b128 v8, v[36:39]
    ds_write_b128 v8, v[40:43] offset:64
    ds_write_b64 v46, v[44:45] offset:128
    ds_read_b128 v[52:55], v12
    ds_read_b128 v[56:59], v13
    ds_read_b128 v[60:63], v1
    s_waitcnt lgkmcnt(2)
    buffer_store_dwordx4 v[52:55], v10, s[16:19], s31 offen
    s_waitcnt lgkmcnt(1)
    buffer_store_dwordx4 v[56:59], v11, s[16:19], s31 offen
    s_mov_b32 exec_hi, 0
    s_waitcnt lgkmcnt(0)
    buffer_store_dwordx4 v[60:63], v14, s[16:19], s31 offen
L_end:
    s_endpgm""")

def build(**kw):
    O.update(kw); TAILS.clear()
    a = Asm()
    a.begin_kernel(NAME + "_kernel", 256, 256, 163840, 512, accum=256)
    a(f"""    s_load_dwordx16 s[36:51], s[0:1], 0
    s_load_dwordx16 s[52:67], s[0:1], 64
    s_load_dwordx2 s[68:69], s[0:1], 128
    s_cmp_lt_u32 s2, 224
    s_cbranch_scc1 L_e1
    s_cmp_ge_u32 s2, 256
    s_cbranch_scc1 L_end
    s_getpc_b64 s[30:31]
    v_lshlrev_b32 v7, 7, v0
    global_load_dword v14, v7, s[30:31]
    v_lshrrev_b32 v7, 1, v7
    v_add_u32 v7, 32768, v7
    global_load_dword v15, v7, s[30:31]
L_e1:""")
    emit(a, lanes())
    a(f"""    s_cmp_lt_u32 s2, 160
    s_cbranch_scc1 L_conv
    s_sub_u32 s23, s2, 160
    s_cmp_ge_u32 s23, 64
    s_cbranch_scc1 L_nostat
    s_lshl_b32 s24, s23, 5
    v_lshrrev_b32 v3, 3, v1
    v_add_u32 v3, s24, v3              ; row
    v_mul_u32_u24 v7, 1280, v3
    v_and_b32 v14, 7, v0
    v_lshl_add_u32 v7, v14, 4, v7
    s_waitcnt lgkmcnt(0)""")
    for q in range(10): a(f"    global_load_dwordx4 {vr(16+4*q,4)}, v7, s[36:37] offset:{128*q}")
    a("    s_branch L_help")
    conv_role(a)
    S = Sched(a)
    g1(a, S); nwo = g2(a, S); g3(a, S, nwo); helper_role(a)
    for t in TAILS: emit(a, t)
    a.end_kernel()
    a.lines = hazard.fix(a.lines, verbose=True)
    a.lines = align.fix(a.lines, verbose=True)
    a(".p2align 8\n.fill 3072, 4, 0xbf800000")
    return a.text("S4 conv + gMLP block in one persistent launch; written with the author's own generator script", single=True)
if __name__ == "__main__":
    out = sys.argv[1] if len(sys.argv) > 1 else "v10.s"
    kw = {k: int(v) for k, v in (x.split("=") for x in sys.argv[2:])}
    open(out, "w").write(build(**kw))
```

```python
import sys, math, struct, re
from asmgen import Asm
import hazard, align
NAME = "sequential_preLN__ssm_conv_s4__mixer_gmlp__prompt"
O = dict(kgmarks=0, burst=12, hsleep=9, x0=2, hdelay=1, xt=0, xp=1, g1marks=0, g2marks=0, cvmarks=0, npre=3, xs_at=2, ct=1, wpre=0, ctpos=1, k00=24, wend=16,
         lead=6, l2_ld=17, nz=15, l3_at=8, l3_chk=13, nT=0, nS=14, nT2=2, pa=8, pb_ld=9, pb_chk=6, oP=10, oC1=0, oC2=8, xw=16, xl=9, xsp=2, xfp=2, xfs=1, xfw=0, lat=1, rep=1, gate=1, s2sleep=1, f2s=4, r3=1, f4s=4, r4=1, f3s=4, tfirst=1, p1u=0, s1p=1, s1c=1, xat=0b010101010101, dm=5, dl=14, ue=3, rot=1, ab=0, ksplit=1)

WS_H, WS_WIN, WS_WOUT, WS_CS, WS_ST1 = 0x0, 0x280000, 0x460000, 0x550000, 0x558000
WS_FL = 0x560000
FL_L3X, FL_L2X, FL_F2, FL_F4, FL_F3, FL_F2P, FL_F1B = [WS_FL + x for x in (0, 0x40000, 0x50000, 0x60000, 0x52000, 0x56000, 0x5C000)]
FL_F2R = WS_FL + 0x6C000
FL_F3 = WS_FL + 0x52000
FL_F1B = WS_FL + 0x50000
FL_F4 = WS_FL + 0x5C000
WS_Z2, WS_P, WS_X = 0x600000, 0x900000, 0xC00000
WS_SIZE = 0xF00000
LOG2E = 1.4426950408889634
def f2u(x): return "0x%08x" % struct.unpack("<I", struct.pack("<f", x))[0]
def vr(b, n): return f"v[{b}:{b+n-1}]" if n > 1 else f"v{b}"
def ar(b, n): return f"a[{b}:{b+n-1}]"
def L(s): return ["    " + x.strip() for x in s.strip().split("\n") if x.strip()]
def emit(a, xs):
    for x in xs: a(x)
def srd(r, lo, size):
    return L(f"s_mov_b32 s{r}, s{lo}\ns_and_b32 s{r+1}, s{lo+1}, 0xffff\ns_mov_b32 s{r+2}, {hex(size)}\ns_mov_b32 s{r+3}, 0x20000")
def cmul(d, x, y):
    return [f"    v_pk_mul_f32 {vr(d,2)}, {vr(x,2)}, {vr(y,2)} op_sel:[0,0] op_sel_hi:[0,1]",
            f"    v_pk_fma_f32 {vr(d,2)}, {vr(x,2)}, {vr(y,2)}, {vr(d,2)} op_sel:[1,1,0] op_sel_hi:[1,0,1] neg_lo:[0,1,0]"]
def rbf(d, s): return [f"    v_cvt_pk_bf16_f32 v{d}, v{s}, v{s}", f"    v_lshlrev_b32 v{d}, 16, v{d}"]
def ln_scalars(vs, vq, n, vm, vrs, t):
    return (L(f"v_mul_f32 v{vm}, {f2u(1.0/n)}, v{vs}\nv_mul_f32 v{t}, {f2u(1.0/n)}, v{vq}\nv_fma_f32 v{t}, -v{vm}, v{vm}, v{t}\nv_max_f32 v{t}, 0, v{t}")
            + rbf(t, t) + L(f"v_add_f32 v{t}, {f2u(1e-5)}, v{t}") + rbf(t, t) + L(f"v_sqrt_f32 v{t}, v{t}") + rbf(vm, vm) + rbf(t, t)
            + L(f"v_rcp_f32 v{vrs}, v{t}\ns_nop 0\nv_mul_f32 v{vm}, v{vm}, v{vrs}"))
def allreduce_g(v, t):
    return L(f"v_mov_b32 v{t}, v{v}\nv_permlane16_swap_b32 v{v}, v{t}\nv_add_f32 v{v}, v{v}, v{t}\nv_mov_b32 v{t}, v{v}\nv_permlane32_swap_b32 v{v}, v{t}\nv_add_f32 v{v}, v{v}, v{t}")
def row_scalars(X, n, t):
    return (L(f"""v_permlane16_swap_b32 v{X}, v{X+2}
v_permlane16_swap_b32 v{X+1}, v{X+3}
v_add_f32 v{X}, v{X}, v{X+2}
v_add_f32 v{X+1}, v{X+1}, v{X+3}
v_mov_b32 v{X+2}, v{X}
v_mov_b32 v{X+3}, v{X+1}
s_nop 0
v_permlane32_swap_b32 v{X}, v{X+2}
v_permlane32_swap_b32 v{X+1}, v{X+3}
v_add_f32 v{X}, v{X}, v{X+2}
v_add_f32 v{X+1}, v{X+1}, v{X+3}""") + ln_scalars(X, X + 1, n, t + 1, t, X + 2))
def gelu_block(a, regs, T, KK, hook=lambda: None):
    ts = [T + 2 * n for n in range(len(regs))]
    for x, t in zip(regs, ts): a(f"    v_pk_mul_f32 {vr(t,2)}, {vr(x,2)}, {vr(x,2)}")
    for x, t in zip(regs, ts): a(f"    v_pk_fma_f32 {vr(t,2)}, {vr(t,2)}, {vr(KK,2)}, {vr(KK,2)} op_sel:[0,1,0] op_sel_hi:[1,1,0]")
    for x, t in zip(regs, ts): a(f"    v_pk_mul_f32 {vr(t,2)}, {vr(t,2)}, {vr(x,2)}")
    hook()
    for x, t in zip(regs, ts): a(f"    v_exp_f32 v{t}, v{t}\n    v_exp_f32 v{t+1}, v{t+1}")
    hook()
    for x, t in zip(regs, ts): a(f"    v_pk_add_f32 {vr(t,2)}, {vr(t,2)}, 1.0 op_sel_hi:[1,0]")
    for x, t in zip(regs, ts): a(f"    v_rcp_f32 v{t}, v{t}\n    v_rcp_f32 v{t+1}, v{t+1}")
    hook()
    for x, t in zip(regs, ts): a(f"    v_pk_mul_f32 {vr(x,2)}, {vr(x,2)}, {vr(t,2)}")

TAILS = []
def spin(a, name, loads, check, sleep=1):
    a(f"    s_movk_i32 s35, 0x7fff\n{name}_l:")
    emit(a, loads); a("    s_waitcnt vmcnt(0)"); emit(a, check)
    a(f"    s_cbranch_vccz {name}_d\n    s_sub_u32 s35, s35, 1\n    s_cbranch_scc1 {name}_d\n    s_sleep {sleep}\n    s_branch {name}_l\n{name}_d:")
def recheck(name, loads, check, sleep=1):
    TAILS.append([f"{name}_r:", "    s_movk_i32 s35, 0x7fff", f"{name}_l:", f"    s_sleep {sleep}"] + loads + ["    s_waitcnt vmcnt(0)"] + check +
                 L(f"s_cbranch_vccz {name}_d\ns_sub_u32 s35, s35, 1\ns_cbranch_scc0 {name}_l\ns_branch {name}_d"))
    return check + [f"    s_cbranch_vccnz {name}_r\n{name}_d:"]

class Cnt:
    def __init__(s, name, mx): s.name, s.mx, s.q = name, mx, []
    def issue(s, tag): s.q.append(tag)
    def need(s, *tags):
        idx = max((i for i, t in enumerate(s.q) if t in tags), default=-1)
        if idx < 0: return []
        n = min(len(s.q) - 1 - idx, s.mx)
        s.q = s.q[len(s.q) - n:] if n else []
        return [f"    s_waitcnt {s.name}({n})"]
class Sched:
    def __init__(s, a): s.a = a; s.vm = Cnt("vmcnt", 63); s.lg = Cnt("lgkmcnt", 15); s.q = []
    def cost(s, x):
        if isinstance(x, tuple):
            if x[0] == 'need': return 4 if any(t in x[2] for t in (s.vm if x[1] == 'vm' else s.lg).q) else 0
            x = x[0]
        m = x.split()[0]
        if m.startswith(hazard.TRANS) or m.startswith("v_permlane"): return 8
        if m.startswith("buffer_store_dwordx4"): return 24
        if m.startswith("global_") or (m.startswith("buffer_") and re.search(r"s\[\d+:\d+\], s\d", x)): return 8
        if m.startswith("ds_write_b128"): return 20
        if m.startswith("ds_write2"): return 12
        return 4
    def put(s, x):
        if isinstance(x, tuple) and x[0] == 'need':
            emit(s.a, (s.vm if x[1] == 'vm' else s.lg).need(*x[2])); return
        tag = None
        if isinstance(x, tuple): x, tag = x
        m = x.split()[0]
        if m.startswith("ds_"): s.lg.issue(tag)
        elif m.startswith(("buffer_", "global_")): s.vm.issue(tag)
        s.a(x)
    def now(s, xs):
        for x in xs: s.put(x)
    def gap(s, budget=8, forced=()):
        for x in forced:
            budget -= s.cost(x); s.put(x)
        first = not forced
        while s.q and (s.cost(s.q[0]) <= budget or first):
            budget -= s.cost(s.q[0]); s.put(s.q.pop(0)); first = False
    def flush(s):
        while s.q: s.put(s.q.pop(0))

RS = 272; TW = 64 * RS
YO = 8448
L_U = 4 * TW
L_W = L_U + 4 * 4608
L_R = 98304
L_Z = 73728
L_S = 159744
VW, VWR, WV = 8, 12, 94
def win_addr(half, s, t):
    n = 3 * s + t
    if half: return L_R + 1024 * n
    w, i = divmod(n, 15)
    return TW * w + 1024 * i if i < 8 else L_U + 4096 * w + 1024 * (i - 8) if i < 12 else TW * w + YO + 1024 * (i - 12)
def lds_op(addr, bases=(2, 3, 4)):
    return f"v{bases[addr >> 16]} offset:{addr & 0xffff}"
KREST = "    s_load_dwordx16 s[52:67], s[0:1], 64\n    s_load_dwordx2 s[68:69], s[0:1], 128"
def lanes():
    return L("""v_mov_b32 v1, v0
v_lshrrev_b32 v4, 6, v0
v_and_b32 v0, 63, v0
v_readfirstlane_b32 s20, v4
s_and_b32 s21, s2, 7
s_lshr_b32 s22, s2, 3""")
def stage_base(stride, base):
    return L(f"""s_mul_i32 s75, s20, {stride}
s_add_u32 s75, s75, {base}
v_lshrrev_b32 v{VWR}, 1, v5
v_xor_b32 v{VWR}, v{VWR}, v6
v_lshlrev_b32 v{VWR}, 4, v{VWR}
v_lshl_add_u32 v{VWR}, v5, 7, v{VWR}
v_add_u32 v{VWR}, s75, v{VWR}
v_xor_b32 v{VWR+1}, 64, v{VWR}""")
def idmap():
    lat = "s_lshr_b32 s83, s81, 1\ns_add_u32 s82, s82, s83\ns_and_b32 s82, s82, 3\n" if O['lat'] else ""
    return f"""s_lshr_b32 s80, s21, 1
s_and_b32 s79, s21, 1
s_and_b32 s81, s22, 7
s_lshr_b32 s82, s22, 3
{lat}s_lshl_b32 s70, s80, 2
s_add_u32 s70, s70, s82
s_lshl_b32 s71, s81, 1
s_add_u32 s71, s71, s79
s_and_b32 s72, s81, 1
s_lshl_b32 s83, s70, 1
s_add_u32 s72, s72, s83
s_lshr_b32 s73, s81, 1
s_lshl_b32 s83, s79, 2
s_add_u32 s73, s73, s83
s_lshl_b32 s89, s80, 10
s_add_u32 s89, s89, s79
s_lshl_b32 s89, s89, 11"""
def common_ids(stride, base):
    return L(f"""v_lshlrev_b32 v2, 4, v0
v_and_b32 v5, 15, v0
v_lshrrev_b32 v6, 4, v0
{idmap()}
s_lshl_b32 s78, s70, 2
s_add_u32 s78, s78, s20
s_lshl_b32 s74, s78, 17
s_lshl_b32 s79, s79, 11
s_add_u32 s74, s74, s79
s_lshl_b32 s85, s78, 4
s_add_u32 s85, s85, s71
s_mul_i32 s86, s85, 3072
s_add_u32 s86, s86, {WS_X}
s_xor_b32 s87, s85, 1
s_mul_i32 s87, s87, 3072
s_add_u32 s87, s87, {WS_X}
v_lshrrev_b32 v{VW}, 3, v0
v_lshrrev_b32 v{VW+1}, 1, v{VW}
v_and_b32 v{VW+2}, 7, v0
v_xor_b32 v{VW+2}, v{VW+2}, v{VW+1}
v_lshlrev_b32 v{VW}, 13, v{VW}
v_lshl_add_u32 v{VW}, v{VW+2}, 4, v{VW}
v_add_u32 v{VW}, s74, v{VW}
v_xor_b32 v{VW+1}, 64, v{VW}
v_add_u32 v{VW+2}, 4096-2048, v{VW}
v_add_u32 v{VW+3}, 65536+4096-3072, v{VW+1}
v_add_u32 v{VW+1}, 65536-1024, v{VW+1}""") + stage_base(stride, base) + srd(8, 68, WS_SIZE) + srd(12, 58, 2048 * 4096)
def wdma(u, slot):
    pre = [f"    v_add_u32 v{VW+q}, 1024, v{VW+q}" for q in range(4)] if u == 8 else []
    return (pre + [f"    s_add_u32 m0, s75, {slot * 4096 - 128 * (u & 7)}"],
            [(f"    buffer_load_dwordx4 v{VW+q}, s[12:15], 0 offen offset:{1024*q + 128*(u&7)} lds", ('w', u)) for q in range(4)])
def wreg(u, k, par): return ar(16 * u + 8 * k + 4 * par, 4)
def wread(u, slot):
    return [('need', 'vm', [('w', u)])] + [(f"    ds_read_b128 {wreg(u,k,p)}, v{VWR+k} offset:{slot*4096+2048*p}", ('wr', u)) for k in range(2) for p in range(2)]
def xfill(r):
    return [f"    v_mov_b32 v{r+k}, -1" for k in range(4)], [f"    buffer_store_dwordx4 {vr(r,4)}, v2, s[8:11], s87 offen offset:{1024*n} sc1" for n in range(3)]
def f1b_addr(v, t):
    return L(f"""v_subrev_u32 v{t}, 32, v0
v_min_u32 v{t}, 5, v{t}
v_lshl_add_u32 v{t}, v{t}, 3, s73
v_add_u32 v{v}, 64, v0
v_cmp_gt_u32 vcc, 32, v0
s_mov_b32 s29, {FL_F1B}
s_nop 0
v_cndmask_b32 v{v}, v{t}, v{v}, vcc
v_lshlrev_b32 v{v}, 4, v{v}""")
def wo_addr(w, n): return 18432 * w + 1024 * n if n < 18 else L_Z + 12288 * (2 + (n - 18) // 3) + 3072 * w + 1024 * ((n - 18) % 3)
def wo_pieces(lo, hi, tag):
    R = []
    while lo < hi:
        m = min(hi, lo + 4, 18) if lo < 18 else lo + 3
        R += [f"    s_add_u32 m0, s75, {1024*lo}" if lo < 18 else f"    s_add_u32 m0, s27, {wo_addr(0, lo) - L_Z}", f"    v_add_u32 v10, {1024*lo}, v9"]
        R += [(f"    buffer_load_dwordx4 v10, s[8:11], 0 offen offset:{1024*q} sc1 lds", tag) for q in range(m - lo)]
        lo = m
    return R
def lin_dma(n, tag, sreg=27):
    return [(f"    buffer_load_dwordx4 v2, s[8:11], s{sreg} offen offset:{1024*q} sc1 lds", tag) for q in range(n)]
def win_early(S, mid=lambda: None):
    S.now(L(f"""s_mul_i32 s27, s71, 122880
s_mul_i32 s25, s20, 15360
s_add_u32 s27, s27, s25
s_add_u32 s27, s27, {WS_WIN}
s_mul_i32 s26, s20, {TW}
s_mov_b32 m0, s26
s_lshl_b32 s24, s20, 12""") + lin_dma(4, 'we') + L("s_add_u32 m0, m0, 4096\ns_add_u32 s27, s27, 4096") + lin_dma(4, 'we'))
    mid()
    S.now(L(f"s_add_u32 m0, s24, {L_U}\ns_add_u32 s27, s27, 4096") + lin_dma(4, 'we'))

def conv_role(a):
    P0, P2, DT, VPL, CUR = 16, 22, 28, 29, 30
    Z1, Z8, Z256, CB, T = 36, 38, 40, 42, 44
    CV, FR, KA, XR, ST, XF = 88, 100, 164, 180, 32, 212
    AD, VY, VYR, VU, VT, VP = 244, 249, 250, 251, 252, 3
    S = Sched(a)
    a(f"""L_conv:
    s_mul_i32 s23, s21, 20
    s_add_u32 s23, s23, s22            ; quad
    s_lshl_b32 s24, s23, 2
    s_add_u32 s24, s24, s20            ; channel
    s_mul_i32 s25, s24, 384
    v_lshl_add_u32 v7, v0, 1, s25
    v_lshl_add_u32 v14, v0, 2, s25
    s_lshl_b32 s25, s24, 1
    v_mov_b32 v15, s25
    v_mov_b32 v{DT}, 0""")
    for k in range(6): a(f"    v_mov_b32 v{P2+k}, 0")
    a(f"""    s_lshl_b32 s25, s23, 3
    v_mul_u32_u24 v208, 2560, v1
    v_add_u32 v208, s25, v208
    s_and_b32 s4, s22, {3 if O['rot'] else 0}
    s_xor_b32 s5, s4, 1
    s_xor_b32 s6, s4, 2
    s_xor_b32 s7, s4, 3
    s_mul_i32 s16, s4, {512*1280}
    s_mul_i32 s17, s5, {512*1280}
    s_mul_i32 s18, s6, {512*1280}
    s_mul_i32 s19, s7, {512*1280}
    v_add_u32 v4, s16, v208
    s_waitcnt lgkmcnt(0)""")
    if O['ksplit']: a(KREST)
    S.put((f"    global_load_short_d16_hi v{DT}, v15, s[50:51]", 'p2'))
    for k in range(6): S.put((f"    global_load_short_d16_hi v{P2+k}, v7, s[{38+2*k}:{39+2*k}] offset:256", 'p2'))
    for k in range(6): S.put((f"    global_load_dword v{P0+k}, v14, s[{38+2*k}:{39+2*k}]", 'p0'))
    if O['xt']:
        a("""    s_mul_i32 s26, s22, 103
    v_lshrrev_b32 v48, 1, v1
    v_add_u32 v48, s26, v48
    v_min_u32 v48, 2047, v48
    v_mul_u32_u24 v48, 1280, v48
    v_and_b32 v49, 1, v1
    v_mul_u32_u24 v49, 156, v49
    s_mul_i32 s26, s21, 160
    v_add3_u32 v48, v48, v49, s26""")
    a("    s_barrier")
    if O['xt']: S.put("    global_load_dword v253, v48, s[36:37]")
    xq = []
    for j in range(4):
        xq += [(f"    global_load_dwordx2 {vr(XR+4*j,2)}, v4, s[36:37]", ('x', j)), (f"    global_load_dwordx2 {vr(XR+4*j+2,2)}, v4, s[36:37] offset:1280", ('x', j)),
               f"    v_add_u32 v4, s{17+j}, v208" if j < 3 else "    v_lshlrev_b32 v4, 4, v1"]
    def xnext(n):
        for _ in range(n):
            if xq:
                x = xq.pop(0)
                if not O['ab'] & 1: S.put(x)
            if xq and isinstance(xq[0], str): S.put(xq.pop(0))
    xnext(min(1, O['x0']))
    ci = common_ids(16384, L_W)
    emit(a, ci[:-8])
    a(f"""    s_mul_i32 s26, s20, {TW}
    s_mov_b32 m0, s26
    v_and_b32 v7, 31, v0
    v_mul_u32_u24 v7, {RS}, v7
    v_lshrrev_b32 v14, 5, v0
    v_lshl_add_u32 v7, v14, 4, v7
    v_add_u32 v7, s26, v7
    v_mov_b32 v48, 0x3f80
    v_mov_b32 v50, 0
    v_mov_b32 v51, 0
    s_mul_i32 s27, s20, 4608
    s_add_u32 s27, s27, {L_U}
    v_lshl_add_u32 v52, v0, 3, s27
    ds_write_addtid_b32 v48 offset:{32*RS}
    ds_write_b64 v52, v[50:51]
    v_add_u32 v14, 1, v5
    v_lshrrev_b32 v14, 1, v14
    v_lshlrev_b32 v14, 2, v14
    v_lshl_add_u32 v14, v6, 4, v14
    v_and_b32 v15, 1, v5
    v_mul_u32_u24 v15, 4160, v15
    v_add_u32 v14, v14, v15
    s_add_u32 s28, s26, {4160 + 4112 - 512 - 448}
    v_sub_u32 v{AD}, s28, v14
    v_subrev_u32 v{AD+1}, 1024, v{AD}
    v_subrev_u32 v{AD+2}, 2048, v{AD}
    v_subrev_u32 v{AD+3}, 3072, v{AD}
    v_lshlrev_b32 v14, 5, v5
    v_lshlrev_b32 v15, 4, v6
    v_sub_u32 v14, v14, v15
    s_add_u32 s28, s27, {512 + 16 - 448}
    v_add_u32 v{AD+4}, s28, v14
    v_lshlrev_b32 v{VU}, 2, v1
    v_add_u32 v{VU}, {L_U + 512}, v{VU}
    v_bfe_u32 v14, v5, 1, 2
    v_xor_b32 v14, v14, v6
    v_lshlrev_b32 v14, 4, v14
    v_lshl_add_u32 v14, v5, 6, v14
    s_add_u32 s28, s26, {YO}
    v_add_u32 v{VY}, s28, v14
    v_bfe_u32 v14, v1, 4, 2
    v_lshlrev_b32 v14, 4, v14
    v_lshlrev_b32 v15, 3, v1
    v_xor_b32 v14, v14, v15
    v_add_u32 v{VYR}, {YO}, v14
    s_add_u32 s28, s26, 1008
    v_sub_u32 v{VT}, s28, v2
    v_and_b32 v{VP}, 3, v0
    v_lshlrev_b32 v{VP}, 6, v{VP}
    v_mov_b32 v{VPL}, 16
    s_lshl_b32 s28, s22, 8
    v_add_u32 v14, s28, v1
    v_mul_u32_u24 v15, 6554, v14
    v_lshrrev_b32 v15, 16, v15
    v_mul_u32_u24 v15, {4096 - 10*128}, v15
    v_lshl_add_u32 v254, v14, 7, v15
    s_add_u32 s34, s89, {6*128}""")
    emit(a, f1b_addr(15, 14))
    xnext(O['x0'] - 1)
    a("    s_waitcnt lgkmcnt(0)\n    s_load_dwordx2 s[30:31], s[52:53], s25")
    emit(a, ci[-8:])
    S.put(('need', 'vm', ['p2']))
    a(f"    ; MARK 0\n    v_mul_f32 v{DT}, {f2u(LOG2E)}, v{DT}\n    v_exp_f32 v{DT}, v{DT}")
    emit(a, rbf(DT, DT))
    def setup(c):
        R = []
        if c == 0: p = [P2 + k for k in range(6)]
        else:
            p = [CUR + k for k in range(6)]
            for k in range(6): R.append(f"    v_lshlrev_b32 v{CUR+k}, 16, v{P0+k}" if c == 1 else f"    v_and_b32 v{CUR+k}, 0xffff0000, v{P0+k}")
        R += L(f"v_mul_f32 v{T}, v{DT}, v{p[0]}\nv_mul_f32 v{T+1}, v{DT}, v{p[1]}\nv_mul_f32 v{T}, {f2u(LOG2E)}, v{T}\nv_mul_f32 v{T+1}, 0.15915494, v{T+1}")
        ex = L(f"""v_mul_f32 v{CB}, v{p[2]}, v{p[4]}
v_mul_f32 v{CB+1}, v{p[2]}, v{p[5]}
v_fma_f32 v{CB}, -v{p[3]}, v{p[5]}, v{CB}
v_fma_f32 v{CB+1}, v{p[3]}, v{p[4]}, v{CB+1}
v_mul_f32 v{CB}, v{CB}, v{DT}
v_mul_f32 v{CB+1}, v{CB+1}, v{DT}""")
        for z, e in ((Z8, 8), (Z1, 1), (Z256, 256)):
            if e == 1: R += L(f"v_fract_f32 v{T+3}, v{T+1}\nv_exp_f32 v{T+2}, v{T}")
            else: R += L(f"v_mul_f32 v{T+3}, {f2u(float(e))}, v{T+1}\nv_mul_f32 v{T+2}, {f2u(float(e))}, v{T}\nv_fract_f32 v{T+3}, v{T+3}\nv_exp_f32 v{T+2}, v{T+2}")
            R += L(f"v_cos_f32 v{z}, v{T+3}\nv_sin_f32 v{z+1}, v{T+3}") + [ex.pop(0), ex.pop(0)] + L(f"v_mul_f32 v{z}, v{z}, v{T+2}\nv_mul_f32 v{z+1}, v{z+1}, v{T+2}")
        return R
    row = lambda rho, h: 8 * (rho >> 2) + 4 * h + (rho & 3)
    grp = []; nfl = [0]; mq = []
    def mfma(c, kk):
        S.put(('need', 'lg', [('a', kk)]))
        a(f"    v_mfma_f32_32x32x16_bf16 {vr(KA,16)}, {vr(FR+8*kk,4)}, {vr(FR+8*kk+4,4)}, {vr(KA,16) if (c or kk) else '0'}")
    def flushw():
        S.q = [f"    v_cvt_pk_bf16_f32 v{CV+n}, v{reg}, {'-' if neg else ''}v{reg+1}" for n, (reg, rows, neg) in enumerate(grp)]
        S.q += [f"    ds_write_addtid_b32 v{CV+n} offset:{r*RS}" for n, (reg, rows, neg) in enumerate(grp) for r in rows]
        grp.clear()
        if O['ab'] & 2: S.q = [x if 'cvt' in x else '    v_mov_b32_e64 v99, v99' for x in S.q]
        while mq and len(S.q) >= 9: mfma(*mq.pop(0)); S.gap(24)
        S.flush()
        if O['xat'] >> nfl[0] & 1: xnext(1)
        nfl[0] += 1
    def chainB():
        grp.append((Z8, [33], False)); prev = Z8
        for j in range(2, 32):
            d = 48 + 2 * (j % 12); emit(a, cmul(d, prev, Z8)); grp.append((d, [32 + j], False)); prev = d
            if j % 10 == 1: flushw()
        assert not mq
    def chainA():
        grp.append((CB, [row(0, 0)], True)); X = {0: CB}; nd = [48]
        def mul(e, src, z, rows):
            X[e] = nd[0]; nd[0] += 2
            emit(a, cmul(X[e], X[src], z)); grp.append((X[e], rows, True))
        for k in range(1, 8): mul(k, k - 1, Z1, [row(k, 0)])
        pat = [0, 0, 2, 4, 4, 4, 6]
        for off in (0, 2, 4, 6):
            mul(256 + off, off, Z256, [row(r, 1) for r in range(7) if pat[r] == off])
            if off == 2: flushw()
        for blk in (2, 3):
            for n, off in enumerate((0, 4)): mul(256 * blk + off, 256 * (blk - 1) + off, Z256, [row(8 + n, blk & 1)])
        for blk in range(4, 9): mul(256 * blk, 256 * (blk - 1), Z256, [row(8 + blk // 2, blk & 1)])
        flushw()
    emit(a, setup(0))
    poll1 = f"    global_load_dword v{VPL}, v{VP}, s[66:67] sc1"
    def unpack(j):
        R = [('need', 'vm', [('x', j)])]
        for par in range(2):
            for h in range(2):
                r = XR + 4 * j + 2 * par + h
                R += [f"    v_lshlrev_b32 v{XF+8*j+4*h+par}, 16, v{r}", f"    v_and_b32 v{XF+8*j+4*h+2+par}, 0xffff0000, v{r}"]
        return R
    def s1poll(): a(f"    s_cmp_lg_u32 s20, 0\n    s_cbranch_scc1 L_np1\n{poll1}\nL_np1:")
    def s1check():
        assert not xq
        a("    s_cmp_lg_u32 s20, 0\n    s_cbranch_scc1 S1_d\n    s_waitcnt vmcnt(0)")
        emit(a, recheck("S1", [poll1], [f"    v_cmp_gt_u32 vcc, 16, v{VPL}"]))
        a("    s_barrier\n    ; MARK 1")
        S.now([(f"    buffer_load_dwordx4 {vr(ST+4*j,4)}, v86, s[8:11], s{16+j} offen sc1", ('st', j)) for j in range(4)])
    for c in range(3):
        chainB()
        S.now([(f"    ds_read_b128 {vr(FR+8*kk+4,4)}, v7 offset:{32*kk+32*RS}", ('b', kk)) for kk in range(8)])
        if c == 2 and O['s1p'] == 0: s1poll()
        chainA()
        S.now([(f"    ds_read_b128 {vr(FR+8*kk,4)}, v7 offset:{32*kk}", ('a', kk)) for kk in range(8)])
        if O['kgmarks']: a(f"    ; MARK {25 + c}")
        if c == 0: S.put(('need', 'vm', ['p0']))
        if c < 2:
            S.q = setup(c + 1); S.gap(4 * O['dl'])
            for kk in range(O['dm']): mfma(c, kk); S.gap(24)
            S.flush()
            mq.extend((c, kk) for kk in range(O['dm'], 8))
        if O['kgmarks'] and c < 2: a(f"    ; MARK {28 + c}")
    assert not xq
    if O['s1p'] == 1: s1poll()
    S.now(L(f"""s_lshl_b32 s16, s4, 12
s_lshl_b32 s17, s5, 12
s_lshl_b32 s18, s6, 12
s_lshl_b32 s19, s7, 12
v_add_u32 v86, {WS_ST1}, v4
v_lshl_add_u32 v84, v0, 2, s26
v_and_b32 v14, 1, v0
v_cmp_eq_u32 s[80:81], 1, v14
v_mov_b32 v81, 0
v_cmp_eq_u32 s[24:25], 0, v0"""))
    if O['s1c'] == 0: s1check()
    S.q += [f"    v_lshl_add_u32 v{208+j}, s{4+j}, 10, v{VU}" for j in range(4)]
    for j in range(O['ue']): S.q += unpack(j)
    for kk in range(8): mfma(2, kk); S.gap(24)
    S.flush()
    if O['s1c'] == 1: s1check()
    a("    ; MARK 2")
    V = lambda r: KA + r
    N = [90, 91, 92, 93]; first = [V(0), V(8), V(10), V(11), V(12)]
    for G in range(4): a(f"    v_mov_b32_dpp v{N[G]}, v{first[G+1]} wave_rol:1 row_mask:0xf bank_mask:0xf")
    for G in range(4): a(f"    v_mov_b32_dpp v{N[G]}, v{first[G]} wave_shl:1 row_mask:0xf bank_mask:0xf")
    a(f"""    v_cvt_pk_bf16_f32 v80, v{V(0)}, v81
    v_mov_b32_dpp v{V(7)}, v{N[0]} quad_perm:[0,1,2,3] row_mask:0xc bank_mask:0xf
    v_cndmask_b32 v82, v{V(10)}, v{N[2]}, s[80:81]
    v_cndmask_b32 v83, v{V(11)}, v{N[3]}, s[80:81]
    v_cndmask_b32 v80, v81, v80, s[24:25]""")
    touch = ["    buffer_load_dword v253, v254, s[12:15], s34 offen"] * O['ct']
    if O['s1c'] < 2 and O['ctpos'] == 0: S.now(touch)
    emap = [[V(k) for k in range(8)] + [N[0]], [V(8)] * 3 + [V(9)] * 3 + [N[1]] * 3,
            [V(10)] * 4 + [82] + [N[2]] * 4, [V(11)] * 4 + [83] + [N[3]] * 4]
    tw = []
    for G in range(4):
        e = emap[G]; o = 48 + 8 * G
        for k in range(4): a(f"    v_cvt_pk_bf16_f32 v{o+k}, v{e[7-2*k]}, v{e[6-2*k]}")
        for k in range(4): a(f"    v_cvt_pk_bf16_f32 v{o+4+k}, v{e[8-2*k]}, v{e[7-2*k]}")
        tw += [f"    ds_write_b128 v{VT}, {vr(o,4)} offset:{3072-1024*G}", f"    ds_write_b128 v{VT}, {vr(o+4,4)} offset:{4160+3072-1024*G}"]
        S.put(tw.pop(0))
        if O['s1c'] < 2 and O['ctpos'] == G + 1: S.now(touch)
        if G == 0:
            a("    s_mov_b64 exec, 0xffff")
            S.now(["    ds_write_b32 v84, v81 offset:4096", f"    ds_write_b32 v84, v80 offset:{4160+4096}"])
            a("    s_mov_b64 exec, -1")
    if O['s1c'] == 2: s1check()
    for j in range(O['ue'], 4): S.now(unpack(j) + tw[:1]); tw = tw[1:]
    if O['s1c'] == 2: S.now(touch)
    S.now(tw)
    ACC, SET, UF = 16, [48, 112], 176
    def rdA(r):
        R = []
        for p in range(8):
            o = (128 if p % 2 == 0 else 0) + 16 * (7 - r); d = SET[r & 1] + 4 * p
            R += [(f"    ds_read2_b32 {vr(d,2)}, v{AD+p//2} offset0:{o} offset1:{o+1}", ('A', r, p)),
                  (f"    ds_read2_b32 {vr(d+2,2)}, v{AD+p//2} offset0:{o+2} offset1:{o+3}", ('A', r, p))]
        return R
    def rdB(r): return [(f"    ds_read_b128 {vr(SET[r&1]+32+4*q,4)}, v{AD+4} offset:{512*q+64*(7-r)}", ('B', r, q)) for q in range(8)]
    S.now(rdA(0))
    a("    ; MARK 3")
    for j in range(4):
        S.put(('need', 'vm', [('st', j)]))
        for c in range(4):
            a(f"    v_pk_fma_f32 {vr(UF+8*j+2*c,2)}, {vr(XF+8*j+2*c,2)}, {vr(ST+4*j,2)}, {vr(ST+4*j+2,2)} neg_lo:[0,0,1] neg_hi:[0,0,1]")
        for c in range(4): a(f"    v_cvt_pk_bf16_f32 v{144+4*j+c}, v{UF+8*j+2*c}, v{UF+8*j+2*c+1}")
        if j & 1:
            for jj in (j - 1, j):
                for c in (0, 2): S.put((f"    ds_write2st64_b32 v{208+jj}, v{144+4*jj+c}, v{144+4*jj+c+1} offset0:{18*c} offset1:{18*c+18}", 'uw'))
    if O['ctpos'] == 5: S.now(touch)
    a("""    s_waitcnt lgkmcnt(0)
    s_barrier
    ; MARK 4
    s_and_b32 s33, s31, 0xffff0000
    s_lshl_b32 s32, s31, 16
    s_and_b32 s31, s30, 0xffff0000
    s_lshl_b32 s30, s30, 16""".replace("    ; MARK 4\n", "    ; MARK 4\n" + "\n".join(x[0] for x in rdB(0)) + "\n"))
    S.lg.q = [x[1] for x in rdB(0)]
    basef = [f"    v_fmac_f32 v{XF+r}, s{30+((r>>1)&3)}, v{UF+r}" for r in range(32)]
    basef += [f"    v_lshl_add_u32 v{208+j}, s{4+j}, 11, v{VYR}" for j in range(4)] + [f"    v_lshl_add_u32 v4, s23, 14, v4"]
    poll1b = f"    buffer_load_dword v14, v15, s[8:11], s29 offen sc1"
    NP = O['wpre']; ev = {}
    def at(k, xs): ev.setdefault(k, []).extend(xs)
    span = (288 - O['wend'] - O['k00'] + 14) // (16 - NP)
    for u in range(NP, 16):
        k0 = O['k00'] + span * (u - NP)
        pre, d = wdma(u, u & 3)
        if u >= 4:
            w = wread(u - 4, u & 3)
            at(k0 - 13, w[:1])
            for q, o in enumerate((12, 11, 8, 7)): at(k0 - o, w[1+q:2+q])
            at(k0 - 1, [('need', 'lg', [('wr', u - 4)])])
        at(k0 - 3, pre[:-3]); at(k0 - 2, pre[-3:])
        for q in range(4): at(k0 + (q * (span - 4)) // 3, d[q:q+1])
    late = []
    for n, u in enumerate(range(12, 16)):
        w = wread(u, u & 3); k0 = max(252 + 5 + 7 * n, O['k00'] + span * (u - NP + 1) + 36)
        if k0 + 5 > 288: late += w; continue
        at(k0, w[:1])
        for q in range(4): at(k0 + 1 + q, w[1+q:2+q])
    assert max(ev) < 288 and min(ev) >= 0
    kk = 0
    for r in range(8):
        st = r & 1
        S.q += rdA(r + 1) + rdB(r + 1) if r < 7 else []
        if r == 6: S.q.append((poll1b, 'p1b'))
        for q in range(8):
            for p in range(8 - q):
                if r == 0: S.put(('need', 'lg', [('A', r, p), ('B', r, q)]))
                elif p == 0 and q == 0: S.put(('need', 'lg', [('A', r, 7), ('B', r, 1)]))
                elif p == 0 and q == 2: S.put(('need', 'lg', [('B', r, 7)]))
                c = vr(ACC + 4 * (p + q), 4)
                a(f"    v_mfma_f32_16x16x32_bf16 {c}, {vr(SET[st]+4*p,4)}, {vr(SET[st]+32+4*q,4)}, {c if (r or q) else '0'}")
                if r == 7 and p == 2 and q >= 1: S.put(f"    ds_write_b128 v{VY}, {vr(ACC+4*(q-1),4)} offset:{1024*(q-1)}")
                e = ev.get(kk, [])
                if not e and basef and kk % 36 not in (14, 35): e = [basef.pop(0)]
                isds = any(isinstance(x, tuple) and x[0].split()[0].startswith("ds_") for x in e)
                left = 36 * (r + 1) - kk - 4
                if kk >= 4 or e: S.gap(4 if (not e or (isds and len(S.q) < left - 6)) else 8, e)
                kk += 1
        S.flush()
        if O['cvmarks'] and r in (1, 3, 5): a(f"    ; MARK {25 + r // 2}")
    a("    ; MARK 5")
    S.put(('need', 'vm', ['p1b']))
    emit(a, recheck("S1b", [poll1b], ["    v_cmp_eq_u32 vcc, -1, v14"]))
    for J in range(5, 8): S.put(f"    ds_write_b128 v{VY}, {vr(ACC+4*J,4)} offset:{1024*J}")
    a("    s_waitcnt lgkmcnt(0)\n    s_barrier")
    S.lg.q = []
    for j in range(4):
        for c in range(4): S.put((f"    ds_read_b64 {vr(48+8*j+2*c,2)}, v{208+j} offset:{TW*c}", ('y', j)))
    for j in range(4):
        S.put(('need', 'lg', [('y', j)]))
        b = 48 + 8 * j
        for c in range(4): a(f"    v_pk_add_f32 {vr(b+2*c,2)}, {vr(b+2*c,2)}, {vr(XF+8*j+2*c,2)}")
        for par in range(2):
            for h in range(2): a(f"    v_cvt_pk_bf16_f32 v{80+4*j+2*par+h}, v{b+4*h+par}, v{b+4*h+2+par}")
        S.put((f"    buffer_store_dwordx4 {vr(80+4*j,4)}, v4, s[8:11], s{16+j} offen sc1", 'h'))
    a("    ; MARK 6")
    S.now(late)
    win_early(S)
    a(f"""    s_lshl_b32 s28, s2, {O['f2s']}
    s_add_u32 s28, s28, {FL_F2R}
    s_lshl_b32 s29, s2, 7
    s_add_u32 s29, s29, {FL_F2P}
    v_mul_u32_u24 v14, 10240, v0
    v_add_u32 v14, s28, v14
    v_mov_b32 v15, 1
    v_writelane_b32 v14, s29, 8""")
    S.put(('need', 'vm', ['h']))
    a(f"""    s_waitcnt lgkmcnt(0)
    s_barrier
    ; MARK 7
    s_cmp_lg_u32 s20, 0
    s_cbranch_scc1 L_common
    s_mov_b64 exec, {(0xff if O['rep'] else 1) + (0x100 if O['gate'] else 0)}
    buffer_store_dword v15, v14, s[8:11], 0 offen sc1
    s_mov_b64 exec, -1""")

def flag_store(a, skip, saddr):
    a(f"""    s_barrier
    s_cmp_lg_u32 s20, 0
    s_cbranch_scc1 {skip}
    s_mov_b64 exec, {15 if O['r3'] else 1}
    buffer_store_dword v0, v7, s[8:11], s{saddr} offen sc1
    s_mov_b64 exec, -1
{skip}:""")

TL = "    buffer_load_dword v61, v60, s[12:15], s33 offen"
def touch_set(line0, lg, rows):
    return L(f"""{rows}
s_add_u32 s33, s89, s34
s_add_u32 s33, s33, {128*line0}
v_lshrrev_b32 v60, {lg}, v1
v_lshlrev_b32 v60, 12, v60
v_and_b32 v61, {(1 << lg) - 1}, v1
v_lshl_add_u32 v60, v61, 7, v60""")
def helper_role(a):
    HS, HB, HN = 20480, 81920, 5
    a("L_help:")
    ci = common_ids(HS, HB)
    emit(a, ci[:-8] + ["    s_waitcnt lgkmcnt(0)"] + ci[-8:])
    a(f"""    v_mov_b32 v56, -1
    v_mov_b32 v57, -1
    v_mov_b32 v58, -1
    v_mov_b32 v59, -1
    v_lshlrev_b32 v4, 4, v1
    s_lshl_b32 s28, s23, 13
    s_add_u32 s28, s28, {WS_FL}
    s_add_u32 s29, s28, 4096
    buffer_store_dwordx4 v[56:59], v4, s[8:11], s28 offen sc1
    buffer_store_dwordx4 v[56:59], v4, s[8:11], s29 offen sc1
    v_mov_b32 v62, 0x3f803f80
    v_lshrrev_b32 v7, 1, v3
    v_lshlrev_b32 v7, 4, v7
    v_and_b32 v15, 1, v3
    v_lshl_add_u32 v7, v15, 2, v7
    v_lshl_add_u32 v7, v14, 3, v7
    v_cmp_eq_u32 vcc, 1, v14
    s_mov_b32 s28, {WS_ST1}""")
    for q in range(10):
        a(f"    s_waitcnt vmcnt({11-q})")
        if q == 9: a("    ; MARK 0")
        for k in range(4):
            z = (q or k)
            a(f"    v_dot2_f32_bf16 v60, v{16+4*q+k}, v62, {'v60' if z else '0'}")
            a(f"    v_dot2_f32_bf16 v61, v{16+4*q+k}, v{16+4*q+k}, {'v61' if z else '0'}")
    for m in ("row_half_mirror", "quad_perm:[2,3,0,1]", "quad_perm:[1,0,3,2]"):
        a(f"    v_add_f32_dpp v60, v60, v60 {m} row_mask:0xf bank_mask:0xf")
        a(f"    v_add_f32_dpp v61, v61, v61 {m} row_mask:0xf bank_mask:0xf")
    emit(a, ln_scalars(60, 61, 640, 64, 63, 65))
    a(f"""    v_cndmask_b32 v63, v63, v64, vcc
    s_mov_b32 exec_lo, 0x03030303
    s_mov_b32 exec_hi, 0x03030303
    buffer_store_dword v63, v7, s[8:11], s28 offen sc1
    s_mov_b64 exec, -1
    s_and_b32 s29, s2, 3
    s_lshl_b32 s29, s29, 6
    v_mov_b32 v66, s29
    v_mov_b32 v67, 1
    s_waitcnt vmcnt(0)
    s_barrier
    s_cmp_lg_u32 s20, 0
    s_cbranch_scc1 L_ar
    s_mov_b64 exec, 1
    global_atomic_add v66, v67, s[66:67] sc1
    s_mov_b64 exec, -1
L_ar:
    ; MARK 1
    s_cmp_lt_u32 s23, 48
    s_cbranch_scc1 L_hout""")
    emit(a, touch_set(0, 1, "s_sub_u32 s34, s22, 26\ns_lshl_b32 s34, s34, 20"))
    a(f"{TL}\n    s_add_u32 s33, s33, {128*4096}\n{TL}")
    emit(a, [x.replace("v61", "v62") for x in touch_set(2, 2, "s_sub_u32 s34, s22, 20\ns_lshl_b32 s34, s34, 18")])
    a(TL)
    a(f"""    s_waitcnt vmcnt(0)
    s_branch L_hdone
L_nostat:""")
    if O['ksplit']: a(KREST)
    emit(a, ci[:-8] + ["    s_waitcnt lgkmcnt(0)"] + ci[-8:])
    if O['hdelay']: a("    s_waitcnt vmcnt(0)")
    a("    ; MARK 1")
    emit(a, srd(16, 56, 640 * 1536 * 2))
    a(f"""    s_and_b32 s25, s23, 7
    s_bfe_u32 s26, s23, 0x20003
    s_mul_i32 s27, s26, {160*3072}
    s_mul_i32 s28, s20, {8*3072}
    s_add_u32 s27, s27, s28
    s_mul_i32 s28, s25, 384
    s_add_u32 s27, s27, s28
    s_mul_i32 m0, s20, 3072""")
    for q in range(3):
        a(f"""    v_add_u32 v7, {64*q}, v0
    v_mul_u32_u24 v3, 2731, v7
    v_lshrrev_b32 v3, 16, v3
    v_mul_u32_u24 v3, {3072-384}, v3
    v_add_u32 v{100+q}, v2, v3""")
    for ks in range(5):
        for q in range(3): a(f"    buffer_load_dwordx4 v{100+q}, s[16:19], s27 offen offset:{1024*q} lds")
        if ks < 4: a(f"    s_add_u32 m0, m0, 12288\n    s_add_u32 s27, s27, {32*3072}")
    a(f"""    v_bfe_u32 v7, v0, 2, 2
    v_lshl_add_u32 v7, v6, 3, v7
    v_mul_u32_u24 v7, 384, v7
    v_and_b32 v3, 3, v0
    v_lshl_add_u32 v7, v3, 3, v7
    s_mul_i32 s28, s20, 96
    v_add_u32 v7, s28, v7
    s_lshl_b32 s27, s25, 2
    s_add_u32 s27, s27, s20
    s_and_b32 s30, s27, 15
    s_mul_i32 s30, s30, 120
    s_cmp_ge_u32 s27, 16
    s_cselect_b32 s29, 0, 60
    s_add_u32 s30, s30, s29
    s_mul_i32 s29, s26, 15
    s_add_u32 s30, s30, s29
    s_lshl_b32 s30, s30, 10
    s_add_u32 s30, s30, {WS_WIN}
    v_mov_b32 v99, 0x3f803f80
    s_waitcnt vmcnt(0)
    s_barrier""")
    for n in range(15):
        ks, t = divmod(n, 3)
        a(f"    ds_read_b64_tr_b16 {vr(16+4*n,2)}, v7 offset:{12288*ks+32*t}")
        a(f"    ds_read_b64_tr_b16 {vr(18+4*n,2)}, v7 offset:{12288*ks+32*t+4*384}")
    for n in range(15):
        ks, t = divmod(n, 3)
        a(f"    s_waitcnt lgkmcnt({min(15,28-2*n)})")
        a(f"    buffer_store_dwordx4 {vr(16+4*n,4)}, v2, s[8:11], s30 offen offset:{1024*t} sc1")
        if t == 2: a(f"    s_add_u32 s30, s30, 3072")
        for k in range(4): a(f"    v_dot2_f32_bf16 v{96+t}, v{16+4*n+k}, v99, {'v%d' % (96+t) if (ks or k) else '0'}")
    for t in range(3): emit(a, allreduce_g(96 + t, 100))
    a(f"""    s_mul_i32 s27, s27, 768
    s_lshl_b32 s28, s26, 4
    s_add_u32 s27, s27, s28
    s_add_u32 s27, s27, {WS_CS}
    v_cmp_eq_u32 vcc, 1, v6
    v_cmp_eq_u32 s[30:31], 2, v6
    v_and_b32 v7, 60, v0
    v_lshlrev_b32 v7, 4, v7
    v_lshl_add_u32 v7, v3, 2, v7
    v_cndmask_b32 v96, v96, v97, vcc
    v_cndmask_b32 v96, v96, v98, s[30:31]
    s_mov_b32 exec_hi, 0xffff
    buffer_store_dword v96, v7, s[8:11], s27 offen sc1
    s_mov_b32 exec_hi, -1
    s_branch L_hdone
L_hout:""")
    S = Sched(a)
    if O['tfirst']:
        emit(a, touch_set(2, 2, "s_sub_u32 s34, s22, 20\ns_lshl_b32 s34, s34, 18"))
        S.put((TL, 't'))
    emit(a, srd(16, 62, 768 * 640 * 2))
    a(f"""    s_and_b32 s24, s23, 7              ; d block
    s_lshr_b32 s25, s23, 3
    s_lshl_b32 s25, s25, 2
    s_add_u32 s25, s25, s20            ; k step
    s_mul_i32 s30, s25, 43691
    s_lshr_b32 s30, s30, 17
    s_mul_i32 s31, s30, 3
    s_sub_u32 s31, s25, s31            ; 0 / 1 (mixed) / 2
    s_mul_i32 s30, s30, 96
    s_mul_i32 s32, s31, 24
    s_cmp_eq_u32 s31, 1
    s_cselect_b32 s32, 32, s32
    s_cselect_b32 s33, {32*1280}, 0
    s_movk_i32 s34, {4*160}
    s_cmovk_i32 s34, {8*160}
    s_movk_i32 s79, {16*160}
    s_cmovk_i32 s79, {4*160}
    s_add_u32 s30, s30, s32
    s_mul_i32 s26, s30, 1280
    s_mul_i32 s27, s24, 160
    s_add_u32 s26, s26, s27
    s_mul_i32 s27, s20, 5120
    s_mov_b32 m0, s27""")
    for q in range(5):
        a(f"""    v_add_u32 v7, {64*q}, v0
    v_mul_u32_u24 v3, 6554, v7
    v_lshrrev_b32 v3, 16, v3
    v_lshrrev_b32 v15, 4, v3
    v_mul_u32_u24 v3, 1120, v3
    v_lshl_add_u32 v7, v7, 4, v3
    v_mad_u32_u24 v7, v15, s33, v7""")
        S.put(("    buffer_load_dwordx4 v7, s[16:19], s26 offen lds", 'r'))
        if q < 4: a("    s_add_u32 m0, m0, 1024")
    a(f"""    v_bfe_u32 v56, v0, 2, 2
    v_mul_u32_u24 v56, 160, v56
    v_mad_u32_u24 v56, v6, s34, v56
    v_add_u32 v56, s27, v56
    v_and_b32 v3, 3, v0
    v_lshl_add_u32 v57, v3, 3, v56
    v_lshl_add_u32 v56, v3, 4, v56
    v_add_u32 v58, s79, v56
    v_add_u32 v59, s79, v57""")
    if not O['tfirst']:
        emit(a, touch_set(2, 2, "s_sub_u32 s34, s22, 20\ns_lshl_b32 s34, s34, 18"))
        S.put((TL, 't'))
    a(f"""    s_mul_i32 s28, s25, 43691
    s_lshr_b32 s28, s28, 18
    s_mul_i32 s28, s28, 6
    s_sub_u32 s29, s25, s28
    s_lshl_b32 s29, s29, 2
    s_lshr_b32 s29, 0x352140, s29
    s_and_b32 s29, s29, 15
    s_add_u32 s25, s28, s29
    s_mul_i32 s28, s24, 24
    s_add_u32 s28, s28, s25
    s_mul_i32 s28, s28, 5120
    s_add_u32 s28, s28, {WS_WOUT}
    s_add_u32 s29, s28, 4096""")
    S.put(('need', 'vm', ['r']))
    for t in range(5):
        ad, o = (56, 64 * (t >> 1) + 8 * (t & 1)) if t < 4 else (57, 128)
        a(f"    ds_read_b64_tr_b16 {vr(16+4*t,2)}, v{ad} offset:{o}")
        a(f"    ds_read_b64_tr_b16 {vr(18+4*t,2)}, v{ad+2} offset:{o}")
    for t in range(5):
        a(f"    s_waitcnt lgkmcnt({8-2*t})")
        if t < 4: a(f"    buffer_store_dwordx4 {vr(16+4*t,4)}, v2, s[8:11], s28 offen offset:{1024*t} sc1")
        else: a(f"    buffer_store_dwordx4 {vr(16+4*t,4)}, v2, s[8:11], s29 offen sc1")
    a("L_hdone:\n    ; MARK 2")
    S = Sched(a)
    p1 = "    global_load_dword v14, v7, s[66:67] sc1"
    p1b = "    buffer_load_dword v14, v3, s[8:11], s29 offen sc1"
    a(f"""    v_and_b32 v7, 3, v0
    v_lshlrev_b32 v7, 6, v7""")
    emit(a, f1b_addr(3, 4))

    for u in range(3):
        if u == O['p1u']: S.put((p1, 'p1'))
        pre, d = wdma(u, u); S.now(pre + d)
    S.put(('need', 'vm', ['p1']))
    emit(a, recheck("H1", [p1], ["    v_cmp_gt_u32 vcc, 16, v14"], sleep=8))
    a(f"""    s_barrier
    s_cmp_lg_u32 s20, 0
    s_cbranch_scc1 L_f1b
    s_lshl_b32 s28, s23, 4
    s_add_u32 s28, s28, s29
    s_mov_b64 exec, 1
    buffer_store_dword v0, v0, s[8:11], s28 offen sc1
    s_mov_b64 exec, -1
L_f1b:
    ; MARK 3""")
    for u in range(3, HN):
        pre, d = wdma(u, u); S.now(pre + d)
    for u in range(16 - HN):
        S.now(wread(u, u % HN))
        if u + HN == 14: S.put((p1b, 'p1b'))
        pre, d = wdma(u + HN, u % HN)
        S.now([('need', 'lg', [('wr', u)])] + pre + d)
    S.put(('need', 'vm', ['p1b']))
    emit(a, recheck("H1b", [p1b], ["    v_cmp_eq_u32 vcc, -1, v14"], sleep=4))
    a("    ; MARK 4")
    def mid():
        for u in range(16 - HN, 16): S.now(wread(u, u % HN))
        a("    s_waitcnt lgkmcnt(0)\n    s_barrier\n    ; MARK 7")
    win_early(S, mid)
    a("    s_branch L_common")

def g1(a, S):
    A2, BF, RR, CS2, SX, SA, T0, VB = 16, [40, 52], 64, 80, 84, 88, 92, 91
    A1, CS1, RL, X3, R3 = 64, 206, 218, 222, 238
    XS, VA, KK = RR, 1, 14
    HB = lambda s: WV + 8 * s
    def z1dma(lo, hi):
        R = []
        while lo < hi:
            m = min(hi, lo + 4)
            R += L(f"s_add_u32 m0, s25, {L_R + 1024*lo}\ns_add_u32 s76, s27, {1024*lo}") + lin_dma(m - lo, 'w1', 76); lo = m
        return R
    a("L_common:")
    S.now(L(f"s_add_u32 m0, s26, {YO}\ns_add_u32 s27, s27, 4096") + lin_dma(3, 'wl') + L(f"s_add_u32 s27, s27, {61440 - 12288}") + z1dma(0, O['nz']))
    a(f"""    s_mul_i32 s79, s71, 768
    s_add_u32 s79, s79, {WS_CS}
    v_lshlrev_b32 v{SA}, 2, v5
    v_lshlrev_b32 v{SA+1}, 4, v6""")
    a(f"    v_and_b32 v7, 12, v0\n    v_mul_u32_u24 v7, 12, v7\n    v_add3_u32 v7, v7, v{SA}, v{SA+1}\n    v_add_u32 v7, 12288, v7")
    for t in range(3): a(f"    buffer_load_dword v{CS2+t}, v7, s[8:11], s79 offen offset:{256*t} sc1")
    a(f"""    s_mul_i32 s75, s20, 18432
    s_mul_i32 s84, s73, 122880
    s_mul_i32 s76, s20, 30720
    s_add_u32 s84, s84, s76
    s_add_u32 s84, s84, {WS_WOUT}""")
    a(f"""    v_min_u32 v40, 39, v0
    s_mul_i32 s28, s20, {40 << O['f2s']}
    s_add_u32 s28, s28, {FL_F2R}
    s_mul_i32 s30, s21, {10240 if O['rep'] else 0}
    s_add_u32 s28, s28, s30
    v_lshlrev_b32 v40, {O['f2s']}, v40
    v_lshlrev_b32 v14, 15, v6
    v_lshl_add_u32 v14, v5, 4, v14       ; quad 2g
    s_lshl_b32 s26, s78, 8
    v_add_u32 v14, s26, v14
    v_add_u32 v15, 16384, v14            ; quad 2g+1
    v_lshrrev_b32 v7, 2, v0
    v_lshlrev_b32 v7, 14, v7
    v_and_b32 v4, 3, v0
    v_lshl_add_u32 v7, v4, 4, v7
    v_lshlrev_b32 v{T0}, 4, v4
    v_cmp_eq_u32 s[80:81], 1, v4
    v_cmp_eq_u32 s[82:83], 2, v4
    v_cmp_eq_u32 s[18:19], 3, v4
    v_lshlrev_b32 v{VA}, 4, v4
    v_lshl_add_u32 v{VA}, v6, 6, v{VA}
    v_bfe_u32 v4, v0, 2, 1
    v_lshl_add_u32 v{VA}, v4, 3, v{VA}
    v_bfe_u32 v4, v0, 3, 1
    v_lshl_add_u32 v{VA}, v4, 2, v{VA}
    v_and_b32 v4, 12, v0
    v_add_u32 v{T0}, v{T0}, v4
    v_add_u32 v3, 65536, v2
    v_add_u32 v4, 131072, v2
    v_mov_b32 v{T0+1}, 0x3f803f80
    s_lshl_b32 s29, s70, 1
    s_and_b32 s30, s71, 1
    s_add_u32 s29, s29, s30
    s_lshl_b32 s29, s29, 3
    s_lshr_b32 s30, s71, 1
    s_add_u32 s29, s29, s30
    s_lshl_b32 s30, s29, 6
    s_mul_i32 s31, s20, {40*16384}
    s_add_u32 s30, s30, s31
    s_add_u32 s31, s30, {16*16384}
    s_add_u32 s32, s30, {32*16384}
    s_and_b32 s33, s29, 3
    s_lshl_b32 s33, s33, 6
    s_and_b32 s29, s29, -4
    s_add_u32 s29, s29, s20
    s_lshl_b32 s29, s29, 8
    s_add_u32 s29, s29, s33
    s_add_u32 s29, s29, {FL_L2X}
    s_lshl_b32 s33, s78, 10
    s_add_u32 s33, s33, {FL_L2X}
    s_lshl_b32 s24, s20, 8
    s_add_u32 s24, s24, {L_S}""")
    for k in range(4): a(f"    v_mov_b32 v{XS+8+k}, 0")
    if O['gate']:
        a(f"""    s_cmp_lt_u32 s2, 160
    s_cbranch_scc1 L_s2
    s_lshl_b32 s34, s2, 7
    s_add_u32 s34, s34, {FL_F2P - 160 * 128}""")
        spin(a, "H2p", [f"    buffer_load_dword v41, off, s[8:11], s34 sc1"], [f"    v_cmp_eq_u32 vcc, -1, v41"], sleep=4)
        a(f"    s_cmp_eq_u32 s35, 0x7fff\n    s_cbranch_scc1 L_s2\n    s_sleep {O['hsleep']}\nL_s2:\n    ; MARK 8")
    spin(a, "S2", [f"    buffer_load_dword v41, v40, s[8:11], s28 offen sc1"], [f"    v_cmp_eq_u32 vcc, -1, v41"], sleep=O['s2sleep'])
    a("    s_barrier\n    ; MARK 9")
    S.vm.q = []; S.lg.q = []
    xsl = [(f"    buffer_load_dwordx4 {vr(XS,4)}, v7, s[8:11], s30 offen sc1", 'x'), (f"    buffer_load_dwordx4 {vr(XS+4,4)}, v7, s[8:11], s31 offen sc1", 'x'),
           "    s_mov_b32 exec_hi, 0", (f"    buffer_load_dwordx4 {vr(XS+8,4)}, v7, s[8:11], s32 offen sc1", 'x'), "    s_mov_b32 exec_hi, -1"]
    def aload(s):
        return [(f"    buffer_load_dwordx4 {vr(HB(s),4)}, v14, s[8:11], 0 offen sc1", s), f"    v_add_u32 v14, {8*16384}, v14",
                (f"    buffer_load_dwordx4 {vr(HB(s)+4,4)}, v15, s[8:11], 0 offen sc1", s), f"    v_add_u32 v15, {8*16384}, v15"]
    NPRE = O['npre']
    for s in range(NPRE): S.now(aload(s))
    S.now(xsl)
    def bread(half, idx, s, t): return (f"    ds_read_b128 {vr(BF[idx&1]+4*t,4)}, {lds_op(win_addr(half, s, t))}", ('b', half, idx, t))
    S.now([bread(0, s, s, t) for s in range(2) for t in range(3)])
    a(f"""    v_add_u32 v{SA}, s24, v{SA}          ; scratch + 4i
    v_add_u32 v{SA+1}, s24, v{SA+1}      ; scratch + 16g
    v_and_b32 v{SA+2}, 1, v6
    v_lshl_add_u32 v{SA+2}, v{SA+2}, 6, v{SA}""")
    for t in range(3): emit(a, allreduce_g(CS2 + t, CS2 + 3))
    def dots():
        S.put(('need', 'vm', ['x']))
        for k in range(6):
            e = XS + 4 * (k >> 1) + (k & 1); o = e + 2
            z = lambda r: f"v{r}" if k else "0"
            a(f"    v_dot2_f32_bf16 v{SX}, v{e}, v{T0+1}, {z(SX)}\n    v_dot2_f32_bf16 v{SX+1}, v{e}, v{e}, {z(SX+1)}")
            a(f"    v_dot2_f32_bf16 v{SX+2}, v{o}, v{T0+1}, {z(SX+2)}\n    v_dot2_f32_bf16 v{SX+3}, v{o}, v{o}, {z(SX+3)}")
        S.now(L(f"""v_add_f32_dpp v{SX}, v{SX}, v{SX} row_ror:8 row_mask:0xf bank_mask:0x3
v_add_f32_dpp v{SX+1}, v{SX+1}, v{SX+1} row_ror:8 row_mask:0xf bank_mask:0x3
v_add_f32_dpp v{SX}, v{SX+2}, v{SX+2} row_ror:8 row_mask:0xf bank_mask:0xc
v_add_f32_dpp v{SX+1}, v{SX+3}, v{SX+3} row_ror:8 row_mask:0xf bank_mask:0xc
v_add_f32_dpp v{SX}, v{SX}, v{SX} row_shl:4 row_mask:0xf bank_mask:0x5
v_add_f32_dpp v{SX}, v{SX+1}, v{SX+1} row_shr:4 row_mask:0xf bank_mask:0xa""") + allreduce_g(SX, SX + 1)
              + [f"    buffer_store_dword v{SX}, v{T0}, s[8:11], s29 offen sc1"])
    def swaps(s): return [('need', 'vm', [s]), f"    v_swap_b32 v{HB(s)+2}, v{HB(s)+4}", f"    v_swap_b32 v{HB(s)+3}, v{HB(s)+5}"]
    S.now(swaps(0))
    a("    ; MARK 10")
    l2load = f"    buffer_load_dwordx4 {vr(SX,4)}, v2, s[8:11], s33 offen sc1"
    l2chk = L(f"v_max3_u32 v{T0}, v{SX}, v{SX+1}, v{SX+2}\nv_max_u32 v{T0}, v{T0}, v{SX+3}\nv_cmp_eq_u32 vcc, -1, v{T0}")
    def bcast(t, R):
        return [(f"    ds_write2_b32 v{SA+2}, v{t}, v{t+1} offset1:32", 'sw')] + [(f"    ds_read_b128 {vr(R+4*k,4)}, v{SA+1} offset:{64*k}", 'rr') for k in range(4)]
    c0 = -2.0 * math.sqrt(2.0 / math.pi) * LOG2E
    nxt = NPRE
    tailq = z1dma(O['nz'], 15)
    for s in range(20):
        forced = {k: [] for k in range(6)}
        for n in range(2):
            if nxt < 20 and nxt - s <= O['lead']:
                x = aload(nxt); forced[n] += x[:2]; forced[n + 2] += x[2:]
                if nxt == O['l2_ld']: forced[3].append((l2load, 'l2'))
                nxt += 1
        if nxt == 20 and not forced[0]:
            for k in ((0, 1, 2, 3) if len(tailq) > 8 else (0, 2)): forced[k] += tailq[:1]; tailq = tailq[1:]
        if s + 2 < 20:
            for t in range(3): forced[2 * t + 1].append(bread(0, s + 2, s + 2, t))
        if s < 19: forced[4] += swaps(s + 1)
        S.put(('need', 'lg', [('b', 0, s, 2)]))
        for t in range(3):
            for par in range(2):
                c = vr(A2 + 8 * t + 4 * par, 4)
                a(f"    v_mfma_f32_16x16x32_bf16 {c}, {vr(HB(s)+4*par,4)}, {vr(BF[s&1]+4*t,4)}, {c if s else '0'}")
                S.gap(0, forced[2 * t + par])
        if s == O['xs_at']: dots()
        if s == O['l2_ld']:
            S.now([('need', 'vm', ['l2'])] + recheck("L2", [l2load], l2chk) + row_scalars(SX, 640, T0) + bcast(T0, RR))
        if O['g1marks'] == 1 and s in (3, 7, 11, 15): a(f"    ; MARK {25 + s // 4}")
    S.now(tailq)
    a(f"""    v_mov_b32 v{KK}, {f2u(c0)}
    v_mov_b32 v{KK+1}, {f2u(c0*0.044715)}
    s_lshr_b32 s30, s70, 3
    s_and_b32 s34, s71, 14
    s_add_u32 s34, s34, s30
    s_cmp_eq_u32 s34, s71
    s_cselect_b32 s30, 96, 0
    s_mul_i32 s31, s34, 192
    s_add_u32 s30, s30, s31
    s_add_u32 s30, s30, {WS_Z2 >> 10}
    s_and_b32 s31, s78, 31
    s_add_u32 s33, s30, s31
    s_add_u32 s29, s33, s31
    s_add_u32 s33, s33, 64
    s_lshl_b32 s29, s29, 10
    s_lshl_b32 s33, s33, 10
    s_lshl_b32 s32, s78, 12
    s_add_u32 s32, s32, {FL_L3X}
    s_lshl_b32 s31, s71, 8
    s_add_u32 s31, s31, s32""")
    S.put(('need', 'lg', ['rr']))
    a("    ; MARK 11")
    mv, stx = xfill(8); S.now(mv)
    hk = [[(x, 'xf')] for x in stx] if O['xfs'] else [[(x, 'xf') for x in stx]]; S.hk = hk
    def hook():
        if hk: S.now(hk.pop(0))
    def singles(xs):
        R = [[]]
        for x in xs:
            R[-1].append(x)
            if isinstance(x, tuple): R.append([])
        return R[:-1]
    GT, QQ, SS = 40, 48, 56
    for t in range(3):
        prs = [A2 + 8 * t + 2 * k for k in range(4)]
        hook()
        for k, x in enumerate(prs): a(f"    v_pk_mul_f32 {vr(x,2)}, {vr(x,2)}, {vr(RR+2*k,2)}")
        for k, x in enumerate(prs): a(f"    v_pk_fma_f32 {vr(x,2)}, {vr(RR+8+2*k,2)}, {vr(CS2+(t&2),2)}, {vr(x,2)} op_sel:[0,{t&1},0] op_sel_hi:[1,{t&1},1] neg_lo:[1,0,0] neg_hi:[1,0,0]")
        gelu_block(a, prs, GT, KK)
        for k, x in enumerate(prs):
            if t == 0: a(f"    v_pk_mul_f32 {vr(QQ+2*k,2)}, {vr(x,2)}, {vr(x,2)}")
            else:
                a(f"    v_pk_add_f32 {vr(SS+2*k,2)}, {vr(x,2)}, {vr(SS+2*k if t == 2 else A2+2*k,2)}")
                a(f"    v_pk_fma_f32 {vr(QQ+2*k,2)}, {vr(x,2)}, {vr(x,2)}, {vr(QQ+2*k,2)}")
    assert not hk
    order = list(range(14, 20)) + list(range(14))
    for k in range(8): a(f"    v_add_f32_dpp v{SS+k}, v{SS+k}, v{SS+k} row_ror:8 row_mask:0xf bank_mask:0x3")
    for k in range(8): a(f"    v_add_f32_dpp v{SS+k}, v{QQ+k}, v{QQ+k} row_ror:8 row_mask:0xf bank_mask:0xc")
    for k in range(4): a(f"    v_add_f32_dpp v{SS+k}, v{SS+k}, v{SS+k} row_half_mirror row_mask:0xf bank_mask:0x5")
    for k in range(4): a(f"    v_add_f32_dpp v{SS+k}, v{SS+4+k}, v{SS+4+k} row_half_mirror row_mask:0xf bank_mask:0xa")
    for k in range(4): a(f"    v_add_f32_dpp v{SS+k}, v{SS+k}, v{SS+k} quad_perm:[2,3,0,1] row_mask:0xf bank_mask:0xf")
    for k in range(4): a(f"    v_add_f32_dpp v{SS+k}, v{SS+k}, v{SS+k} quad_perm:[1,0,3,2] row_mask:0xf bank_mask:0xf")
    a(f"""    v_cndmask_b32 v{T0}, v{SS}, v{SS+1}, s[80:81]
    v_cndmask_b32 v{T0}, v{T0}, v{SS+2}, s[82:83]
    v_cndmask_b32 v{T0}, v{T0}, v{SS+3}, s[18:19]""")
    if O['xfw']: S.put(('need', 'vm', ['xf']))
    S.put(f"    buffer_store_dword v{T0}, v{VA}, s[8:11], s31 offen sc1")
    a("    v_add_u32 v9, s84, v2\n    v_add_u32 v8, s32, v2")
    S.put(('need', 'vm', ['w1'])); a("    s_barrier")
    a("    ; MARK 13")
    S.now([bread(1, i, order[i], t) for i in range(2) for t in range(3)])
    wq = wo_pieces(0, O['oP'], 'wo')
    l3 = [f"    buffer_load_dwordx4 {vr(X3+4*j,4)}, v8, s[8:11], 0 offen offset:{1024*j} sc1" for j in range(4)]
    chk = [f"    v_max3_u32 v{T0}, v{X3}, v{X3+1}, v{X3+2}"]
    for k in range(3, 15, 2): chk.append(f"    v_max3_u32 v{T0}, v{T0}, v{X3+k}, v{X3+k+1}")
    chk += [f"    v_max_u32 v{T0}, v{T0}, v{X3+15}", f"    v_cmp_eq_u32 vcc, -1, v{T0}"]
    side = {}; sb = O['l3_at'] + 1
    side[sb] = L(f"s_lshl_b32 s30, s78, 6\nv_lshl_add_u32 v7, v5, 2, s30") + [(f"    global_load_dword v{VB}, v7, s[60:61]", 'bias')] + L("v_and_b32 v7, 3, v0\nv_lshlrev_b32 v7, 4, v7\nv_lshl_add_u32 v7, v6, 6, v7")
    side[sb] += [(f"    buffer_load_dwordx4 {vr(CS1+4*t,4)}, v7, s[8:11], s79 offen offset:{256*t} sc1", 'bias') for t in range(3)]
    side[sb] += [(f"    ds_read2_b32 {vr(RL,2)}, v{SA} offset0:0 offset1:16", 'rl'), (f"    ds_read2_b32 {vr(RL+2,2)}, v{SA} offset0:32 offset1:48", 'rl')]
    side.setdefault(O['l3_at'], []).extend([(x, 'l3') for x in l3])
    side.setdefault(O['l3_chk'], []).extend([('need', 'vm', ['l3'])] + recheck("L3", l3, chk)
        + [f"    v_add_f32 v{X3+k}, v{X3+k}, v{X3+8+k}" for k in range(8)] + [f"    v_add_f32 v{X3+k}, v{X3+k}, v{X3+4+k}" for k in range(4)]
        + row_scalars(X3, 768, T0) + bcast(T0, R3))
    side.setdefault(max(O['nS'] + 1, 13), []).extend([('need', 'vm', ['bias'])] + [f"    v_add_f32_dpp v{CS1+k}, v{CS1+k}, v{CS1+k} quad_perm:{m} row_mask:0xf bank_mask:0xf"
        for m in ("[2,3,0,1]", "[1,0,3,2]") for k in range(12)])
    assert O['nS'] < 19
    def z2out():
        a("    ; MARK 14")
        S.q += side.get(O['nS'], [])
        S.flush()
        S.put(('need', 'lg', ['rr']))
        a("    ; MARK 15")
        for t in range(3):
            for k in range(4):
                x = A2 + 8 * t + 2 * k
                a(f"    v_pk_fma_f32 {vr(x,2)}, {vr(x,2)}, {vr(R3+2*k,2)}, {vr(R3+8+2*k,2)} neg_lo:[0,0,1] neg_hi:[0,0,1]")
            o = X3 + 4 + 4 * t
            for r in range(4): a(f"    v_cvt_pk_bf16_f32 v{o+r}, v{A2+8*t+r}, v{A2+8*t+4+r}")
            S.put((f"    buffer_store_dwordx4 {vr(o,4)}, v2, s[8:11], {'s29' if t < 2 else 's33'} offen offset:{1024*(t&1)} sc1", 'z2'))
        a("    ; MARK 16")
    assert O['l3_chk'] <= O['nS']
    nw = len(wq); put = 0
    for i, s in enumerate(order):
        forced = {k: [] for k in range(6)}
        if i + 2 < 20:
            for t in range(3): forced[2 * t + 1].append(bread(1, i + 2, order[i + 2], t))
        for k in (1, 3):
            if put < nw and put * 38 <= (2 * i + (k >> 1)) * nw: forced[k].append(wq[put]); put += 1
        if i != O['nS']: S.q += side.get(i, [])
        for t in range(3):
            for par in range(2):
                if par == 0: S.put(('need', 'lg', [('b', 1, i, 2 if i else t)]))
                c = vr(A1 + 8 * t + 4 * par, 4)
                a(f"    v_mfma_f32_16x16x32_bf16 {c}, {vr(BF[i&1]+4*t,4)}, {vr(HB(s)+4*par,4)}, {c if i else '0'}")
                S.gap(4 if (t, par) == (2, 1) else 8, forced[2 * t + par])
        if i + 1 == O['nS']: z2out()
    assert put == nw
    S.flush()
    def z1tile(t):
        prs = [A1 + 8 * t + 2 * k for k in range(4)]
        hook()
        for k, x in enumerate(prs): a(f"    v_pk_mul_f32 {vr(x,2)}, {vr(x,2)}, {vr(RL,2)} op_sel:[0,{k>>1}] op_sel_hi:[1,{k>>1}]")
        for k, x in enumerate(prs): a(f"    v_pk_fma_f32 {vr(x,2)}, {vr(CS1+4*t+2*(k&1),2)}, {vr(RL+2,2)}, {vr(x,2)} op_sel:[0,{k>>1},0] op_sel_hi:[1,{k>>1},1] neg_lo:[1,0,0] neg_hi:[1,0,0]")
        gelu_block(a, prs, 52, KK, hook)
        for k in (3, 2, 1, 0): a(f"    v_cvt_pk_bf16_f32 v{76+4*t+k}, v{prs[k]}, v{prs[k]+1}")
    a(f"""    s_lshl_b32 s25, s71, {4 + O['f3s']}
    s_lshr_b32 s88, s70, 2
    s_mul_i32 s88, s88, {4096 if O['r3'] else 0}
    s_add_u32 s25, s25, s88
    v_lshlrev_b32 v7, 12, v0
    s_add_u32 s25, s25, {FL_F3}
    s_lshl_b32 s28, s34, 1
    s_and_b32 s30, s71, 1
    s_add_u32 s28, s28, s30
    s_lshl_b32 s28, s28, 3
    s_and_b32 s30, s70, 7
    s_add_u32 s28, s28, s30
    s_lshl_b32 s28, s28, {O['f3s']}
    s_add_u32 s28, s28, {FL_F3}""")
    S.put(('need', 'vm', ['bias']))
    n1 = O['oP'] + O['oC1']; S.nwo = n1 + O['oC2']; assert S.nwo <= 18
    hk += singles(wo_pieces(O['oP'], n1, 'wo'))
    tiles = [2, 1, 0]
    for t in tiles[:O['nT']]: z1tile(t)
    while hk: hook()
    S.put(('need', 'vm', ['z2']))
    flag_store(a, "L_f3", 28)
    a("    ; MARK 17")
    hk += singles(wo_pieces(n1, S.nwo, 'wo'))
    for t in tiles[O['nT']:3-O['nT2']]: z1tile(t)
    while hk: hook()
    S.rest = lambda: [z1tile(t) for t in tiles[3-O['nT2']:]]

def g2(a, S):
    NS, ACC, ZF, Z1P, AX, XI, ZU = 7, 16, 40, 76, 96, 120, 144
    half = [(k, t) for k in range(32) for t in range(2)] + [(k, 2) for k in range(32)]
    seq = [(k, t, AX) for k, t in half] + [(k, t, ACC) for k, t in half]
    for par in range(2):
        a(f"    v_lshlrev_b32 v{ACC}, 16, v91" if par == 0 else f"    v_and_b32 v{ACC+12}, 0xffff0000, v91")
        for k in range(1, 12): a(f"    v_mov_b32 v{ACC+12*par+k}, v{ACC+12*par}")
    a(f"""    v_lshl_add_u32 v7, v5, {O['f3s']}, s25
    s_xor_b32 s28, s28, {8 << O['f3s']}
    s_add_u32 s28, s28, s88
    v_mov_b32 v89, s28
    v_cmp_gt_u32 vcc, 16, v0
    s_mul_i32 s27, s20, 3072
    s_mul_i32 s26, s71, {64*3072}
    s_add_u32 s26, s26, s27
    s_add_u32 s26, s26, {WS_Z2}
    s_add_u32 s27, s27, {L_Z}
    v_cndmask_b32 v7, v89, v7, vcc
    s_mul_i32 s30, s78, 49152
    s_lshr_b32 s31, s71, 1
    s_mul_i32 s31, s31, 3072
    s_add_u32 s30, s30, s31
    s_add_u32 s30, s30, {WS_P}
    s_and_b32 s32, s71, 1
    s_lshl_b32 s31, s32, 9
    s_add_u32 s31, s31, s30
    s_add_u32 s31, s31, 1024
    s_lshl_b32 s32, s32, 11
    s_add_u32 s30, s30, s32
    s_add_u32 s32, s30, 24576
    v_and_b32 v88, 1, v6
    v_mul_u32_u24 v88, 24576, v88
    v_lshrrev_b32 v89, 1, v6
    v_lshl_add_u32 v88, v89, 8, v88
    v_lshl_add_u32 v88, v5, 4, v88
    v_lshlrev_b32 v12, 14, v0
    s_lshl_b32 s28, s85, 4
    s_add_u32 s28, s28, {FL_F4}""")
    a("    s_cmp_lg_u32 s20, 0\n    s_cbranch_scc1 S3_d")
    spin(a, "S3", ["    buffer_load_dword v89, v7, s[8:11], 0 offen sc1"], ["    v_cmp_eq_u32 vcc, -1, v89"])
    a("    s_barrier\n    ; MARK 18")
    def dma(st):
        pre = [f"    s_add_u32 m0, s27, {(st % NS) * 12288}", "    v_add_u32 v13, 12288, v13" if st else "    v_add_u32 v13, s26, v2"]
        return pre, [(f"    buffer_load_dwordx4 v13, s[8:11], 0 offen offset:{1024*k} sc1 lds", ('z', st)) for k in range(3)]
    def zreads(s):
        return [(f"    ds_read_b128 {vr(ZF+12*(s%3)+4*ft,4)}, {lds_op(L_Z + ((s >> 2) % NS) * 12288 + (s & 3) * 3072 + 1024 * ft)}", ('zr', s, ft)) for ft in range(3)]
    def wopiece(n):
        return [f"    s_add_u32 m0, s75, {1024*n}", f"    s_add_u32 s76, s33, {1024*n}", ("    buffer_load_dwordx4 v2, s[8:11], s76 offen sc1 lds", 'wo')]
    pre, d = dma(0); S.now(pre + d)
    for st in range(1, 4):
        pre, d = dma(st); S.hk.extend([pre + d[:1], d[1:2], d[2:]])
    S.rest()
    while S.hk: S.now(S.hk.pop(0))
    S.put(('need', 'vm', [('z', 0)]))
    a("    s_barrier\n    ; MARK 19")
    S.now(zreads(0) + zreads(1))
    nwo = S.nwo
    side = {}
    def at(s, xs): side.setdefault(s, []).extend(xs)
    one = lambda x: ["    s_mov_b64 exec, 1\n" + x + "\n    s_mov_b64 exec, -1"]
    unp = []
    for r in range(12): unp += [f"    v_lshlrev_b32 v{ZU+2*r}, 16, v{Z1P+r}", f"    v_and_b32 v{ZU+2*r+1}, 0xffff0000, v{Z1P+r}"]
    at(2, unp)
    flags = {}
    XO, XP = 168, 180
    for e, (s0, tiles) in enumerate(((22, (0, 1)), (33, (2,)))):
        for n, ft in enumerate(tiles):
            at(s0 + n * O['xsp'], [f"    v_cvt_pk_bf16_f32 v{XO+4*ft+2*par+h}, v{AX+12*par+4*ft+2*h}, v{AX+12*par+4*ft+2*h+1}" for par in range(2) for h in range(2)]
               + [(f"    buffer_store_dwordx4 {vr(XO+4*ft,4)}, v2, s[8:11], s87 offen offset:{1024*ft} sc1", ('xs', e))])
        ld = [f"    buffer_load_dwordx4 {vr(XP+4*ft,4)}, v2, s[8:11], s86 offen offset:{1024*ft} sc1" for ft in tiles]
        for n, x in enumerate(ld): flags[s0 + O['xw'] + n * O['xsp']] = (x, ('xl', e))
        b = XP + 4 * tiles[0]; nr = 4 * len(tiles)
        chk = [f"    v_max_u32 v92, v{b}, v{b+1}"] + [f"    v_max3_u32 v92, v92, v{b+r}, v{b+r+1}" for r in range(2, nr, 2)] + ["    v_cmp_eq_u32 vcc, -1, v92"]
        s1 = s0 + O['xw'] + (len(tiles) - 1) * O['xsp'] + O['xl']
        assert s1 < (54, 64)[e]
        R = [('need', 'vm', [('xl', e)])] + recheck(f"X{e}", ld, chk)
        for r in range(4 * tiles[0], 4 * tiles[-1] + 4):
            R += L(f"v_lshlrev_b32 v{XI+2*r}, 16, v{XP+r}\nv_and_b32 v{XI+2*r+1}, 0xffff0000, v{XP+r}\nv_mul_f32 v{XI+2*r}, v{XI+2*r}, v{ZU+2*r}\nv_mul_f32 v{XI+2*r+1}, v{XI+2*r+1}, v{ZU+2*r+1}")
        at(s1, R)
    R = []
    for par in range(2):
        for ft in range(2):
            c = ACC + 12 * par + 4 * ft; o = 8 * ft + 4 * par
            R += [f"    v_fma_f32 v{c+r}, v{c+r}, v{ZU+o+r}, v{XI+o+r}" for r in range(4)]
            R += [f"    v_cvt_pk_bf16_f32 v{ACC+12*par+2*ft+h}, v{c+2*h}, v{c+2*h+1}" for h in range(2)]
        R.append((f"    buffer_store_dwordx4 {vr(ACC+12*par,4)}, v2, s[8:11], s{30+2*par} offen sc1", 'pa'))
    at(54, R)
    dcar = []; zn = 4
    for s in range(64):
        st, ph = s >> 2, s & 3
        forced = {k: [] for k in range(6)}
        if s + 2 < 64:
            for k, x in enumerate(zreads(s + 2)): forced[k].append(x)
        if ph == 1 and st < 15: forced[4].append(('need', 'vm', [('z', st + 1)])); forced[5].append("    s_barrier")
        w = None
        if zn < 16 and ((ph == 2 and zn <= st + NS - 1) or (ph == 0 and zn <= st + NS - 2)):
            pre, d = dma(zn); w = pre + d; zn += 1
        elif ph == 0 and nwo < 18:
            w = wo_pieces(nwo, min(18, nwo + 2), 'wo'); nwo = min(18, nwo + 2)
        elif ph == 2 and st >= 10 and nwo < 30:
            assert nwo == 18 + 3 * (st - 10)
            w = wo_pieces(nwo, nwo + 3, 'wo'); nwo += 3
        if w:
            assert not dcar
            forced[0] += w[:1]; forced[1] += w[1:2]; forced[2] += w[2:3]; dcar = w[3:]
        elif dcar:
            forced[0] += dcar[:1]; forced[3] += dcar[1:]; dcar = []
        S.q += side.get(s, [])
        if s in flags: forced[3].append(flags[s])
        k = 0
        for j in range(3):
            ks, ft, base = seq[3 * s + j]
            for par in range(2):
                S.put(('need', 'lg', [('zr', s, j if s == 0 else 2)]))
                c = vr(base + 12 * par + 4 * ft, 4)
                a(f"    v_mfma_f32_16x16x32_bf16 {c}, {vr(ZF+12*(s%3)+4*j,4)}, {wreg(ks >> 1, ks & 1, par)}, {'0' if (base == AX and ks == 0) else c}")
                S.gap(4 if k == 5 else 8, forced[k]); k += 1
        if O['g2marks'] and s in (21, 29, 37, 45, 53): a(f"    ; MARK {25 + (s - 21) // 8}")
    S.flush()
    assert nwo == 30
    a("    ; MARK 20")
    a(f"""    s_lshl_b32 s25, s72, 2
    s_add_u32 s25, s25, s20            ; t tile
    s_lshr_b32 s30, s25, 1
    s_lshl_b32 s24, s30, {4 + O['f4s']}
    s_lshr_b32 s29, s73, 2
    s_mul_i32 s29, s29, {16384 if O['r4'] else 0}
    s_add_u32 s24, s24, s29
    s_add_u32 s24, s24, {FL_F4}
    v_lshlrev_b32 v48, {O['f4s']}, v5
    v_lshlrev_b32 v7, 4, v5""")
    PO = 40
    for par in range(2):
        c = ACC + 12 * par + 8
        for h in range(2): a(f"    v_pk_fma_f32 {vr(c+2*h,2)}, {vr(c+2*h,2)}, {vr(ZU+16+4*par+2*h,2)}, {vr(XI+16+4*par+2*h,2)}")
    for par in range(2):
        c = ACC + 12 * par + 8
        for h in range(2): a(f"    v_cvt_pk_bf16_f32 v{PO+2*par+h}, v{c+2*h}, v{c+2*h+1}")
    a(f"    v_permlane16_swap_b32 v{PO}, v{PO+2}\n    v_permlane16_swap_b32 v{PO+1}, v{PO+3}")
    S.put((f"    buffer_store_dwordx4 {vr(PO,4)}, v88, s[8:11], s31 offen sc1", 'pb'))
    S.now([('need', 'vm', ['pa']), f"    s_mov_b64 exec, {3 if O['r4'] else 1}", "    buffer_store_dword v0, v12, s[8:11], s28 offen sc1", "    s_mov_b64 exec, -1"])
    a("    ; MARK 21")
    return nwo

def g3(a, S, nwo):
    PF, ACC, WF, HR = 56, 16, [152, 172, 192], 212
    order = [k for k in range(24) if k % 3 != 1] + [k for k in range(24) if k % 3 == 1]
    def waddr(k, t): return wo_addr(k // 6, [0, 4, 1, 2, 5, 3][k % 6] * 5 + t)
    def wreads(i): return [(f"    ds_read_b128 {vr(WF[i%3]+4*t,4)}, {lds_op(waddr(order[i], t))}", i) for t in range(5)]
    def pre3():
        S.now(wreads(0) + wreads(1))
        for t in range(5):
            for h in range(2):
                r = HR + 2 * t + h
                a(f"    v_lshlrev_b32 v{ACC+4*t+2*h}, 16, v{r}\n    v_and_b32 v{ACC+4*t+2*h+1}, 0xffff0000, v{r}")
        R = L("""s_mul_i32 s30, s20, 2816
s_add_u32 s30, s30, 147456
v_mul_u32_u24 v8, 176, v5
v_add_u32 v8, s30, v8
v_lshl_add_u32 v46, v6, 3, v8
v_lshl_add_u32 v8, v6, 4, v8""")
        for q, (vl, vg) in enumerate(((12, 10), (13, 11), (1, 14))):
            R += L(f"""v_add_u32 v15, {64*q}, v0
v_min_u32 v15, 159, v15
v_mul_u32_u24 v47, 6554, v15
v_lshrrev_b32 v47, 16, v47
v_add_u32 v{vl}, v15, v47
v_lshl_add_u32 v{vl}, v{vl}, 4, s30
v_mul_u32_u24 v47, {2560-160}, v47
v_lshl_add_u32 v{vg}, v15, 4, v47""")
        S.now(R)
    pA = "    buffer_load_dword v9, v48, s[8:11], s24 offen sc1"
    pB = "    buffer_load_dword v44, v45, s[8:11], s24 offen sc1"
    a(f"""    s_lshl_b32 s30, s30, 5
    s_and_b32 s31, s25, 1
    s_add_u32 s30, s30, s31
    s_lshl_b32 s29, s30, 3
    s_mul_i32 s32, s73, {20*16384}
    s_add_u32 s29, s29, s32
    v_lshl_add_u32 v15, v6, 14, v7
    v_lshl_add_u32 v14, v6, 15, v7""")
    for t in range(5):
        qd = 8 * (t >> 1) + (t & 1)
        S.now([f"    s_add_u32 s32, s29, {WS_H + qd*16384}", (f"    buffer_load_dwordx2 {vr(HR+2*t,2)}, v{14 if t < 4 else 15}, s[8:11], s32 offen sc1", 'wo')])
    emit(a, srd(16, 64, 2048 * 1280))
    a(f"""    s_mul_i32 s40, s25, 24576
    s_add_u32 s40, s40, {WS_P}
    s_mul_i32 s31, s30, 1280
    s_mul_i32 s32, s73, 160
    s_add_u32 s31, s31, s32
    s_add_u32 s28, s28, 32768
    v_add_u32 v45, 32768, v48""")
    a("    v_add_u32 v50, s40, v2")
    for j in range(1, 6): a(f"    v_add_u32 v{50+j}, {4096*j}, v50")
    S.put(('need', 'vm', ['pb']))
    S.put((pA, 'fa'))
    a(f"    s_mov_b64 exec, {3 if O['r4'] else 1}")
    S.put("    buffer_store_dword v0, v12, s[8:11], s28 offen sc1")
    a("    s_mov_b64 exec, -1\n    ; MARK 22")
    S.now([('need', 'vm', ['wo']), "    s_barrier"])
    pre3()
    S.put(('need', 'vm', ['fa']))
    emit(a, recheck("S4", [pA], ["    v_cmp_eq_u32 vcc, -1, v9"]))
    a("    ; MARK 23")
    def pl(i):
        k = order[i]
        return (f"    buffer_load_dwordx4 {vr(PF+4*i,4)}, v{50+(k>>2)}, s[8:11], 0 offen offset:{1024*(k&3)} sc1", i)
    S.now([pl(i) for i in range(O['pa'])])
    for i in range(O['pa'], 16):
        S.q.append(pl(i))
        if i == O['pb_ld']: S.q.append((pB, 'fb'))
    if O['pb_ld'] >= 16: S.q.append((pB, 'fb'))
    for i in range(24):
        if i == O['pb_chk']:
            S.flush()
            S.now([('need', 'vm', ['fb'])] + recheck("S5", [pB], ["    v_cmp_eq_u32 vcc, -1, v44"]))
            a("    ; MARK 12")
            S.q += [pl(j) for j in range(16, 24)]
        S.now([('need', 'vm', [i]), ('need', 'lg', [i])])
        rd = wreads(i + 2) if i < 22 else []
        for t in range(5):
            c = vr(ACC + 4 * t, 4)
            a(f"    v_mfma_f32_16x16x32_bf16 {c}, {vr(WF[i%3]+4*t,4)}, {vr(PF+4*i,4)}, {c}")
            S.gap(8 if t < 3 else 4, rd[t:t+1])
    assert not S.q
    a("    ; MARK 24")
    for t in range(5):
        for h in range(2): a(f"    v_cvt_pk_bf16_f32 v{36+2*t+h}, v{ACC+4*t+2*h}, v{ACC+4*t+2*h+1}")
    a(f"""    ds_write_b128 v8, v[36:39]
    ds_write_b128 v8, v[40:43] offset:64
    ds_write_b64 v46, v[44:45] offset:128
    ds_read_b128 v[52:55], v12
    ds_read_b128 v[56:59], v13
    ds_read_b128 v[60:63], v1
    s_waitcnt lgkmcnt(2)
    buffer_store_dwordx4 v[52:55], v10, s[16:19], s31 offen
    s_waitcnt lgkmcnt(1)
    buffer_store_dwordx4 v[56:59], v11, s[16:19], s31 offen
    s_mov_b32 exec_hi, 0
    s_waitcnt lgkmcnt(0)
    buffer_store_dwordx4 v[60:63], v14, s[16:19], s31 offen
L_end:
    s_endpgm""")

def build(**kw):
    O.update(kw); TAILS.clear()
    a = Asm()
    a.begin_kernel(NAME + "_kernel", 256, 256, 163840, 512, accum=256)
    a(f"""    s_load_dwordx16 s[36:51], s[0:1], 0
{'' if O['ksplit'] else KREST}
    s_cmp_lt_u32 s2, 224
    s_cbranch_scc1 L_e1
    s_cmp_ge_u32 s2, 256
    s_cbranch_scc1 L_end
    s_getpc_b64 s[30:31]
    s_and_b32 s3, s2, 24
    s_lshl_b32 s3, s3, 4
    v_min_u32 v7, 87, v0
    v_lshl_add_u32 v7, v7, 9, s3
    global_load_dword v14, v7, s[30:31]
L_e1:""")
    emit(a, lanes())
    a(f"""    s_cmp_lt_u32 s2, 160
    s_cbranch_scc1 L_conv
    s_sub_u32 s23, s2, 160
    s_cmp_ge_u32 s23, 64
    s_cbranch_scc1 L_nostat
    s_lshl_b32 s24, s23, 5
    v_lshrrev_b32 v3, 3, v1
    v_add_u32 v3, s24, v3              ; row
    v_mul_u32_u24 v7, 1280, v3
    v_and_b32 v14, 7, v0
    v_lshl_add_u32 v7, v14, 4, v7
    s_waitcnt lgkmcnt(0)""")
    if O['ksplit']: a(KREST)
    for q in range(10): a(f"    global_load_dwordx4 {vr(16+4*q,4)}, v7, s[36:37] offset:{128*q}")
    a("    s_branch L_help")
    conv_role(a)
    S = Sched(a)
    g1(a, S); nwo = g2(a, S); g3(a, S, nwo); helper_role(a)
    for t in TAILS: emit(a, t)
    a.end_kernel()
    a.lines = hazard.fix(a.lines, verbose=True)
    a.lines = align.fix(a.lines, verbose=True)
    assert sum(align.sizes(a.lines)) <= 88 * 512
    a(".p2align 8\n.fill 3072, 4, 0xbf800000")
    return a.text("S4 conv + gMLP block in one persistent launch; written with the author's own generator script", single=True)
if __name__ == "__main__":
    out = sys.argv[1] if len(sys.argv) > 1 else "v13.s"
    kw = {k: int(v, 0) for k, v in (x.split("=") for x in sys.argv[2:])}
    open(out, "w").write(build(**kw))
```

```python
import sys, math, struct, re
from asmgen import Asm
import hazard, align
NAME = "sequential_preLN__ssm_conv_s4__mixer_gmlp__prompt"
O = dict(kgmarks=0, burst=12, hsleep=7, x0=2, hdelay=0, xt=0, xp=1, g1marks=0, g2marks=0, cvmarks=0, npre=3, xs_at=2, ct=1, wpre=0, ctpos=0, k00=12, wend=16,
         lead=6, l2_ld=17, nz=8, l3_at=9, l3_chk=14, nT=0, nS=15, nT2=1, pa=9, pb_ld=6, pb_chk=3, oC2=4, xw=16, xl=9, xsp=2, xfp=2, xfs=1, xfw=0, lat=1, rep=1, gate=1, s2sleep=1, f2s=4, r3=1, f4s=4, r4=0, f3s=4, tfirst=0, p1u=0, s1p=1, s1c=1, xat=0b101010101010, dm=5, dl=14, ue=3, rot=1, ab=0, ksplit=0, hrot=0, xs_ld=3, nwe=8, s4d=1, s4s=1, s3s=1, pf=0, g3m=1, bar2=0, nW=12, ctl=6, c0=6, tl=4, hpre=1, lw1=0, lw2=0, hs0=0, wlo=0, whi=28)

WS_H, WS_WIN, WS_WOUT, WS_CS, WS_ST1 = 0x0, 0x280000, 0x460000, 0x550000, 0x558000
WS_FL = 0x560000
FL_L3X, FL_L2X, FL_F2, FL_F4, FL_F3, FL_F2P, FL_F1B = [WS_FL + x for x in (0, 0x40000, 0x50000, 0x60000, 0x52000, 0x56000, 0x5C000)]
FL_F2R = WS_FL + 0x6C000
FL_F3 = WS_FL + 0x52000
FL_F1B = WS_FL + 0x50000
FL_F4 = WS_FL + 0x5C000
WS_Z2, WS_P, WS_X = 0x600000, 0x900000, 0xC00000
WS_SIZE = 0xF00000
LOG2E = 1.4426950408889634
def f2u(x): return "0x%08x" % struct.unpack("<I", struct.pack("<f", x))[0]
def vr(b, n): return f"v[{b}:{b+n-1}]" if n > 1 else f"v{b}"
def ar(b, n): return f"a[{b}:{b+n-1}]"
def L(s): return ["    " + x.strip() for x in s.strip().split("\n") if x.strip()]
def emit(a, xs):
    for x in xs: a(x)
def srd(r, lo, size):
    return L(f"s_mov_b32 s{r}, s{lo}\ns_and_b32 s{r+1}, s{lo+1}, 0xffff\ns_mov_b32 s{r+2}, {hex(size)}\ns_mov_b32 s{r+3}, 0x20000")
def cmul(d, x, y):
    return [f"    v_pk_mul_f32 {vr(d,2)}, {vr(x,2)}, {vr(y,2)} op_sel:[0,0] op_sel_hi:[0,1]",
            f"    v_pk_fma_f32 {vr(d,2)}, {vr(x,2)}, {vr(y,2)}, {vr(d,2)} op_sel:[1,1,0] op_sel_hi:[1,0,1] neg_lo:[0,1,0]"]
def rbf(d, s): return [f"    v_cvt_pk_bf16_f32 v{d}, v{s}, v{s}", f"    v_lshlrev_b32 v{d}, 16, v{d}"]
def ln_scalars(vs, vq, n, vm, vrs, t):
    return (L(f"v_mul_f32 v{vm}, {f2u(1.0/n)}, v{vs}\nv_mul_f32 v{t}, {f2u(1.0/n)}, v{vq}\nv_fma_f32 v{t}, -v{vm}, v{vm}, v{t}\nv_max_f32 v{t}, 0, v{t}")
            + rbf(t, t) + L(f"v_add_f32 v{t}, {f2u(1e-5)}, v{t}") + rbf(t, t) + L(f"v_sqrt_f32 v{t}, v{t}") + rbf(vm, vm) + rbf(t, t)
            + L(f"v_rcp_f32 v{vrs}, v{t}\ns_nop 0\nv_mul_f32 v{vm}, v{vm}, v{vrs}"))
def allreduce_g(v, t):
    return L(f"v_mov_b32 v{t}, v{v}\nv_permlane16_swap_b32 v{v}, v{t}\nv_add_f32 v{v}, v{v}, v{t}\nv_mov_b32 v{t}, v{v}\nv_permlane32_swap_b32 v{v}, v{t}\nv_add_f32 v{v}, v{v}, v{t}")
def row_scalars(X, n, t):
    return (L(f"""v_permlane16_swap_b32 v{X}, v{X+2}
v_permlane16_swap_b32 v{X+1}, v{X+3}
v_add_f32 v{X}, v{X}, v{X+2}
v_add_f32 v{X+1}, v{X+1}, v{X+3}
v_mov_b32 v{X+2}, v{X}
v_mov_b32 v{X+3}, v{X+1}
s_nop 0
v_permlane32_swap_b32 v{X}, v{X+2}
v_permlane32_swap_b32 v{X+1}, v{X+3}
v_add_f32 v{X}, v{X}, v{X+2}
v_add_f32 v{X+1}, v{X+1}, v{X+3}""") + ln_scalars(X, X + 1, n, t + 1, t, X + 2))
def gelu_block(a, regs, T, KK, hook=lambda: None):
    ts = [T + 2 * n for n in range(len(regs))]
    for x, t in zip(regs, ts): a(f"    v_pk_mul_f32 {vr(t,2)}, {vr(x,2)}, {vr(x,2)}")
    for x, t in zip(regs, ts): a(f"    v_pk_fma_f32 {vr(t,2)}, {vr(t,2)}, {vr(KK,2)}, {vr(KK,2)} op_sel:[0,1,0] op_sel_hi:[1,1,0]")
    for x, t in zip(regs, ts): a(f"    v_pk_mul_f32 {vr(t,2)}, {vr(t,2)}, {vr(x,2)}")
    hook()
    for x, t in zip(regs, ts): a(f"    v_exp_f32 v{t}, v{t}\n    v_exp_f32 v{t+1}, v{t+1}")
    hook()
    for x, t in zip(regs, ts): a(f"    v_pk_add_f32 {vr(t,2)}, {vr(t,2)}, 1.0 op_sel_hi:[1,0]")
    for x, t in zip(regs, ts): a(f"    v_rcp_f32 v{t}, v{t}\n    v_rcp_f32 v{t+1}, v{t+1}")
    hook()
    for x, t in zip(regs, ts): a(f"    v_pk_mul_f32 {vr(x,2)}, {vr(x,2)}, {vr(t,2)}")

TAILS = []
def spin(a, name, loads, check, sleep=1):
    a(f"    s_movk_i32 s35, 0x7fff\n{name}_l:")
    emit(a, loads); a("    s_waitcnt vmcnt(0)"); emit(a, check)
    a(f"    s_cbranch_vccz {name}_d\n    s_sub_u32 s35, s35, 1\n    s_cbranch_scc1 {name}_d\n    s_sleep {sleep}\n    s_branch {name}_l\n{name}_d:")
def recheck(name, loads, check, sleep=1):
    TAILS.append([f"{name}_r:", "    s_movk_i32 s35, 0x7fff", f"{name}_l:", f"    s_sleep {sleep}"] + loads + ["    s_waitcnt vmcnt(0)"] + check +
                 L(f"s_cbranch_vccz {name}_d\ns_sub_u32 s35, s35, 1\ns_cbranch_scc0 {name}_l\ns_branch {name}_d"))
    return check + [f"    s_cbranch_vccnz {name}_r\n{name}_d:"]

class Cnt:
    def __init__(s, name, mx): s.name, s.mx, s.q = name, mx, []
    def issue(s, tag): s.q.append(tag)
    def need(s, *tags):
        idx = max((i for i, t in enumerate(s.q) if t in tags), default=-1)
        if idx < 0: return []
        n = min(len(s.q) - 1 - idx, s.mx)
        s.q = s.q[len(s.q) - n:] if n else []
        return [f"    s_waitcnt {s.name}({n})"]
class Sched:
    def __init__(s, a): s.a = a; s.vm = Cnt("vmcnt", 63); s.lg = Cnt("lgkmcnt", 15); s.q = []
    def cost(s, x):
        if isinstance(x, tuple):
            if x[0] == 'need': return 4 if any(t in x[2] for t in (s.vm if x[1] == 'vm' else s.lg).q) else 0
            x = x[0]
        m = x.split()[0]
        if m.startswith(hazard.TRANS) or m.startswith("v_permlane"): return 8
        if m.startswith("buffer_store_dwordx4"): return 24
        if m.startswith("global_") or (m.startswith("buffer_") and re.search(r"s\[\d+:\d+\], s\d", x)): return 8
        if m.startswith("ds_write_b128"): return 20
        if m.startswith("ds_write2"): return 12
        return 4
    def put(s, x):
        if isinstance(x, tuple) and x[0] == 'need':
            emit(s.a, (s.vm if x[1] == 'vm' else s.lg).need(*x[2])); return
        tag = None
        if isinstance(x, tuple): x, tag = x
        m = x.split()[0]
        if m.startswith("ds_"): s.lg.issue(tag)
        elif m.startswith(("buffer_", "global_")): s.vm.issue(tag)
        s.a(x)
    def now(s, xs):
        for x in xs: s.put(x)
    def gap(s, budget=8, forced=()):
        for x in forced:
            budget -= s.cost(x); s.put(x)
        first = not forced
        while s.q and (s.cost(s.q[0]) <= budget or first):
            budget -= s.cost(s.q[0]); s.put(s.q.pop(0)); first = False
    def flush(s):
        while s.q: s.put(s.q.pop(0))

RS = 272; TW = 64 * RS
YO = 8448
L_U = 4 * TW
L_W = L_U + 4 * 4608
L_R = 98304
L_Z = 73728
L_S = 159744
VW, VWR, WV = 8, 12, 94
def win_addr(half, s, t):
    n = 3 * s + t
    if half: return L_R + 1024 * n
    w, i = divmod(n, 15)
    return TW * w + 1024 * i if i < 8 else L_U + 4096 * w + 1024 * (i - 8) if i < 12 else TW * w + YO + 1024 * (i - 12)
def lds_op(addr, bases=(2, 3, 4)):
    return f"v{bases[addr >> 16]} offset:{addr & 0xffff}"
KREST = "    s_load_dwordx16 s[52:67], s[0:1], 64\n    s_load_dwordx2 s[68:69], s[0:1], 128"
def lanes():
    return L("""v_mov_b32 v1, v0
v_lshrrev_b32 v4, 6, v0
v_and_b32 v0, 63, v0
v_readfirstlane_b32 s20, v4
s_and_b32 s21, s2, 7
s_lshr_b32 s22, s2, 3""")
def stage_base(stride, base):
    return L(f"""s_mul_i32 s75, s20, {stride}
s_add_u32 s75, s75, {base}
v_lshrrev_b32 v{VWR}, 1, v5
v_xor_b32 v{VWR}, v{VWR}, v6
v_lshlrev_b32 v{VWR}, 4, v{VWR}
v_lshl_add_u32 v{VWR}, v5, 7, v{VWR}
v_add_u32 v{VWR}, s75, v{VWR}
v_xor_b32 v{VWR+1}, 64, v{VWR}""")
def idmap():
    lat = "s_lshr_b32 s83, s81, 1\ns_add_u32 s82, s82, s83\ns_and_b32 s82, s82, 3\n" if O['lat'] else ""
    g3 = """s_and_b32 s72, s81, 1
s_lshl_b32 s83, s70, 1
s_add_u32 s72, s72, s83
s_lshr_b32 s73, s81, 1
s_lshl_b32 s83, s79, 2
s_add_u32 s73, s73, s83""" if not O['g3m'] else """s_lshl_b32 s72, s70, 1
s_add_u32 s72, s72, s79
s_mov_b32 s73, s81"""
    return f"""s_lshr_b32 s80, s21, 1
s_and_b32 s79, s21, 1
s_and_b32 s81, s22, 7
s_lshr_b32 s82, s22, 3
{lat}s_lshl_b32 s70, s80, 2
s_add_u32 s70, s70, s82
s_lshl_b32 s71, s81, 1
s_add_u32 s71, s71, s79
{g3}
s_lshl_b32 s89, s80, 10
s_add_u32 s89, s89, s79
s_lshl_b32 s89, s89, 11"""
def common_ids(stride, base):
    return L(f"""v_lshlrev_b32 v2, 4, v0
v_and_b32 v5, 15, v0
v_lshrrev_b32 v6, 4, v0
{idmap()}
s_lshl_b32 s78, s70, 2
s_add_u32 s78, s78, s20
s_lshl_b32 s74, s78, 17
s_lshl_b32 s79, s79, 11
s_add_u32 s74, s74, s79
s_lshl_b32 s85, s78, 4
s_add_u32 s85, s85, s71
s_mul_i32 s86, s85, 3072
s_add_u32 s86, s86, {WS_X}
s_xor_b32 s87, s85, 1
s_mul_i32 s87, s87, 3072
s_add_u32 s87, s87, {WS_X}
v_lshrrev_b32 v{VW}, 3, v0
v_lshrrev_b32 v{VW+1}, 1, v{VW}
v_and_b32 v{VW+2}, 7, v0
v_xor_b32 v{VW+2}, v{VW+2}, v{VW+1}
v_lshlrev_b32 v{VW}, 13, v{VW}
v_lshl_add_u32 v{VW}, v{VW+2}, 4, v{VW}
v_add_u32 v{VW}, s74, v{VW}
v_xor_b32 v{VW+1}, 64, v{VW}
v_add_u32 v{VW+2}, 4096-2048, v{VW}
v_add_u32 v{VW+3}, 65536+4096-3072, v{VW+1}
v_add_u32 v{VW+1}, 65536-1024, v{VW+1}""") + stage_base(stride, base) + srd(8, 68, WS_SIZE) + srd(12, 58, 2048 * 4096)
def wdma(u, slot):
    pre = [f"    v_add_u32 v{VW+q}, 1024, v{VW+q}" for q in range(4)] if u == 8 else []
    return (pre + [f"    s_add_u32 m0, s75, {slot * 4096 - 128 * (u & 7)}"],
            [(f"    buffer_load_dwordx4 v{VW+q}, s[12:15], 0 offen offset:{1024*q + 128*(u&7)} lds", ('w', u)) for q in range(4)])
def wreg(u, k, par): return ar(16 * u + 8 * k + 4 * par, 4)
def wread(u, slot):
    return [('need', 'vm', [('w', u)])] + [(f"    ds_read_b128 {wreg(u,k,p)}, v{VWR+k} offset:{slot*4096+2048*p}", ('wr', u)) for k in range(2) for p in range(2)]
def xfill(r):
    return [f"    v_mov_b32 v{r+k}, -1" for k in range(4)], [f"    buffer_store_dwordx4 {vr(r,4)}, v2, s[8:11], s87 offen offset:{1024*n} sc1" for n in range(3)]
def f1b_addr(v, t):
    return L(f"v_and_b32 v{v}, 31, v0\nv_lshlrev_b32 v{v}, 4, v{v}\ns_mov_b32 s29, {FL_F1B + 64*16}")
def wo_addr(w, n): return 18432 * w + 1024 * n if n < 18 else L_Z + 12288 * (2 + (n - 18) // 3) + 3072 * w + 1024 * ((n - 18) % 3)
def wo_pieces(lo, hi, tag):
    R = []
    while lo < hi:
        m = min(hi, lo + 4, 18) if lo < 18 else lo + 3
        R += [f"    s_add_u32 m0, s75, {1024*lo}" if lo < 18 else f"    s_add_u32 m0, s27, {wo_addr(0, lo) - L_Z}", f"    v_add_u32 v10, {1024*lo}, v9"]
        R += [(f"    buffer_load_dwordx4 v10, s[8:11], 0 offen offset:{1024*q} sc1 lds", tag) for q in range(m - lo)]
        lo = m
    return R
def lin_dma(n, tag, sreg=27):
    return [(f"    buffer_load_dwordx4 v2, s[8:11], s{sreg} offen offset:{1024*q} sc1 lds", tag) for q in range(n)]
def win_early(S, mid=lambda: None, cut=8):
    S.now(L(f"""s_mul_i32 s27, s71, 122880
s_and_b32 s77, s22, {O['hrot']}
s_add_u32 s25, s20, s77
s_and_b32 s25, s25, 3
s_mul_i32 s25, s25, 15360
s_add_u32 s27, s27, s25
s_mul_i32 s25, s20, 15360
s_add_u32 s27, s27, {WS_WIN}
s_mul_i32 s26, s20, {TW}
s_mov_b32 m0, s26
s_lshl_b32 s24, s20, 12"""))
    if cut == 0: mid()
    S.now(lin_dma(4, 'we') + L("s_add_u32 m0, m0, 4096\ns_add_u32 s27, s27, 4096"))
    if cut == 4: mid()
    S.now(lin_dma(4, 'we'))
    if cut == 8: mid()
    S.now(L(f"s_add_u32 m0, s24, {L_U}\ns_add_u32 s27, s27, 4096") + lin_dma(4, 'we'))

def conv_role(a):
    P0, P2, DT, VPL, CUR = 16, 22, 28, 29, 30
    Z1, Z8, Z256, CB, T = 36, 38, 40, 42, 44
    CV, FR, KA, XR, ST, XF = 88, 100, 164, 180, 32, 212
    AD, VY, VYR, VU, VT, VP = 244, 249, 250, 251, 252, 3
    S = Sched(a)
    a(f"""L_conv:
    s_mul_i32 s23, s21, 20
    s_add_u32 s23, s23, s22            ; quad
    s_lshl_b32 s24, s23, 2
    s_add_u32 s24, s24, s20            ; channel
    s_mul_i32 s25, s24, 384
    v_lshl_add_u32 v7, v0, 1, s25
    v_lshl_add_u32 v14, v0, 2, s25
    s_lshl_b32 s25, s24, 1
    v_mov_b32 v15, s25
    v_mov_b32 v{DT}, 0""")
    for k in range(6): a(f"    v_mov_b32 v{P2+k}, 0")
    a(f"""    s_lshl_b32 s25, s23, 3
    v_mul_u32_u24 v208, 2560, v1
    v_add_u32 v208, s25, v208
    s_and_b32 s4, s22, {3 if O['rot'] else 0}
    s_xor_b32 s5, s4, 1
    s_xor_b32 s6, s4, 2
    s_xor_b32 s7, s4, 3
    s_mul_i32 s16, s4, {512*1280}
    s_mul_i32 s17, s5, {512*1280}
    s_mul_i32 s18, s6, {512*1280}
    s_mul_i32 s19, s7, {512*1280}
    v_add_u32 v4, s16, v208
    s_waitcnt lgkmcnt(0)""")
    a("    s_load_dwordx2 s[30:31], s[52:53], s25")
    S.put((f"    global_load_short_d16_hi v{DT}, v15, s[50:51]", 'p2'))
    for k in range(6): S.put((f"    global_load_short_d16_hi v{P2+k}, v7, s[{38+2*k}:{39+2*k}] offset:256", 'p2'))
    for k in range(6): S.put((f"    global_load_dword v{P0+k}, v14, s[{38+2*k}:{39+2*k}]", 'p0'))
    if O['xt']:
        a("""    s_mul_i32 s26, s22, 103
    v_lshrrev_b32 v48, 1, v1
    v_add_u32 v48, s26, v48
    v_min_u32 v48, 2047, v48
    v_mul_u32_u24 v48, 1280, v48
    v_and_b32 v49, 1, v1
    v_mul_u32_u24 v49, 156, v49
    s_mul_i32 s26, s21, 160
    v_add3_u32 v48, v48, v49, s26""")
    a("    s_barrier")
    if O['xt']: S.put("    global_load_dword v253, v48, s[36:37]")
    xq = []
    for j in range(4):
        xq += [(f"    global_load_dwordx2 {vr(XR+4*j,2)}, v4, s[36:37]", ('x', j)), (f"    global_load_dwordx2 {vr(XR+4*j+2,2)}, v4, s[36:37] offset:1280", ('x', j)),
               f"    v_add_u32 v4, s{17+j}, v208" if j < 3 else "    v_lshlrev_b32 v4, 4, v1"]
    def xnext(n):
        for _ in range(n):
            if xq:
                x = xq.pop(0)
                if not O['ab'] & 1: S.put(x)
            if xq and isinstance(xq[0], str): S.put(xq.pop(0))
    xnext(min(1, O['x0']))
    ci = common_ids(16384, L_W)
    emit(a, ci[:-8])
    a(f"""    s_mul_i32 s26, s20, {TW}
    s_mov_b32 m0, s26
    v_and_b32 v7, 31, v0
    v_mul_u32_u24 v7, {RS}, v7
    v_lshrrev_b32 v14, 5, v0
    v_lshl_add_u32 v7, v14, 4, v7
    v_add_u32 v7, s26, v7
    v_mov_b32 v48, 0x3f80
    v_mov_b32 v50, 0
    v_mov_b32 v51, 0
    s_mul_i32 s27, s20, 4608
    s_add_u32 s27, s27, {L_U}
    v_lshl_add_u32 v52, v0, 3, s27
    ds_write_addtid_b32 v48 offset:{32*RS}
    ds_write_b64 v52, v[50:51]
    v_add_u32 v14, 1, v5
    v_lshrrev_b32 v14, 1, v14
    v_lshlrev_b32 v14, 2, v14
    v_lshl_add_u32 v14, v6, 4, v14
    v_and_b32 v15, 1, v5
    v_mul_u32_u24 v15, 4160, v15
    v_add_u32 v14, v14, v15
    s_add_u32 s28, s26, {4160 + 4112 - 512 - 448}
    v_sub_u32 v{AD}, s28, v14
    v_subrev_u32 v{AD+1}, 1024, v{AD}
    v_subrev_u32 v{AD+2}, 2048, v{AD}
    v_lshlrev_b32 v14, 2, v5
    v_lshlrev_b32 v15, 4, v6
    v_sub_u32 v14, v15, v14
    s_add_u32 s28, s26, 60
    v_add_u32 v{AD+3}, s28, v14
    v_lshlrev_b32 v14, 5, v5
    v_lshlrev_b32 v15, 4, v6
    v_sub_u32 v14, v14, v15
    s_add_u32 s28, s27, {512 + 16 - 448}
    v_add_u32 v{AD+4}, s28, v14
    v_lshlrev_b32 v{VU}, 2, v1
    v_add_u32 v{VU}, {L_U + 512}, v{VU}
    v_bfe_u32 v14, v5, 1, 2
    v_xor_b32 v14, v14, v6
    v_lshlrev_b32 v14, 4, v14
    v_lshl_add_u32 v14, v5, 6, v14
    s_add_u32 s28, s26, {YO}
    v_add_u32 v{VY}, s28, v14
    v_bfe_u32 v14, v1, 4, 2
    v_lshlrev_b32 v14, 4, v14
    v_lshlrev_b32 v15, 3, v1
    v_xor_b32 v14, v14, v15
    v_add_u32 v{VYR}, {YO}, v14
    s_add_u32 s28, s26, 1008
    v_sub_u32 v{VT}, s28, v2
    v_and_b32 v{VP}, 3, v0
    v_lshlrev_b32 v{VP}, 6, v{VP}
    v_mov_b32 v{VPL}, 16
    s_mul_i32 s28, s22, {(512 * O['ctl'] + 19) // 20}
    v_min_u32 v14, {(512 * O['ctl'] + 19) // 20 - 1}, v1
    v_add_u32 v14, s28, v14
    v_mul_u32_u24 v15, {(65536 + O['ctl'] - 1) // O['ctl']}, v14
    v_lshrrev_b32 v15, 16, v15
    v_mul_u32_u24 v15, {4096 - O['ctl']*128}, v15
    v_lshl_add_u32 v254, v14, 7, v15
    s_add_u32 s34, s89, {O['c0']*128}""")
    a("    v_lshl_add_u32 v54, v6, 3, v5\n    s_mov_b32 s28, 0x10001")
    for n, (top, pat) in enumerate(((42, 0x1ff << 22), (43, 0x7f << 24))):
        a(f"    v_sub_u32 v55, {top}, v54\n    v_min_u32 v55, 31, v55\n    v_mov_b32 v56, {hex(pat)}\n    v_lshrrev_b32 v55, v55, v56")
        for k in range(4):
            a(f"""    v_bfe_u32 v56, v55, {2*k}, 2
    v_lshl_or_b32 v56, v56, 15, v56
    v_and_b32 v56, s28, v56
    v_mul_u32_u24 v56, 0x3f80, v56
    v_accvgpr_write_b32 a{248+4*n+k}, v56""")
    assert O['nW'] < 16
    emit(a, f1b_addr(15, 14))
    xnext(O['x0'] - 1)
    emit(a, ci[-8:])
    S.put(('need', 'vm', ['p2']))
    a(f"    ; MARK 0\n    v_mul_f32 v{DT}, {f2u(LOG2E)}, v{DT}\n    v_exp_f32 v{DT}, v{DT}")
    emit(a, rbf(DT, DT))
    def setup(c):
        R = []
        if c == 0: p = [P2 + k for k in range(6)]
        else:
            p = [CUR + k for k in range(6)]
            for k in range(6): R.append(f"    v_lshlrev_b32 v{CUR+k}, 16, v{P0+k}" if c == 1 else f"    v_and_b32 v{CUR+k}, 0xffff0000, v{P0+k}")
        R += L(f"v_mul_f32 v{T}, v{DT}, v{p[0]}\nv_mul_f32 v{T+1}, v{DT}, v{p[1]}\nv_mul_f32 v{T}, {f2u(LOG2E)}, v{T}\nv_mul_f32 v{T+1}, 0.15915494, v{T+1}")
        ex = L(f"""v_mul_f32 v{CB}, v{p[2]}, v{p[4]}
v_mul_f32 v{CB+1}, v{p[2]}, v{p[5]}
v_fma_f32 v{CB}, -v{p[3]}, v{p[5]}, v{CB}
v_fma_f32 v{CB+1}, v{p[3]}, v{p[4]}, v{CB+1}
v_mul_f32 v{CB}, v{CB}, v{DT}
v_mul_f32 v{CB+1}, v{CB+1}, v{DT}""")
        for z, e in ((Z8, 8), (Z1, 1), (Z256, 256)):
            if e == 1: R += L(f"v_fract_f32 v{T+3}, v{T+1}\nv_exp_f32 v{T+2}, v{T}")
            else: R += L(f"v_mul_f32 v{T+3}, {f2u(float(e))}, v{T+1}\nv_mul_f32 v{T+2}, {f2u(float(e))}, v{T}\nv_fract_f32 v{T+3}, v{T+3}\nv_exp_f32 v{T+2}, v{T+2}")
            R += L(f"v_cos_f32 v{z}, v{T+3}\nv_sin_f32 v{z+1}, v{T+3}") + [ex.pop(0), ex.pop(0)] + L(f"v_mul_f32 v{z}, v{z}, v{T+2}\nv_mul_f32 v{z+1}, v{z+1}, v{T+2}")
        return R
    row = lambda rho, h: 8 * (rho >> 2) + 4 * h + (rho & 3)
    grp = []; nfl = [0]; mq = []
    def mfma(c, kk):
        S.put(('need', 'lg', [('a', kk)]))
        a(f"    v_mfma_f32_32x32x16_bf16 {vr(KA,16)}, {vr(FR+8*kk,4)}, {vr(FR+8*kk+4,4)}, {vr(KA,16) if (c or kk) else '0'}")
    def flushw():
        S.q = [f"    v_cvt_pk_bf16_f32 v{CV+n}, v{reg}, {'-' if neg else ''}v{reg+1}" for n, (reg, rows, neg) in enumerate(grp)]
        S.q += [f"    ds_write_addtid_b32 v{CV+n} offset:{r*RS}" for n, (reg, rows, neg) in enumerate(grp) for r in rows]
        grp.clear()
        if O['ab'] & 2: S.q = [x if 'cvt' in x else '    v_mov_b32_e64 v99, v99' for x in S.q]
        while mq and len(S.q) >= 9: mfma(*mq.pop(0)); S.gap(24)
        S.flush()
        if O['xat'] >> nfl[0] & 1: xnext(1)
        nfl[0] += 1
    def chainB():
        grp.append((Z8, [33], False)); prev = Z8
        for j in range(2, 32):
            d = 48 + 2 * (j % 12); emit(a, cmul(d, prev, Z8)); grp.append((d, [32 + j], False)); prev = d
            if j % 10 == 1: flushw()
        assert not mq
    def chainA():
        grp.append((CB, [row(0, 0)], True)); X = {0: CB}; nd = [48]
        def mul(e, src, z, rows):
            X[e] = nd[0]; nd[0] += 2
            emit(a, cmul(X[e], X[src], z)); grp.append((X[e], rows, True))
        for k in range(1, 8): mul(k, k - 1, Z1, [row(k, 0)])
        pat = [0, 0, 2, 4, 4, 4, 6]
        for off in (0, 2, 4, 6):
            mul(256 + off, off, Z256, [row(r, 1) for r in range(7) if pat[r] == off])
            if off == 2: flushw()
        for blk in (2, 3):
            for n, off in enumerate((0, 4)): mul(256 * blk + off, 256 * (blk - 1) + off, Z256, [row(8 + n, blk & 1)])
        for blk in range(4, 9): mul(256 * blk, 256 * (blk - 1), Z256, [row(8 + blk // 2, blk & 1)])
        flushw()
    emit(a, setup(0))
    poll1 = f"    global_load_dword v{VPL}, v{VP}, s[66:67] sc1"
    def unpack(j):
        R = [('need', 'vm', [('x', j)])]
        for par in range(2):
            for h in range(2):
                r = XR + 4 * j + 2 * par + h
                R += [f"    v_lshlrev_b32 v{XF+8*j+4*h+par}, 16, v{r}", f"    v_and_b32 v{XF+8*j+4*h+2+par}, 0xffff0000, v{r}"]
        return R
    after = [0]
    def s1poll():
        after[0] = sum(isinstance(x, tuple) for x in xq)
        a(f"    s_cmp_lg_u32 s20, 0\n    s_cbranch_scc1 L_np1\n{poll1}\nL_np1:")
    def s1check():
        assert not xq
        a(f"    s_cmp_lg_u32 s20, 0\n    s_cbranch_scc1 S1_d\n    s_waitcnt vmcnt({after[0]})")
        emit(a, recheck("S1", [poll1], [f"    v_cmp_gt_u32 vcc, 16, v{VPL}"]))
        a("    s_barrier\n    ; MARK 1")
        S.now([(f"    buffer_load_dwordx4 {vr(ST+4*j,4)}, v86, s[8:11], s{16+j} offen sc1", ('st', j)) for j in range(4)])
    for c in range(3):
        chainB()
        S.now([(f"    ds_read_b128 {vr(FR+8*kk+4,4)}, v7 offset:{32*kk+32*RS}", ('b', kk)) for kk in range(8)])
        if c == 2 and O['s1p'] == 0: s1poll()
        chainA()
        S.now([(f"    ds_read_b128 {vr(FR+8*kk,4)}, v7 offset:{32*kk}", ('a', kk)) for kk in range(8)])
        if O['kgmarks']: a(f"    ; MARK {25 + c}")
        if c == 0: S.put(('need', 'vm', ['p0']))
        if c < 2:
            S.q = setup(c + 1); S.gap(4 * O['dl'])
            for kk in range(O['dm']): mfma(c, kk); S.gap(24)
            S.flush()
            mq.extend((c, kk) for kk in range(O['dm'], 8))
        if O['kgmarks'] and c < 2: a(f"    ; MARK {28 + c}")
    assert not xq
    if O['s1p'] == 1: s1poll()
    S.now(L(f"""s_lshl_b32 s16, s4, 12
s_lshl_b32 s17, s5, 12
s_lshl_b32 s18, s6, 12
s_lshl_b32 s19, s7, 12
v_add_u32 v86, {WS_ST1}, v4
v_lshl_add_u32 v84, v0, 2, s26
v_lshlrev_b32 v85, 1, v0
s_add_u32 s28, s26, 126
v_sub_u32 v85, s28, v85
v_mov_b32 v81, 0
v_mov_b32 v64, 0
v_mov_b32 v68, 0
v_mov_b32 v69, 0
v_cmp_eq_u32 s[24:25], 0, v0"""))
    if O['s1c'] == 0: s1check()
    S.q += [f"    v_lshl_add_u32 v{208+j}, s{4+j}, 10, v{VU}" for j in range(4)]
    for j in range(O['ue']): S.q += unpack(j)
    for kk in range(8): mfma(2, kk); S.gap(24)
    S.flush()
    if O['s1c'] == 1: s1check()
    a("    ; MARK 2")
    V = lambda r: KA + r
    N = [90, 91, 92, 93]; first = [V(0), V(8), V(10), V(11), V(12)]
    for G in range(4): a(f"    v_mov_b32_dpp v{N[G]}, v{first[G+1]} wave_rol:1 row_mask:0xf bank_mask:0xf")
    for G in range(4): a(f"    v_mov_b32_dpp v{N[G]}, v{first[G]} wave_shl:1 row_mask:0xf bank_mask:0xf")
    a(f"""    v_cvt_pk_bf16_f32 v80, v{V(0)}, v81
    v_mov_b32_dpp v{V(7)}, v{N[0]} quad_perm:[0,1,2,3] row_mask:0xc bank_mask:0xf
    v_cvt_pk_bf16_f32 v66, v{V(10)}, v{V(10)}
    v_cvt_pk_bf16_f32 v82, v{N[3]}, v{N[2]}
    v_cndmask_b32 v80, v81, v80, s[24:25]
    v_cndmask_b32 v66, v81, v66, s[24:25]
    v_and_b32 v65, 0xffff0000, v66
    v_mov_b32 v67, v66
    v_mov_b32 v70, v66
    v_mov_b32 v71, v66""")
    S.now(["    ds_write_b16 v85, v82", "    ds_write_b16_d16_hi v85, v82 offset:128", "    s_mov_b64 exec, 0xffff",
           "    ds_write_b32 v84, v81 offset:256", "    ds_write_b32 v84, v81 offset:4096", f"    ds_write_b32 v84, v80 offset:{4160+4096}",
           f"    ds_write_b128 v{VT}, v[64:67] offset:1024", f"    ds_write_b128 v{VT}, v[68:71] offset:{4160+1024}", "    s_mov_b64 exec, -1"])
    touch = ["    buffer_load_dword v253, v254, s[12:15], s34 offen"] * O['ct']
    if O['s1c'] < 2 and O['ctpos'] == 0: S.now(touch)
    emap = [[V(k) for k in range(8)] + [N[0]], [V(8)] * 3 + [V(9)] * 3 + [N[1]] * 3]
    tw = []
    for G in range(2):
        e = emap[G]; o = 48 + 8 * G
        for k in range(4): a(f"    v_cvt_pk_bf16_f32 v{o+k}, v{e[7-2*k]}, v{e[6-2*k]}")
        for k in range(4): a(f"    v_cvt_pk_bf16_f32 v{o+4+k}, v{e[8-2*k]}, v{e[7-2*k]}")
        tw += [f"    ds_write_b128 v{VT}, {vr(o,4)} offset:{3072-1024*G}", f"    ds_write_b128 v{VT}, {vr(o+4,4)} offset:{4160+3072-1024*G}"]
        S.put(tw.pop(0))
        if O['s1c'] < 2 and O['ctpos'] == G + 1: S.now(touch)
    if O['s1c'] == 2: s1check()
    for j in range(O['ue'], 4): S.now(unpack(j) + tw[:1]); tw = tw[1:]
    if O['s1c'] == 2: S.now(touch)
    S.now(tw)
    ACC, SET, UF = 16, [48, 112], 176
    def rdA(r):
        R = []
        for p in range(4 if r else 5):
            o = (128 if p % 2 == 0 else 0) + 16 * (7 - r); d = SET[r & 1] + 4 * p
            R += [(f"    ds_read2_b32 {vr(d,2)}, v{AD+p//2} offset0:{o} offset1:{o+1}", ('A', r, p)),
                  (f"    ds_read2_b32 {vr(d+2,2)}, v{AD+p//2} offset0:{o+2} offset1:{o+3}", ('A', r, p))]
        return R
    def rdB(r): return [(f"    ds_read_b128 {vr(SET[r&1]+32+4*q,4)}, v{AD+4} offset:{512*q+64*(7-r)}", ('B', r, q)) for q in range(8)]
    S.now(rdA(0))
    a("    ; MARK 3")
    for j in range(4):
        S.put(('need', 'vm', [('st', j)]))
        for c in range(4):
            a(f"    v_pk_fma_f32 {vr(UF+8*j+2*c,2)}, {vr(XF+8*j+2*c,2)}, {vr(ST+4*j,2)}, {vr(ST+4*j+2,2)} neg_lo:[0,0,1] neg_hi:[0,0,1]")
        for c in range(4): a(f"    v_cvt_pk_bf16_f32 v{144+4*j+c}, v{UF+8*j+2*c}, v{UF+8*j+2*c+1}")
        if j & 1:
            for jj in (j - 1, j):
                for c in (0, 2): S.put((f"    ds_write2st64_b32 v{208+jj}, v{144+4*jj+c}, v{144+4*jj+c+1} offset0:{18*c} offset1:{18*c+18}", 'uw'))
    if O['ctpos'] == 5: S.now(touch)
    a("""    s_waitcnt lgkmcnt(0)
    s_barrier
    ; MARK 4
    s_and_b32 s33, s31, 0xffff0000
    s_lshl_b32 s32, s31, 16
    s_and_b32 s31, s30, 0xffff0000
    s_lshl_b32 s30, s30, 16""".replace("    ; MARK 4\n", "    ; MARK 4\n" + "\n".join(x[0] for x in rdB(0)) + "\n"))
    S.lg.q = [x[1] for x in rdB(0)]
    basef = [f"    v_fmac_f32 v{XF+r}, s{30+((r>>1)&3)}, v{UF+r}" for r in range(32)]
    basef += [f"    v_lshl_add_u32 v{208+j}, s{4+j}, 11, v{VYR}" for j in range(4)] + [f"    v_lshl_add_u32 v4, s23, 14, v4"]
    poll1b = f"    buffer_load_dword v14, v15, s[8:11], s29 offen sc1"
    NP = O['wpre']; ev = {}
    def at(k, xs): ev.setdefault(k, []).extend(xs)
    NG = 230
    span = (NG - O['wend'] - O['k00'] + 14) // (O['nW'] - NP)
    for u in range(NP, O['nW']):
        k0 = O['k00'] + span * (u - NP)
        pre, d = wdma(u, u & 3)
        if u >= 4:
            w = wread(u - 4, u & 3)
            at(k0 - 13, w[:1])
            for q, o in enumerate((12, 11, 8, 7)): at(k0 - o, w[1+q:2+q])
            at(k0 - 1, [('need', 'lg', [('wr', u - 4)])])
        at(k0 - 3, pre[:-3]); at(k0 - 2, pre[-3:])
        for q in range(4): at(k0 + (q * (span - 4)) // 3, d[q:q+1])
    late = []
    for n, u in enumerate(range(O['nW'] - 4, O['nW'])):
        w = wread(u, u & 3); k0 = max(NG - 31 + 7 * n, O['k00'] + span * (u - NP + 1) + 36)
        if k0 + 5 > NG: late += w; continue
        at(k0, w[:1])
        for q in range(4): at(k0 + 1 + q, w[1+q:2+q])
    assert max(ev) < NG and min(ev) >= 0
    UW, DW, AH, VF = 128, 136, 176, 192
    kk = 0; seen = set()
    for r in range(8):
        st = r & 1
        M = []
        for q in range(8):
            for p in range(min(4 if r else 5, 8 - q)):
                nd = [('A', r, p), ('B', r, q)] if r == 0 else [('A', r, 3), ('B', r, 1)] if (p, q) == (0, 0) else [('B', r, 7)] if (p, q) == (0, 2) else []
                c = vr(ACC + 4 * (p + q), 4)
                M.append((nd, f"{c}, {vr(SET[st]+4*p,4)}, {vr(SET[st]+32+4*q,4)}, {c if p + q in seen else '0'}",
                          [f"    ds_write_b128 v{VY}, {vr(ACC+4*(q-1),4)} offset:{1024*(q-1)}"] if (r == 7 and p == 1 and q >= 1) else []))
                seen.add(p + q)
        pre = []
        if 2 <= r <= 5:
            pre = [(f"    ds_read_b128 {vr(UW+4*n,4)}, v{AD+4} offset:{512*(r-2)+448-16*(1-n)}", ('U', r)) for n in range(2)]
            M += [([('U', r)], f"{vr(DW+4*n,4)}, {vr(UW+4*n,4)}, {ar(248+4*n,4)}, 0", []) for n in range(2)]
        if r == 5:
            for d in range(4):
                o = 16 * (3 - d)
                pre += [(f"    ds_read2_b32 {vr(VF+4*d+2*h,2)}, v{AD+3} offset0:{o+2*h} offset1:{o+2*h+1}", 'V') for h in range(2)]
        if r == 6:
            for sh in range(4):
                for d in range(4 - sh):
                    c = vr(ACC + 4 * (4 + sh + d), 4)
                    M.append((['V'], f"{c}, {vr(AH+4*sh,4)}, {vr(VF+4*d,4)}, {c}", []))
        if 3 <= r <= 6:
            assert not basef
            basef = [None] * 4 + [f"    v_cvt_pk_bf16_f32 v{AH+4*(r-3)+k}, v{DW+k}, v{DW+4+k}" for k in range(4)]
        S.q += (rdA(r + 1) + rdB(r + 1)[:2] + pre + rdB(r + 1)[2:] if r < 7 else [])
        if r == 6: S.q.insert(0, (poll1b, 'p1b'))
        for n, (nd, ops, post) in enumerate(M):
            S.put(('need', 'lg', nd))
            a("    v_mfma_f32_16x16x32_bf16 " + ops)
            S.now(post)
            e = ev.get(kk, [])
            nxtw = n + 1 == len(M) or bool(M[n + 1][0] and r)
            if basef and (basef[0] is None or (not e and not nxtw)):
                x = basef.pop(0)
                if x: e = [x]
            isds = any(isinstance(x, tuple) and x[0].split()[0].startswith("ds_") for x in e)
            left = len(M) - n - 4
            if kk >= 4 or e: S.gap(4 if ((not e or isds) and len(S.q) < left - 2) else 8, e)
            kk += 1
        S.flush()
        if 3 <= r: assert not basef
        if O['cvmarks'] and r in (1, 3, 5): a(f"    ; MARK {25 + r // 2}")
    assert kk == NG
    a("    ; MARK 5")
    S.put(('need', 'vm', ['p1b']))
    emit(a, recheck("S1b", [poll1b], ["    v_cmp_eq_u32 vcc, -1, v14"]))
    for J in range(6, 8): S.put(f"    ds_write_b128 v{VY}, {vr(ACC+4*J,4)} offset:{1024*J}")
    a("    s_waitcnt lgkmcnt(0)\n    s_barrier")
    S.lg.q = []
    for j in range(4):
        for c in range(4): S.put((f"    ds_read_b64 {vr(48+8*j+2*c,2)}, v{208+j} offset:{TW*c}", ('y', j)))
    for j in range(4):
        S.put(('need', 'lg', [('y', j)]))
        b = 48 + 8 * j
        for c in range(4): a(f"    v_pk_add_f32 {vr(b+2*c,2)}, {vr(b+2*c,2)}, {vr(XF+8*j+2*c,2)}")
        for par in range(2):
            for h in range(2): a(f"    v_cvt_pk_bf16_f32 v{80+4*j+2*par+h}, v{b+4*h+par}, v{b+4*h+2+par}")
        S.put((f"    buffer_store_dwordx4 {vr(80+4*j,4)}, v4, s[8:11], s{16+j} offen sc1", 'h'))
    a("    ; MARK 6")
    S.now(late)
    rest = []
    if O['nwe'] == 12: win_early(S)
    else:
        class Q:
            on = True
            def now(self, xs): (S.now if self.on else rest.extend)(xs)
        q = Q(); win_early(q, lambda: setattr(q, 'on', False), O['nwe'])
    a(f"""    s_lshl_b32 s28, s2, {O['f2s']}
    s_add_u32 s28, s28, {FL_F2R}
    s_lshl_b32 s29, s2, 7
    s_add_u32 s29, s29, {FL_F2P}
    v_mul_u32_u24 v14, 10240, v0
    v_add_u32 v14, s28, v14
    v_mov_b32 v15, 1
    v_writelane_b32 v14, s29, 8""")
    S.put(('need', 'vm', ['h']))
    a(f"""    s_waitcnt lgkmcnt(0)
    s_barrier
    ; MARK 7
    s_cmp_lg_u32 s20, 0
    s_cbranch_scc1 L_cf
    s_mov_b64 exec, {(0xff if O['rep'] else 1) + (0x100 if O['gate'] else 0)}
    buffer_store_dword v15, v14, s[8:11], 0 offen sc1
    s_mov_b64 exec, -1
L_cf:""")
    S.now(rest)

def flag_store(a, skip, saddr):
    a(f"""    s_barrier
    s_cmp_lg_u32 s20, 0
    s_cbranch_scc1 {skip}
    s_mov_b64 exec, {15 if O['r3'] else 1}
    buffer_store_dword v0, v7, s[8:11], s{saddr} offen sc1
    s_mov_b64 exec, -1
{skip}:""")

TL = "    buffer_load_dword v61, v60, s[12:15], s33 offen"
def touch_set(line0, lg, rows):
    return L(f"""{rows}
s_add_u32 s33, s89, s34
s_add_u32 s33, s33, {128*line0}
v_lshrrev_b32 v60, {lg}, v1
v_lshlrev_b32 v60, 12, v60
v_and_b32 v61, {(1 << lg) - 1}, v1
v_lshl_add_u32 v60, v61, 7, v60""")
def helper_role(a):
    HS, HB, HN = 20480, 81920, 5
    a("L_help:")
    ci = common_ids(HS, HB)
    emit(a, ci[:-8] + ["    s_waitcnt lgkmcnt(0)"] + ci[-8:])
    a(f"""    v_mov_b32 v56, -1
    v_mov_b32 v57, -1
    v_mov_b32 v58, -1
    v_mov_b32 v59, -1
    v_lshlrev_b32 v4, 4, v1
    s_lshl_b32 s28, s23, 13
    s_add_u32 s28, s28, {WS_FL}
    s_add_u32 s29, s28, 4096
    buffer_store_dwordx4 v[56:59], v4, s[8:11], s28 offen sc1
    buffer_store_dwordx4 v[56:59], v4, s[8:11], s29 offen sc1
    v_mov_b32 v62, 0x3f803f80
    v_lshrrev_b32 v7, 1, v3
    v_lshlrev_b32 v7, 4, v7
    v_and_b32 v15, 1, v3
    v_lshl_add_u32 v7, v15, 2, v7
    v_lshl_add_u32 v7, v14, 3, v7
    v_cmp_eq_u32 vcc, 1, v14
    s_mov_b32 s28, {WS_ST1}""")
    for q in range(10):
        a(f"    s_waitcnt vmcnt({11-q})")
        if q == 9: a("    ; MARK 0")
        for k in range(4):
            z = (q or k)
            a(f"    v_dot2_f32_bf16 v60, v{16+4*q+k}, v62, {'v60' if z else '0'}")
            a(f"    v_dot2_f32_bf16 v61, v{16+4*q+k}, v{16+4*q+k}, {'v61' if z else '0'}")
    for m in ("row_half_mirror", "quad_perm:[2,3,0,1]", "quad_perm:[1,0,3,2]"):
        a(f"    v_add_f32_dpp v60, v60, v60 {m} row_mask:0xf bank_mask:0xf")
        a(f"    v_add_f32_dpp v61, v61, v61 {m} row_mask:0xf bank_mask:0xf")
    emit(a, ln_scalars(60, 61, 640, 64, 63, 65))
    a(f"""    v_cndmask_b32 v63, v63, v64, vcc
    s_mov_b32 exec_lo, 0x03030303
    s_mov_b32 exec_hi, 0x03030303
    buffer_store_dword v63, v7, s[8:11], s28 offen sc1
    s_mov_b64 exec, -1
    s_and_b32 s29, s2, 3
    s_lshl_b32 s29, s29, 6
    v_mov_b32 v66, s29
    v_mov_b32 v67, 1
    s_waitcnt vmcnt(0)
    s_barrier
    s_cmp_lg_u32 s20, 0
    s_cbranch_scc1 L_ar
    s_mov_b64 exec, 1
    global_atomic_add v66, v67, s[66:67] sc1
    s_mov_b64 exec, -1
L_ar:
    ; MARK 1
    s_cmp_lt_u32 s23, 48
    s_cbranch_scc1 L_hout""")
    emit(a, touch_set(0, 2, "s_sub_u32 s34, s22, 20\ns_lshl_b32 s34, s34, 18"))
    a(TL)
    emit(a, [x.replace("v61", "v62") for x in touch_set(O['tl'], 1, "s_sub_u32 s34, s22, 26\ns_lshl_b32 s34, s34, 20")])
    a(f"{TL}\n    s_add_u32 s33, s33, {128*4096}\n{TL}")
    a(f"""    s_waitcnt vmcnt(0)
    s_branch L_hdone
L_nostat:""")
    if O['ksplit']: a(KREST)
    emit(a, ci[:-8] + ["    s_waitcnt lgkmcnt(0)"] + ci[-8:])
    if O['hdelay']: a("    s_waitcnt vmcnt(0)")
    a("    ; MARK 1")
    emit(a, srd(16, 56, 640 * 1536 * 2))
    a(f"""    s_and_b32 s25, s23, 7
    s_bfe_u32 s26, s23, 0x20003
    s_mul_i32 s27, s26, {160*3072}
    s_mul_i32 s28, s20, {8*3072}
    s_add_u32 s27, s27, s28
    s_mul_i32 s28, s25, 384
    s_add_u32 s27, s27, s28
    s_mul_i32 m0, s20, 3072""")
    for q in range(3):
        a(f"""    v_add_u32 v7, {64*q}, v0
    v_mul_u32_u24 v3, 2731, v7
    v_lshrrev_b32 v3, 16, v3
    v_mul_u32_u24 v3, {3072-384}, v3
    v_add_u32 v{100+q}, v2, v3""")
    for ks in range(5):
        for q in range(3): a(f"    buffer_load_dwordx4 v{100+q}, s[16:19], s27 offen offset:{1024*q} lds")
        if ks < 4: a(f"    s_add_u32 m0, m0, 12288\n    s_add_u32 s27, s27, {32*3072}")
    a(f"""    v_bfe_u32 v7, v0, 2, 2
    v_lshl_add_u32 v7, v6, 3, v7
    v_mul_u32_u24 v7, 384, v7
    v_and_b32 v3, 3, v0
    v_lshl_add_u32 v7, v3, 3, v7
    s_mul_i32 s28, s20, 96
    v_add_u32 v7, s28, v7
    s_lshl_b32 s27, s25, 2
    s_add_u32 s27, s27, s20
    s_and_b32 s30, s27, 15
    s_mul_i32 s30, s30, 120
    s_cmp_ge_u32 s27, 16
    s_cselect_b32 s29, 0, 60
    s_add_u32 s30, s30, s29
    s_mul_i32 s29, s26, 15
    s_add_u32 s30, s30, s29
    s_lshl_b32 s30, s30, 10
    s_add_u32 s30, s30, {WS_WIN}
    v_mov_b32 v99, 0x3f803f80
    s_waitcnt vmcnt(0)
    s_barrier""")
    for n in range(15):
        ks, t = divmod(n, 3)
        a(f"    ds_read_b64_tr_b16 {vr(16+4*n,2)}, v7 offset:{12288*ks+32*t}")
        a(f"    ds_read_b64_tr_b16 {vr(18+4*n,2)}, v7 offset:{12288*ks+32*t+4*384}")
    for n in range(15):
        ks, t = divmod(n, 3)
        a(f"    s_waitcnt lgkmcnt({min(15,28-2*n)})")
        a(f"    buffer_store_dwordx4 {vr(16+4*n,4)}, v2, s[8:11], s30 offen offset:{1024*t} sc1")
        if t == 2: a(f"    s_add_u32 s30, s30, 3072")
        for k in range(4): a(f"    v_dot2_f32_bf16 v{96+t}, v{16+4*n+k}, v99, {'v%d' % (96+t) if (ks or k) else '0'}")
    for t in range(3): emit(a, allreduce_g(96 + t, 100))
    a(f"""    s_mul_i32 s27, s27, 768
    s_lshl_b32 s28, s26, 4
    s_add_u32 s27, s27, s28
    s_add_u32 s27, s27, {WS_CS}
    v_cmp_eq_u32 vcc, 1, v6
    v_cmp_eq_u32 s[30:31], 2, v6
    v_and_b32 v7, 60, v0
    v_lshlrev_b32 v7, 4, v7
    v_lshl_add_u32 v7, v3, 2, v7
    v_cndmask_b32 v96, v96, v97, vcc
    v_cndmask_b32 v96, v96, v98, s[30:31]
    s_mov_b32 exec_hi, 0xffff
    buffer_store_dword v96, v7, s[8:11], s27 offen sc1
    s_mov_b32 exec_hi, -1
    s_branch L_hdone
L_hout:""")
    S = Sched(a)
    if O['tfirst']:
        emit(a, touch_set(0, 2, "s_sub_u32 s34, s22, 20\ns_lshl_b32 s34, s34, 18"))
        S.put((TL, 't'))
    emit(a, srd(16, 62, 768 * 640 * 2))
    a(f"""    s_and_b32 s24, s23, 7              ; d block
    s_lshr_b32 s25, s23, 3
    s_lshl_b32 s25, s25, 2
    s_add_u32 s25, s25, s20            ; k step
    s_mul_i32 s30, s25, 43691
    s_lshr_b32 s30, s30, 17
    s_mul_i32 s31, s30, 3
    s_sub_u32 s31, s25, s31            ; 0 / 1 (mixed) / 2
    s_mul_i32 s30, s30, 96
    s_mul_i32 s32, s31, 24
    s_cmp_eq_u32 s31, 1
    s_cselect_b32 s32, 32, s32
    s_cselect_b32 s33, {32*1280}, 0
    s_movk_i32 s34, {4*160}
    s_cmovk_i32 s34, {8*160}
    s_movk_i32 s79, {16*160}
    s_cmovk_i32 s79, {4*160}
    s_add_u32 s30, s30, s32
    s_mul_i32 s26, s30, 1280
    s_mul_i32 s27, s24, 160
    s_add_u32 s26, s26, s27
    s_mul_i32 s27, s20, 5120
    s_mov_b32 m0, s27""")
    for q in range(5):
        a(f"""    v_add_u32 v7, {64*q}, v0
    v_mul_u32_u24 v3, 6554, v7
    v_lshrrev_b32 v3, 16, v3
    v_lshrrev_b32 v15, 4, v3
    v_mul_u32_u24 v3, 1120, v3
    v_lshl_add_u32 v7, v7, 4, v3
    v_mad_u32_u24 v7, v15, s33, v7""")
        S.put(("    buffer_load_dwordx4 v7, s[16:19], s26 offen lds", 'r'))
        if q < 4: a("    s_add_u32 m0, m0, 1024")
    a(f"""    v_bfe_u32 v56, v0, 2, 2
    v_mul_u32_u24 v56, 160, v56
    v_mad_u32_u24 v56, v6, s34, v56
    v_add_u32 v56, s27, v56
    v_and_b32 v3, 3, v0
    v_lshl_add_u32 v57, v3, 3, v56
    v_lshl_add_u32 v56, v3, 4, v56
    v_add_u32 v58, s79, v56
    v_add_u32 v59, s79, v57""")
    if not O['tfirst']:
        emit(a, touch_set(0, 2, "s_sub_u32 s34, s22, 20\ns_lshl_b32 s34, s34, 18"))
        S.put((TL, 't'))
    a(f"""    s_mul_i32 s28, s25, 43691
    s_lshr_b32 s28, s28, 18
    s_mul_i32 s28, s28, 6
    s_sub_u32 s29, s25, s28
    s_lshl_b32 s29, s29, 2
    s_lshr_b32 s29, 0x352140, s29
    s_and_b32 s29, s29, 15
    s_add_u32 s25, s28, s29
    s_mul_i32 s28, s24, 24
    s_add_u32 s28, s28, s25
    s_mul_i32 s28, s28, 5120
    s_add_u32 s28, s28, {WS_WOUT}
    s_add_u32 s29, s28, 4096""")
    S.put(('need', 'vm', ['r']))
    for t in range(5):
        ad, o = (56, 64 * (t >> 1) + 8 * (t & 1)) if t < 4 else (57, 128)
        a(f"    ds_read_b64_tr_b16 {vr(16+4*t,2)}, v{ad} offset:{o}")
        a(f"    ds_read_b64_tr_b16 {vr(18+4*t,2)}, v{ad+2} offset:{o}")
    for t in range(5):
        a(f"    s_waitcnt lgkmcnt({8-2*t})")
        if t < 4: a(f"    buffer_store_dwordx4 {vr(16+4*t,4)}, v2, s[8:11], s28 offen offset:{1024*t} sc1")
        else: a(f"    buffer_store_dwordx4 {vr(16+4*t,4)}, v2, s[8:11], s29 offen sc1")
    a("L_hdone:\n    ; MARK 2")
    S = Sched(a)
    p1 = "    global_load_dword v14, v7, s[66:67] sc1"
    p1b = "    buffer_load_dword v14, v3, s[8:11], s29 offen sc1"
    a(f"""    v_and_b32 v7, 3, v0
    v_lshlrev_b32 v7, 6, v7""")
    emit(a, f1b_addr(3, 4))

    if O['hpre'] == 0: S.put((p1, 'p1'))
    for u in range(O['hpre']):
        if u == O['p1u']: S.put((p1, 'p1'))
        pre, d = wdma(u, u); S.now(pre + d)
    S.put(('need', 'vm', ['p1']))
    emit(a, recheck("H1", [p1], ["    v_cmp_gt_u32 vcc, 16, v14"], sleep=8))
    a(f"""    s_barrier
    s_cmp_lg_u32 s20, 0
    s_cbranch_scc1 L_f1b
    s_lshl_b32 s28, s23, 4
    s_add_u32 s28, s28, {FL_F1B}
    s_mov_b64 exec, 1
    buffer_store_dword v0, v0, s[8:11], s28 offen sc1
    s_mov_b64 exec, -1
L_f1b:
    s_bitcmp0_b32 s22, 2
    s_cbranch_scc1 L_nt""")
    emit(a, touch_set(12, 2, "s_lshr_b32 s34, s22, 1\ns_and_b32 s34, s34, 4\ns_and_b32 s33, s22, 3\ns_add_u32 s34, s34, s33\ns_lshl_b32 s34, s34, 18"))
    a(TL)
    a("L_nt:\n    ; MARK 3")
    for u in range(O['hpre'], HN):
        pre, d = wdma(u, u); S.now(pre + d)
    for u in range(O['nW'] - HN):
        S.now(wread(u, u % HN))
        if u + HN == O['nW'] - 2: S.put((p1b, 'p1b'))
        pre, d = wdma(u + HN, u % HN)
        S.now([('need', 'lg', [('wr', u)])] + pre + d)
    S.put(('need', 'vm', ['p1b']))
    emit(a, recheck("H1b", [p1b], ["    v_cmp_eq_u32 vcc, -1, v14"], sleep=4))
    a("    ; MARK 4")
    def mid():
        for u in range(O['nW'] - HN, O['nW']): S.now(wread(u, u % HN))
        a("    s_waitcnt lgkmcnt(0)\n    s_barrier\n    ; MARK 7")
    win_early(S, mid)
    a("    s_branch L_common")

def g1(a, S):
    A2, BF, RR, CS2, SX, SA, T0, VB = 16, [40, 52], 64, 80, 84, 88, 92, 91
    A1, CS1, RL, X3, R3 = 64, 206, 218, 222, 238
    XS, VA, KK = RR, 1, 14
    HB = lambda s: WV + 8 * s
    def z1dma(lo, hi):
        R = []
        while lo < hi:
            m = min(hi, lo + 4)
            R += L(f"s_add_u32 m0, s25, {L_R + 1024*lo}\ns_add_u32 s76, s27, {1024*lo}") + lin_dma(m - lo, 'w1', 76); lo = m
        return R
    a("L_common:")
    S.now(L(f"s_add_u32 m0, s26, {YO}\ns_add_u32 s27, s27, 4096") + lin_dma(3, 'wl') + L(f"s_add_u32 s27, s27, {61440 - 12288}") + z1dma(0, O['nz']))
    a(f"""    s_mul_i32 s79, s71, 768
    s_add_u32 s79, s79, {WS_CS}
    v_lshlrev_b32 v{SA}, 2, v5
    v_lshlrev_b32 v{SA+1}, 4, v6""")
    a(f"    v_and_b32 v7, 12, v0\n    v_mul_u32_u24 v7, 12, v7\n    v_add3_u32 v7, v7, v{SA}, v{SA+1}\n    v_add_u32 v7, 12288, v7")
    for t in range(3): a(f"    buffer_load_dword v{CS2+t}, v7, s[8:11], s79 offen offset:{256*t} sc1")
    emit(a, stage_base(18432, 1024))
    a(f"""    s_mul_i32 s84, s73, 122880
    s_mul_i32 s76, s20, 30720
    s_add_u32 s84, s84, s76
    s_add_u32 s84, s84, {WS_WOUT}""")
    a(f"""    v_subrev_u32 v41, 40, v0
    v_min_u32 v41, 5, v41
    v_lshl_add_u32 v41, v41, 3, s73
    v_lshlrev_b32 v41, 4, v41
    v_add_u32 v41, {FL_F1B}, v41
    v_cmp_gt_u32 vcc, 40, v0
    s_mul_i32 s28, s20, {40 << O['f2s']}
    s_add_u32 s28, s28, {FL_F2R}
    s_mul_i32 s30, s21, {10240 if O['rep'] else 0}
    s_add_u32 s28, s28, s30
    v_lshl_add_u32 v40, v0, {O['f2s']}, s28
    v_cndmask_b32 v40, v41, v40, vcc
    v_lshlrev_b32 v14, 15, v6
    v_lshl_add_u32 v14, v5, 4, v14       ; quad 2g
    s_lshl_b32 s26, s78, 8
    s_mul_i32 s4, s77, {40*16384}
    s_add_u32 s26, s26, s4
    s_mov_b32 s4, {8*16384}
    s_cmp_eq_u32 s77, 3
    s_cselect_b32 s5, {(8-160)*16384}, s4
    s_cmp_eq_u32 s77, 2
    s_cselect_b32 s6, {(8-160)*16384}, s4
    s_cmp_eq_u32 s77, 1
    s_cselect_b32 s7, {(8-160)*16384}, s4
    v_add_u32 v14, s26, v14
    v_add_u32 v15, 16384, v14            ; quad 2g+1
    v_lshrrev_b32 v7, 2, v0
    v_lshlrev_b32 v7, 14, v7
    v_and_b32 v4, 3, v0
    v_lshl_add_u32 v7, v4, 4, v7
    v_lshlrev_b32 v{T0}, 4, v4
    v_cmp_eq_u32 s[80:81], 1, v4
    v_cmp_eq_u32 s[82:83], 2, v4
    v_cmp_eq_u32 s[18:19], 3, v4
    v_lshlrev_b32 v{VA}, 4, v4
    v_lshl_add_u32 v{VA}, v6, 6, v{VA}
    v_bfe_u32 v4, v0, 2, 1
    v_lshl_add_u32 v{VA}, v4, 3, v{VA}
    v_bfe_u32 v4, v0, 3, 1
    v_lshl_add_u32 v{VA}, v4, 2, v{VA}
    v_and_b32 v4, 12, v0
    v_add_u32 v{T0}, v{T0}, v4
    v_add_u32 v3, 65536, v2
    v_add_u32 v4, 131072, v2
    v_mov_b32 v{T0+1}, 0x3f803f80
    s_lshl_b32 s29, s70, 1
    s_and_b32 s30, s71, 1
    s_add_u32 s29, s29, s30
    s_lshl_b32 s29, s29, 3
    s_lshr_b32 s30, s71, 1
    s_add_u32 s29, s29, s30
    s_lshl_b32 s30, s29, 6
    s_mul_i32 s31, s20, {40*16384}
    s_add_u32 s30, s30, s31
    s_add_u32 s31, s30, {16*16384}
    s_add_u32 s32, s30, {32*16384}
    s_and_b32 s33, s29, 3
    s_lshl_b32 s33, s33, 6
    s_and_b32 s29, s29, -4
    s_add_u32 s29, s29, s20
    s_lshl_b32 s29, s29, 8
    s_add_u32 s29, s29, s33
    s_add_u32 s29, s29, {FL_L2X}
    s_lshl_b32 s33, s78, 10
    s_add_u32 s33, s33, {FL_L2X}
    s_lshl_b32 s24, s20, 8
    s_add_u32 s24, s24, {L_S}""")
    for k in range(4): a(f"    v_mov_b32 v{XS+8+k}, 0")
    if O['gate']:
        a(f"""    s_cmp_lt_u32 s2, 160
    s_cbranch_scc1 L_s2
    s_lshl_b32 s34, s2, 7
    s_add_u32 s34, s34, {FL_F2P - 160 * 128}""")
        spin(a, "H2p", [f"    buffer_load_dword v41, off, s[8:11], s34 sc1"], [f"    v_cmp_eq_u32 vcc, -1, v41"], sleep=4)
        a(f"    s_cmp_eq_u32 s35, 0x7fff\n    s_cbranch_scc1 L_s2\n    s_sleep {O['hsleep'] - O['hs0']}\nL_s2:\n    ; MARK 8")
    spin(a, "S2", [f"    buffer_load_dword v41, v40, s[8:11], 0 offen sc1"], [f"    v_cmp_eq_u32 vcc, -1, v41"], sleep=O['s2sleep'])
    a("    s_barrier\n    ; MARK 9")
    S.vm.q = []; S.lg.q = []
    xsl = [(f"    buffer_load_dwordx4 {vr(XS,4)}, v7, s[8:11], s30 offen sc1", 'x'), (f"    buffer_load_dwordx4 {vr(XS+4,4)}, v7, s[8:11], s31 offen sc1", 'x'),
           "    s_mov_b32 exec_hi, 0", (f"    buffer_load_dwordx4 {vr(XS+8,4)}, v7, s[8:11], s32 offen sc1", 'x'), "    s_mov_b32 exec_hi, -1"]
    def aload(s):
        d = {4: 5, 9: 6, 14: 7}.get(s, 4)
        return [(f"    buffer_load_dwordx4 {vr(HB(s),4)}, v14, s[8:11], 0 offen sc1", s), f"    v_add_u32 v14, s{d}, v14",
                (f"    buffer_load_dwordx4 {vr(HB(s)+4,4)}, v15, s[8:11], 0 offen sc1", s), f"    v_add_u32 v15, s{d}, v15"]
    NPRE = O['npre']
    for s in range(NPRE): S.now(aload(s))
    if O['xs_ld'] <= NPRE: S.now(xsl)
    def bread(half, idx, s, t): return (f"    ds_read_b128 {vr(BF[idx&1]+4*t,4)}, {lds_op(win_addr(half, s, t))}", ('b', half, idx, t))
    S.now([bread(0, s, s, t) for s in range(2) for t in range(3)])
    a(f"""    v_add_u32 v{SA}, s24, v{SA}          ; scratch + 4i
    v_add_u32 v{SA+1}, s24, v{SA+1}      ; scratch + 16g
    v_and_b32 v{SA+2}, 1, v6
    v_lshl_add_u32 v{SA+2}, v{SA+2}, 6, v{SA}""")
    for t in range(3): emit(a, allreduce_g(CS2 + t, CS2 + 3))
    def dots():
        S.put(('need', 'vm', ['x']))
        for k in range(6):
            e = XS + 4 * (k >> 1) + (k & 1); o = e + 2
            z = lambda r: f"v{r}" if k else "0"
            a(f"    v_dot2_f32_bf16 v{SX}, v{e}, v{T0+1}, {z(SX)}\n    v_dot2_f32_bf16 v{SX+1}, v{e}, v{e}, {z(SX+1)}")
            a(f"    v_dot2_f32_bf16 v{SX+2}, v{o}, v{T0+1}, {z(SX+2)}\n    v_dot2_f32_bf16 v{SX+3}, v{o}, v{o}, {z(SX+3)}")
        S.now(L(f"""v_add_f32_dpp v{SX}, v{SX}, v{SX} row_ror:8 row_mask:0xf bank_mask:0x3
v_add_f32_dpp v{SX+1}, v{SX+1}, v{SX+1} row_ror:8 row_mask:0xf bank_mask:0x3
v_add_f32_dpp v{SX}, v{SX+2}, v{SX+2} row_ror:8 row_mask:0xf bank_mask:0xc
v_add_f32_dpp v{SX+1}, v{SX+3}, v{SX+3} row_ror:8 row_mask:0xf bank_mask:0xc
v_add_f32_dpp v{SX}, v{SX}, v{SX} row_shl:4 row_mask:0xf bank_mask:0x5
v_add_f32_dpp v{SX}, v{SX+1}, v{SX+1} row_shr:4 row_mask:0xf bank_mask:0xa""") + allreduce_g(SX, SX + 1)
              + [f"    buffer_store_dword v{SX}, v{T0}, s[8:11], s29 offen sc1"])
    def swaps(s): return [('need', 'vm', [s]), f"    v_swap_b32 v{HB(s)+2}, v{HB(s)+4}", f"    v_swap_b32 v{HB(s)+3}, v{HB(s)+5}"]
    S.now(swaps(0))
    a("    ; MARK 10")
    l2load = f"    buffer_load_dwordx4 {vr(SX,4)}, v2, s[8:11], s33 offen sc1"
    l2chk = L(f"v_max3_u32 v{T0}, v{SX}, v{SX+1}, v{SX+2}\nv_max_u32 v{T0}, v{T0}, v{SX+3}\nv_cmp_eq_u32 vcc, -1, v{T0}")
    def bcast(t, R):
        return [(f"    ds_write2_b32 v{SA+2}, v{t}, v{t+1} offset1:32", 'sw')] + [(f"    ds_read_b128 {vr(R+4*k,4)}, v{SA+1} offset:{64*k}", 'rr') for k in range(4)]
    c0 = -2.0 * math.sqrt(2.0 / math.pi) * LOG2E
    nxt = NPRE
    tailq = z1dma(O['nz'], 15)
    for s in range(20):
        forced = {k: [] for k in range(6)}
        for n in range(2):
            if nxt < 20 and nxt - s <= O['lead']:
                x = aload(nxt); forced[n] += x[:2]; forced[n + 2] += x[2:]
                if nxt + 1 == O['xs_ld']: forced[3] += xsl
                if nxt == O['l2_ld']: forced[3].append((l2load, 'l2'))
                nxt += 1
        if nxt == 20 and not forced[0]:
            for k in ((0, 1, 2, 3) if len(tailq) > 8 else (0, 2)): forced[k] += tailq[:1]; tailq = tailq[1:]
        if s + 2 < 20:
            for t in range(3): forced[2 * t + 1].append(bread(0, s + 2, s + 2, t))
        if s < 19: forced[4] += swaps(s + 1)
        S.put(('need', 'lg', [('b', 0, s, 2)]))
        for t in range(3):
            for par in range(2):
                c = vr(A2 + 8 * t + 4 * par, 4)
                a(f"    v_mfma_f32_16x16x32_bf16 {c}, {vr(HB(s)+4*par,4)}, {vr(BF[s&1]+4*t,4)}, {c if s else '0'}")
                S.gap(0, forced[2 * t + par])
        if s == O['xs_at']: dots()
        if s == O['l2_ld']:
            S.now([('need', 'vm', ['l2'])] + recheck("L2", [l2load], l2chk) + row_scalars(SX, 640, T0) + bcast(T0, RR))
        if O['g1marks'] == 1 and s in (3, 7, 11, 15): a(f"    ; MARK {25 + s // 4}")
    S.now(tailq)
    a(f"""    v_mov_b32 v{KK}, {f2u(c0)}
    v_mov_b32 v{KK+1}, {f2u(c0*0.044715)}
    s_lshr_b32 s30, s70, 3
    s_and_b32 s34, s71, 14
    s_add_u32 s34, s34, s30
    s_cmp_eq_u32 s34, s71
    s_cselect_b32 s30, 96, 0
    s_mul_i32 s31, s34, 192
    s_add_u32 s30, s30, s31
    s_add_u32 s30, s30, {WS_Z2 >> 10}
    s_and_b32 s31, s78, 31
    s_add_u32 s33, s30, s31
    s_add_u32 s29, s33, s31
    s_add_u32 s33, s33, 64
    s_lshl_b32 s29, s29, 10
    s_lshl_b32 s33, s33, 10
    s_lshl_b32 s32, s78, 12
    s_add_u32 s32, s32, {FL_L3X}
    s_lshl_b32 s31, s71, 8
    s_add_u32 s31, s31, s32""")
    S.put(('need', 'lg', ['rr']))
    a("    ; MARK 11")
    mv, stx = xfill(84); S.now(mv)
    hk = [[(x, 'xf')] for x in stx] if O['xfs'] else [[(x, 'xf') for x in stx]]; S.hk = hk
    def hook():
        if hk: S.now(hk.pop(0))
    def singles(xs):
        R = [[]]
        for x in xs:
            R[-1].append(x)
            if isinstance(x, tuple): R.append([])
        return R[:-1]
    GT, QQ, SS = 40, 48, 56
    for t in range(3):
        prs = [A2 + 8 * t + 2 * k for k in range(4)]
        hook()
        for k, x in enumerate(prs): a(f"    v_pk_mul_f32 {vr(x,2)}, {vr(x,2)}, {vr(RR+2*k,2)}")
        for k, x in enumerate(prs): a(f"    v_pk_fma_f32 {vr(x,2)}, {vr(RR+8+2*k,2)}, {vr(CS2+(t&2),2)}, {vr(x,2)} op_sel:[0,{t&1},0] op_sel_hi:[1,{t&1},1] neg_lo:[1,0,0] neg_hi:[1,0,0]")
        gelu_block(a, prs, GT, KK)
        for k, x in enumerate(prs):
            if t == 0: a(f"    v_pk_mul_f32 {vr(QQ+2*k,2)}, {vr(x,2)}, {vr(x,2)}")
            else:
                a(f"    v_pk_add_f32 {vr(SS+2*k,2)}, {vr(x,2)}, {vr(SS+2*k if t == 2 else A2+2*k,2)}")
                a(f"    v_pk_fma_f32 {vr(QQ+2*k,2)}, {vr(x,2)}, {vr(x,2)}, {vr(QQ+2*k,2)}")
    assert not hk
    order = list(range(14, 20)) + list(range(14))
    for k in range(8): a(f"    v_add_f32_dpp v{SS+k}, v{SS+k}, v{SS+k} row_ror:8 row_mask:0xf bank_mask:0x3")
    for k in range(8): a(f"    v_add_f32_dpp v{SS+k}, v{QQ+k}, v{QQ+k} row_ror:8 row_mask:0xf bank_mask:0xc")
    for k in range(4): a(f"    v_add_f32_dpp v{SS+k}, v{SS+k}, v{SS+k} row_half_mirror row_mask:0xf bank_mask:0x5")
    for k in range(4): a(f"    v_add_f32_dpp v{SS+k}, v{SS+4+k}, v{SS+4+k} row_half_mirror row_mask:0xf bank_mask:0xa")
    for k in range(4): a(f"    v_add_f32_dpp v{SS+k}, v{SS+k}, v{SS+k} quad_perm:[2,3,0,1] row_mask:0xf bank_mask:0xf")
    for k in range(4): a(f"    v_add_f32_dpp v{SS+k}, v{SS+k}, v{SS+k} quad_perm:[1,0,3,2] row_mask:0xf bank_mask:0xf")
    a(f"""    v_cndmask_b32 v{T0}, v{SS}, v{SS+1}, s[80:81]
    v_cndmask_b32 v{T0}, v{T0}, v{SS+2}, s[82:83]
    v_cndmask_b32 v{T0}, v{T0}, v{SS+3}, s[18:19]""")
    if O['xfw']: S.put(('need', 'vm', ['xf']))
    S.put(f"    buffer_store_dword v{T0}, v{VA}, s[8:11], s31 offen sc1")
    a("    v_add_u32 v1, s32, v2")
    S.put(('need', 'vm', ['w1'])); a("    s_barrier")
    a("    ; MARK 13")
    S.now([bread(1, i, order[i], t) for i in range(2) for t in range(3)])
    wq = [x for u in range(O['nW'], 16) for part in wdma(u, u & 3) for x in part]
    l3 = [f"    buffer_load_dwordx4 {vr(X3+4*j,4)}, v1, s[8:11], 0 offen offset:{1024*j} sc1" for j in range(4)]
    chk = [f"    v_max3_u32 v{T0}, v{X3}, v{X3+1}, v{X3+2}"]
    for k in range(3, 15, 2): chk.append(f"    v_max3_u32 v{T0}, v{T0}, v{X3+k}, v{X3+k+1}")
    chk += [f"    v_max_u32 v{T0}, v{T0}, v{X3+15}", f"    v_cmp_eq_u32 vcc, -1, v{T0}"]
    side = {}; sb = O['l3_at'] + 1
    side[sb] = L(f"s_lshl_b32 s30, s78, 6\nv_lshl_add_u32 v7, v5, 2, s30") + [(f"    global_load_dword v{VB}, v7, s[60:61]", 'bias')] + L("v_and_b32 v7, 3, v0\nv_lshlrev_b32 v7, 4, v7\nv_lshl_add_u32 v7, v6, 6, v7")
    side[sb] += [(f"    buffer_load_dwordx4 {vr(CS1+4*t,4)}, v7, s[8:11], s79 offen offset:{256*t} sc1", 'bias') for t in range(3)]
    side[sb] += [(f"    ds_read2_b32 {vr(RL,2)}, v{SA} offset0:0 offset1:16", 'rl'), (f"    ds_read2_b32 {vr(RL+2,2)}, v{SA} offset0:32 offset1:48", 'rl')]
    side.setdefault(O['l3_at'], []).extend([(x, 'l3') for x in l3])
    side.setdefault(O['l3_chk'], []).extend([('need', 'vm', ['l3'])] + recheck("L3", l3, chk)
        + [f"    v_add_f32 v{X3+k}, v{X3+k}, v{X3+8+k}" for k in range(8)] + [f"    v_add_f32 v{X3+k}, v{X3+k}, v{X3+4+k}" for k in range(4)]
        + row_scalars(X3, 768, T0) + bcast(T0, R3))
    side.setdefault(max(O['nS'] + 1, 13), []).extend([('need', 'vm', ['bias'])] + [f"    v_add_f32_dpp v{CS1+k}, v{CS1+k}, v{CS1+k} quad_perm:{m} row_mask:0xf bank_mask:0xf"
        for m in ("[2,3,0,1]", "[1,0,3,2]") for k in range(12)])
    assert O['nS'] < 19
    def z2out():
        a("    ; MARK 14")
        S.q += side.get(O['nS'], [])
        S.flush()
        S.put(('need', 'lg', ['rr']))
        a("    ; MARK 15")
        for t in range(3):
            for k in range(4):
                x = A2 + 8 * t + 2 * k
                a(f"    v_pk_fma_f32 {vr(x,2)}, {vr(x,2)}, {vr(R3+2*k,2)}, {vr(R3+8+2*k,2)} neg_lo:[0,0,1] neg_hi:[0,0,1]")
            o = X3 + 4 + 4 * t
            for r in range(4): a(f"    v_cvt_pk_bf16_f32 v{o+r}, v{A2+8*t+r}, v{A2+8*t+4+r}")
            S.put((f"    buffer_store_dwordx4 {vr(o,4)}, v2, s[8:11], {'s29' if t < 2 else 's33'} offen offset:{1024*(t&1)} sc1", 'z2'))
        a("    ; MARK 16")
    assert O['l3_chk'] <= O['nS']
    nw = len(wq); put = 0
    for i, s in enumerate(order):
        forced = {k: [] for k in range(6)}
        if i + 2 < 20:
            for t in range(3): forced[2 * t + 1].append(bread(1, i + 2, order[i + 2], t))
        for k in (1, 3):
            if put < nw and put * (O['whi'] - O['wlo']) <= (2 * i + (k >> 1) - O['wlo']) * nw: forced[k].append(wq[put]); put += 1
        if i != O['nS']: S.q += side.get(i, [])
        for t in range(3):
            for par in range(2):
                if par == 0: S.put(('need', 'lg', [('b', 1, i, 2 if i else t)]))
                c = vr(A1 + 8 * t + 4 * par, 4)
                a(f"    v_mfma_f32_16x16x32_bf16 {c}, {vr(BF[i&1]+4*t,4)}, {vr(HB(s)+4*par,4)}, {c if i else '0'}")
                S.gap(4 if (t, par) == (2, 1) else 8, forced[2 * t + par])
        if i + 1 == O['nS']: z2out()
    assert put == nw
    S.flush()
    def z1tile(t):
        prs = [A1 + 8 * t + 2 * k for k in range(4)]
        hook()
        for k, x in enumerate(prs): a(f"    v_pk_mul_f32 {vr(x,2)}, {vr(x,2)}, {vr(RL,2)} op_sel:[0,{k>>1}] op_sel_hi:[1,{k>>1}]")
        for k, x in enumerate(prs): a(f"    v_pk_fma_f32 {vr(x,2)}, {vr(CS1+4*t+2*(k&1),2)}, {vr(RL+2,2)}, {vr(x,2)} op_sel:[0,{k>>1},0] op_sel_hi:[1,{k>>1},1] neg_lo:[1,0,0] neg_hi:[1,0,0]")
        gelu_block(a, prs, 52, KK, hook)
        for k in (3, 2, 1, 0): a(f"    v_cvt_pk_bf16_f32 v{76+4*t+k}, v{prs[k]}, v{prs[k]+1}")
    a(f"""    s_lshl_b32 s25, s71, {4 + O['f3s']}
    s_lshr_b32 s88, s70, 2
    s_mul_i32 s88, s88, {4096 if O['r3'] else 0}
    s_add_u32 s25, s25, s88
    v_lshlrev_b32 v7, 12, v0
    s_add_u32 s25, s25, {FL_F3}
    s_lshl_b32 s28, s34, 1
    s_and_b32 s30, s71, 1
    s_add_u32 s28, s28, s30
    s_lshl_b32 s28, s28, 3
    s_and_b32 s30, s70, 7
    s_add_u32 s28, s28, s30
    s_lshl_b32 s28, s28, {O['f3s']}
    s_add_u32 s28, s28, {FL_F3}""")
    S.put(('need', 'vm', ['bias']))
    S.nwo = O['oC2']
    a('    v_add_u32 v9, s84, v2\n    s_sub_u32 s75, s75, 1024')
    tiles = [2, 1, 0]
    for t in tiles[:O['nT']]: z1tile(t)
    while hk: hook()
    S.put(('need', 'vm', ['z2']))
    flag_store(a, "L_f3", 28)
    a("    ; MARK 17")
    hk += [wread(u, u & 3) for u in range(O['nW'], 16)] + [[('need', 'lg', [('wr', 15)])]] + singles(wo_pieces(0, S.nwo, 'wo'))
    for t in tiles[O['nT']:3-O['nT2']]: z1tile(t)
    while hk: hook()
    S.rest = lambda: [z1tile(t) for t in tiles[3-O['nT2']:]]

def g2(a, S):
    NS, ACC, ZF, Z1P, AX, XI, ZU = 7, 16, 40, 76, 96, 120, 144
    half = [(k, t) for k in range(32) for t in range(2)] + [(k, 2) for k in range(32)]
    seq = [(k, t, AX) for k, t in half] + [(k, t, ACC) for k, t in half]
    for par in range(2):
        a(f"    v_lshlrev_b32 v{ACC}, 16, v91" if par == 0 else f"    v_and_b32 v{ACC+12}, 0xffff0000, v91")
        for k in range(1, 12): a(f"    v_mov_b32 v{ACC+12*par+k}, v{ACC+12*par}")
    a(f"""    v_lshl_add_u32 v7, v5, {O['f3s']}, s25
    s_xor_b32 s28, s28, {8 << O['f3s']}
    s_add_u32 s28, s28, s88
    v_mov_b32 v89, s28
    v_cmp_gt_u32 vcc, 16, v0
    s_mul_i32 s27, s20, 3072
    s_mul_i32 s26, s71, {64*3072}
    s_add_u32 s26, s26, s27
    s_add_u32 s26, s26, {WS_Z2}
    s_add_u32 s27, s27, {L_Z}
    v_cndmask_b32 v7, v89, v7, vcc
    s_mul_i32 s30, s78, 49152
    s_lshr_b32 s31, s71, 1
    s_mul_i32 s31, s31, 3072
    s_add_u32 s30, s30, s31
    s_add_u32 s30, s30, {WS_P}
    s_and_b32 s32, s71, 1
    s_lshl_b32 s31, s32, 9
    s_add_u32 s31, s31, s30
    s_add_u32 s31, s31, 1024
    s_lshl_b32 s32, s32, 11
    s_add_u32 s30, s30, s32
    s_add_u32 s32, s30, 24576
    v_and_b32 v88, 1, v6
    v_mul_u32_u24 v88, 24576, v88
    v_lshrrev_b32 v89, 1, v6
    v_lshl_add_u32 v88, v89, 8, v88
    v_lshl_add_u32 v88, v5, 4, v88
    v_lshlrev_b32 v12, 14, v0
    s_lshl_b32 s28, s85, 4
    s_add_u32 s28, s28, {FL_F4}""")
    a("    s_cmp_lg_u32 s20, 0\n    s_cbranch_scc1 S3_d")
    spin(a, "S3", ["    buffer_load_dword v89, v7, s[8:11], 0 offen sc1"], ["    v_cmp_eq_u32 vcc, -1, v89"], sleep=O["s3s"])
    a("    s_barrier\n    ; MARK 18")
    def dma(st):
        pre = [f"    s_add_u32 m0, s27, {(st % NS) * 12288}", "    v_add_u32 v13, 12288, v13" if st else "    v_add_u32 v13, s26, v2"]
        return pre, [(f"    buffer_load_dwordx4 v13, s[8:11], 0 offen offset:{1024*k} sc1 lds", ('z', st)) for k in range(3)]
    def zreads(s):
        return [(f"    ds_read_b128 {vr(ZF+12*(s%3)+4*ft,4)}, {lds_op(L_Z + ((s >> 2) % NS) * 12288 + (s & 3) * 3072 + 1024 * ft)}", ('zr', s, ft)) for ft in range(3)]
    def wopiece(n):
        return [f"    s_add_u32 m0, s75, {1024*n}", f"    s_add_u32 s76, s33, {1024*n}", ("    buffer_load_dwordx4 v2, s[8:11], s76 offen sc1 lds", 'wo')]
    pre, d = dma(0); S.now(pre + d)
    for st in range(1, 4):
        pre, d = dma(st); S.hk.extend([pre + d[:1], d[1:2], d[2:]])
    S.rest()
    while S.hk: S.now(S.hk.pop(0))
    S.put(('need', 'vm', [('z', 0)]))
    a("    s_barrier\n    ; MARK 19")
    S.now(zreads(0) + zreads(1))
    nwo = S.nwo
    side = {}
    def at(s, xs): side.setdefault(s, []).extend(xs)
    one = lambda x: ["    s_mov_b64 exec, 1\n" + x + "\n    s_mov_b64 exec, -1"]
    unp = []
    for r in range(12): unp += [f"    v_lshlrev_b32 v{ZU+2*r}, 16, v{Z1P+r}", f"    v_and_b32 v{ZU+2*r+1}, 0xffff0000, v{Z1P+r}"]
    at(2, unp)
    flags = {}
    XO, XP = 168, 180
    for e, (s0, tiles) in enumerate(((22, (0, 1)), (33, (2,)))):
        for n, ft in enumerate(tiles):
            at(s0 + n * O['xsp'], [f"    v_cvt_pk_bf16_f32 v{XO+4*ft+2*par+h}, v{AX+12*par+4*ft+2*h}, v{AX+12*par+4*ft+2*h+1}" for par in range(2) for h in range(2)]
               + [(f"    buffer_store_dwordx4 {vr(XO+4*ft,4)}, v2, s[8:11], s87 offen offset:{1024*ft} sc1", ('xs', e))])
        ld = [f"    buffer_load_dwordx4 {vr(XP+4*ft,4)}, v2, s[8:11], s86 offen offset:{1024*ft} sc1" for ft in tiles]
        for n, x in enumerate(ld): flags[s0 + O['xw'] + n * O['xsp']] = (x, ('xl', e))
        b = XP + 4 * tiles[0]; nr = 4 * len(tiles)
        chk = [f"    v_max_u32 v92, v{b}, v{b+1}"] + [f"    v_max3_u32 v92, v92, v{b+r}, v{b+r+1}" for r in range(2, nr, 2)] + ["    v_cmp_eq_u32 vcc, -1, v92"]
        s1 = s0 + O['xw'] + (len(tiles) - 1) * O['xsp'] + O['xl']
        assert s1 < (54, 64)[e]
        R = [('need', 'vm', [('xl', e)])] + recheck(f"X{e}", ld, chk)
        for r in range(4 * tiles[0], 4 * tiles[-1] + 4):
            R += L(f"v_lshlrev_b32 v{XI+2*r}, 16, v{XP+r}\nv_and_b32 v{XI+2*r+1}, 0xffff0000, v{XP+r}\nv_mul_f32 v{XI+2*r}, v{XI+2*r}, v{ZU+2*r}\nv_mul_f32 v{XI+2*r+1}, v{XI+2*r+1}, v{ZU+2*r+1}")
        at(s1, R)
    R = []
    for par in range(2):
        for ft in range(2):
            c = ACC + 12 * par + 4 * ft; o = 8 * ft + 4 * par
            R += [f"    v_fma_f32 v{c+r}, v{c+r}, v{ZU+o+r}, v{XI+o+r}" for r in range(4)]
            R += [f"    v_cvt_pk_bf16_f32 v{ACC+12*par+2*ft+h}, v{c+2*h}, v{c+2*h+1}" for h in range(2)]
        R.append((f"    buffer_store_dwordx4 {vr(ACC+12*par,4)}, v2, s[8:11], s{30+2*par} offen sc1", 'pa'))
    at(54, R)
    dcar = []; zn = 4; lastbar = 0; free = -2
    for s in range(64):
        st, ph = s >> 2, s & 3
        forced = {k: [] for k in range(6)}
        if s + 2 < 64:
            for k, x in enumerate(zreads(s + 2)): forced[k].append(x)
        B2 = O['bar2'] and st >= 2
        if ph == 1 and st < 15 and not (B2 and st & 1):
            forced[4].append(('need', 'vm', [('z', st + 1)] + ([('z', st + 2)] if B2 else []))); forced[5].append("    s_barrier"); lastbar = -1 - st
        if ph == 2 and lastbar < 0: lastbar = -1 - lastbar; free = lastbar - 1
        w = None
        if zn < 16 and ph in (0, 2) and zn <= free + NS:
            pre, d = dma(zn); w = pre + d; zn += 1
        elif ph == 0 and nwo < 18:
            w = wo_pieces(nwo, min(18, nwo + 2), 'wo'); nwo = min(18, nwo + 2)
        elif ph in (0, 2) and 18 <= nwo < 30 - O['lw1'] - O['lw2'] and 9 + (nwo - 18) // 3 <= free and (ph == 2 or O['bar2']):
            w = wo_pieces(nwo, nwo + 3, 'wo'); nwo += 3
        if w:
            assert not dcar
            forced[0] += w[:1]; forced[1] += w[1:2]; forced[2] += w[2:3]; dcar = w[3:]
        elif dcar:
            forced[0] += dcar[:1]; forced[3] += dcar[1:]; dcar = []
        S.q += side.get(s, [])
        if s in flags: forced[3].append(flags[s])
        k = 0
        for j in range(3):
            ks, ft, base = seq[3 * s + j]
            for par in range(2):
                S.put(('need', 'lg', [('zr', s, j if s == 0 else 2)]))
                c = vr(base + 12 * par + 4 * ft, 4)
                a(f"    v_mfma_f32_16x16x32_bf16 {c}, {vr(ZF+12*(s%3)+4*j,4)}, {wreg(ks >> 1, ks & 1, par)}, {'0' if (base == AX and ks == 0) else c}")
                S.gap(4 if k == 5 else 8, forced[k]); k += 1
        if O['g2marks'] and s in (21, 29, 37, 45, 53): a(f"    ; MARK {25 + (s - 21) // 8}")
    S.flush()
    assert nwo == 30 - O['lw1'] - O['lw2'] >= 21
    a("    ; MARK 20")
    a(f"""    s_lshl_b32 s25, s72, 2
    s_add_u32 s25, s25, s20            ; t tile
    s_lshr_b32 s30, s25, 1
    s_lshl_b32 s24, s30, {4 + O['f4s']}
    s_lshr_b32 s29, s73, 2
    s_mul_i32 s29, s29, {16384 if O['r4'] else 0}
    s_add_u32 s24, s24, s29
    s_add_u32 s24, s24, {FL_F4}
    v_lshlrev_b32 v48, {O['f4s']}, v5
    v_lshlrev_b32 v7, 4, v5""")
    PO = 40
    for par in range(2):
        c = ACC + 12 * par + 8
        for h in range(2): a(f"    v_pk_fma_f32 {vr(c+2*h,2)}, {vr(c+2*h,2)}, {vr(ZU+16+4*par+2*h,2)}, {vr(XI+16+4*par+2*h,2)}")
    for par in range(2):
        c = ACC + 12 * par + 8
        for h in range(2): a(f"    v_cvt_pk_bf16_f32 v{PO+2*par+h}, v{c+2*h}, v{c+2*h+1}")
    a(f"    v_permlane16_swap_b32 v{PO}, v{PO+2}\n    v_permlane16_swap_b32 v{PO+1}, v{PO+3}")
    S.put((f"    buffer_store_dwordx4 {vr(PO,4)}, v88, s[8:11], s31 offen sc1", 'pb'))
    S.now([('need', 'vm', ['pa']), f"    s_mov_b64 exec, {3 if O['r4'] else 1}", "    buffer_store_dword v0, v12, s[8:11], s28 offen sc1", "    s_mov_b64 exec, -1"])
    a("    ; MARK 21")
    return nwo

def g3(a, S, nwo):
    PF, ACC, WF, HR = 56, 16, [152, 172, 192], 212
    order = [k for k in range(24) if k % 3 != 1] + [k for k in range(24) if k % 3 == 1]
    def waddr(k, t): return wo_addr(k // 6, [0, 4, 1, 2, 5, 3][k % 6] * 5 + t)
    def wreads(i): return [(f"    ds_read_b128 {vr(WF[i%3]+4*t,4)}, {lds_op(waddr(order[i], t))}", i) for t in range(5)]
    def pre3():
        S.now(wreads(0) + wreads(1))
        for t in range(5):
            for h in range(2):
                r = HR + 2 * t + h
                a(f"    v_lshlrev_b32 v{ACC+4*t+2*h}, 16, v{r}\n    v_and_b32 v{ACC+4*t+2*h+1}, 0xffff0000, v{r}")
        R = L("""s_mul_i32 s30, s20, 2816
s_add_u32 s30, s30, 147456
v_mul_u32_u24 v8, 176, v5
v_add_u32 v8, s30, v8
v_lshl_add_u32 v46, v6, 3, v8
v_lshl_add_u32 v8, v6, 4, v8""")
        for q, (vl, vg) in enumerate(((12, 10), (13, 11), (1, 14))):
            R += L(f"""v_add_u32 v15, {64*q}, v0
v_min_u32 v15, 159, v15
v_mul_u32_u24 v47, 6554, v15
v_lshrrev_b32 v47, 16, v47
v_add_u32 v{vl}, v15, v47
v_lshl_add_u32 v{vl}, v{vl}, 4, s30
v_mul_u32_u24 v47, {2560-160}, v47
v_lshl_add_u32 v{vg}, v15, 4, v47""")
        S.now(R)
    pA = "    buffer_load_dword v49, v48, s[8:11], s24 offen sc1"
    pB = "    buffer_load_dword v44, v45, s[8:11], s24 offen sc1"
    a(f"""    s_lshl_b32 s30, s30, 5
    s_and_b32 s31, s25, 1
    s_add_u32 s30, s30, s31
    s_lshl_b32 s29, s30, 3
    s_mul_i32 s32, s73, {20*16384}
    s_add_u32 s29, s29, s32
    v_lshl_add_u32 v15, v6, 14, v7
    v_lshl_add_u32 v14, v6, 15, v7""")
    for t in range(5):
        qd = 8 * (t >> 1) + (t & 1)
        S.now([f"    s_add_u32 s32, s29, {WS_H + qd*16384}", (f"    buffer_load_dwordx2 {vr(HR+2*t,2)}, v{14 if t < 4 else 15}, s[8:11], s32 offen sc1", 'wo')])
    S.now(wo_pieces(nwo, nwo + O['lw1'], 'w2'))
    emit(a, srd(16, 64, 2048 * 1280))
    a(f"""    s_mul_i32 s40, s25, 24576
    s_add_u32 s40, s40, {WS_P}
    s_mul_i32 s31, s30, 1280
    s_mul_i32 s32, s73, 160
    s_add_u32 s31, s31, s32
    s_add_u32 s28, s28, 32768
    v_add_u32 v45, 32768, v48""")
    a("    v_add_u32 v50, s40, v2")
    for j in range(1, 6): a(f"    v_add_u32 v{50+j}, {4096*j}, v50")
    if O['s4d'] < 0: S.put((pA, 'fa'))
    S.put(('need', 'vm', ['pb']))
    if O['s4d'] == 0: S.put((pA, 'fa'))
    a(f"    s_mov_b64 exec, {3 if O['r4'] else 1}")
    S.put("    buffer_store_dword v0, v12, s[8:11], s28 offen sc1")
    a("    s_mov_b64 exec, -1\n    ; MARK 22")
    S.now([('need', 'vm', ['wo']), "    s_barrier"])
    if O['s4d'] == 1: S.put((pA, 'fa'))
    S.now(wo_pieces(nwo + O['lw1'], 30, 'w2'))
    pre3()
    if O['s4d'] == 2: S.put((pA, 'fa'))
    S.put(('need', 'vm', ['fa']))
    emit(a, recheck("S4", [pA], ["    v_cmp_eq_u32 vcc, -1, v49"], sleep=O["s4s"]))
    a("    ; MARK 23")
    def pl(i):
        k = order[i]
        return (f"    buffer_load_dwordx4 {vr(PF+4*i,4)}, v{50+(k>>2)}, s[8:11], 0 offen offset:{1024*(k&3)} sc1", i)
    if O['pb_ld'] < 0: S.put((pB, 'fb'))
    for i in range(O['pa']):
        S.put(pl(i))
        if i == O['pb_ld']: S.put((pB, 'fb'))
    for i in range(O['pa'], 16):
        S.q.append(pl(i))
        if i == O['pb_ld']: S.q.append((pB, 'fb'))
    if O['pb_ld'] >= 16: S.q.append((pB, 'fb'))
    for i in range(24):
        if i == O['pb_chk']:
            if any(isinstance(x, tuple) and x[1] == 'fb' for x in S.q): S.flush()
            S.now([('need', 'vm', ['fb'])] + recheck("S5", [pB], ["    v_cmp_eq_u32 vcc, -1, v44"]))
            a("    ; MARK 12")
            S.q += [pl(j) for j in range(16, 24)]
        S.now([('need', 'vm', [i]), ('need', 'lg', [i])])
        if i == 8 and nwo < 30: S.now([('need', 'vm', ['w2']), '    s_barrier'])
        rd = wreads(i + 2) if i < 22 else []
        for t in range(5):
            c = vr(ACC + 4 * t, 4)
            a(f"    v_mfma_f32_16x16x32_bf16 {c}, {vr(WF[i%3]+4*t,4)}, {vr(PF+4*i,4)}, {c}")
            S.gap(8 if t < 3 else 4, rd[t:t+1])
    assert not S.q
    a("    ; MARK 24")
    for t in range(5):
        for h in range(2): a(f"    v_cvt_pk_bf16_f32 v{36+2*t+h}, v{ACC+4*t+2*h}, v{ACC+4*t+2*h+1}")
    a(f"""    ds_write_b128 v8, v[36:39]
    ds_write_b128 v8, v[40:43] offset:64
    ds_write_b64 v46, v[44:45] offset:128
    ds_read_b128 v[52:55], v12
    ds_read_b128 v[56:59], v13
    ds_read_b128 v[60:63], v1
    s_waitcnt lgkmcnt(2)
    buffer_store_dwordx4 v[52:55], v10, s[16:19], s31 offen
    s_waitcnt lgkmcnt(1)
    buffer_store_dwordx4 v[56:59], v11, s[16:19], s31 offen
    s_mov_b32 exec_hi, 0
    s_waitcnt lgkmcnt(0)
    buffer_store_dwordx4 v[60:63], v14, s[16:19], s31 offen
L_end:
    s_endpgm""")

def build(**kw):
    O.update(kw); TAILS.clear()
    a = Asm()
    a.begin_kernel(NAME + "_kernel", 256, 256, 163840, 512, accum=256)
    a(f"""    s_load_dwordx16 s[36:51], s[0:1], 0
{'' if O['ksplit'] else KREST}
    s_cmp_lt_u32 s2, 224
    s_cbranch_scc1 L_e1
    s_cmp_ge_u32 s2, 256
    s_cbranch_scc1 L_end
    s_getpc_b64 s[30:31]
    s_and_b32 s3, s2, 24
    s_lshl_b32 s3, s3, 4
    v_min_u32 v7, 87, v0
    v_lshl_add_u32 v7, v7, 9, s3
    global_load_dword v14, v7, s[30:31]
L_e1:""")
    emit(a, lanes())
    a(f"""    s_cmp_lt_u32 s2, 160
    s_cbranch_scc1 L_conv
    s_sub_u32 s23, s2, 160
    s_cmp_ge_u32 s23, 64
    s_cbranch_scc1 L_nostat
    s_lshl_b32 s24, s23, 5
    v_lshrrev_b32 v3, 3, v1
    v_add_u32 v3, s24, v3              ; row
    v_mul_u32_u24 v7, 1280, v3
    v_and_b32 v14, 7, v0
    v_lshl_add_u32 v7, v14, 4, v7
    s_waitcnt lgkmcnt(0)""")
    if O['ksplit']: a(KREST)
    for q in range(10): a(f"    global_load_dwordx4 {vr(16+4*q,4)}, v7, s[36:37] offset:{128*q}")
    a("    s_branch L_help")
    conv_role(a)
    S = Sched(a)
    g1(a, S); nwo = g2(a, S); g3(a, S, nwo); helper_role(a)
    for t in TAILS: emit(a, t)
    a.end_kernel()
    fl = {0: "sc1", 1: "sc0 sc1", 2: "sc1 nt", 3: "sc0 sc1 nt"}[O['pf']]
    a.lines = [re.sub(r"sc1$", fl, l) if re.match(r"\s+buffer_load_dword v(41|89|9|44),", l) else l for l in a.lines]
    a.lines = hazard.fix(a.lines, verbose=True)
    a.lines = align.fix(a.lines, verbose=True)
    assert sum(align.sizes(a.lines)) <= 88 * 512
    a(".p2align 8\n.fill 3072, 4, 0xbf800000")
    return a.text("S4 conv + gMLP block in one persistent launch; written with the author's own generator script", single=True)
if __name__ == "__main__":
    out = sys.argv[1] if len(sys.argv) > 1 else "v18.s"
    kw = {k: int(v, 0) for k, v in (x.split("=") for x in sys.argv[2:])}
    open(out, "w").write(build(**kw))
```

```python
import re, sys
STAMP_OFF = 0x4000000
NM = 32
CLK = "s_memrealtime"
CNT = False
TAILK = False
loops = []
def stamp(k): return [f"    {CLK} s[94:95]", "    s_waitcnt lgkmcnt(0)", f"    v_writelane_b32 v255, s94, {k}", "    s_nop 0"]
def instrument(text, blocker=True):
    lines = text.split("\n")
    out = []; kidx = -1; names = []; curl = None; loops.clear()
    for l in lines:
        m = re.match(r"^(\w+_kernel):", l)
        if m:
            kidx += 1; names.append(m.group(1))
            out.append(l)
            out.append(f"    {CLK} s[92:93]")
            out.append("    s_load_dwordx2 s[96:97], s[0:1], 128")
            out.append("    v_readfirstlane_b32 s98, v0")
            out.append("    v_mov_b32 v255, 0")
            continue
        m = re.match(r"^\s*;\s*MARK\s+(\d+)", l)
        if m:
            out += stamp(2 + int(m.group(1))); continue
        m = re.match(r"^(\w+)_l:", l)
        if m: curl = re.sub(r"^([PQ])\d+$", r"\1", m.group(1))
        if CNT and l.strip().startswith("s_sleep") and curl:
            if curl not in loops: loops.append(curl)
            k = 2 + loops.index(curl)
            out += [f"    v_readlane_b32 s94, v255, {k}", "    s_nop 3", "    s_add_u32 s94, s94, 1", f"    v_writelane_b32 v255, s94, {k}"]
            curl = None
        if l.strip() == "s_endpgm" and kidx >= 0:
            out += ["    s_waitcnt vmcnt(0) lgkmcnt(0)"] + stamp(1) + f"""    v_writelane_b32 v255, s92, 0
    s_lshr_b32 s98, s98, 6
    s_lshl_b32 s99, s2, 4
    s_add_u32 s99, s99, s98
    s_lshl_b32 s99, s99, 7
    s_add_u32 s99, s99, {STAMP_OFF + kidx * 0x100000}
    s_add_u32 s96, s96, s99
    s_addc_u32 s97, s97, 0
    s_mov_b64 exec, -1
    v_mbcnt_lo_u32_b32 v0, -1, 0
    v_lshlrev_b32 v0, 2, v0
    s_mov_b64 exec, 0xffffffff
    global_store_dword v0, v255, s[96:97]
    s_endpgm""".split("\n")
            continue
        l = re.sub(r"(\.amdhsa_next_free_vgpr)\s+(\d+)", lambda m: f"{m.group(1)} {max(256, int(m.group(2)))}", l)
        l = re.sub(r"(\.amdhsa_accum_offset)\s+(\d+)", r"\1 256", l)
        out.append(l)
    t = "\n".join(out)
    m = re.search(r"; @launch grid=", t)
    if m:
        t = t.replace("; @launch grid=", f"; @launch kernel={names[0]} grid=")
    if blocker:
        first = t.index("; @launch")
        t = t[:first] + "; @launch kernel=blk_kernel grid=(1,1,1) block=(64,1,1) lds=0\n" + t[first:]
        code = """.text
.globl blk_kernel
.p2align 8
.type blk_kernel,@function
blk_kernel:
    s_mov_b32 s4, 3000
L_blk:
    s_sleep 2
    s_sub_u32 s4, s4, 1
    s_cmp_lg_u32 s4, 0
    s_cbranch_scc1 L_blk
    s_endpgm
.fill 4096, 4, 0xbf800000
"""
        i = t.index(".text")
        t = t[:i] + code + t[i:]
        t += """.p2align 6
.amdhsa_kernel blk_kernel
  .amdhsa_next_free_vgpr 8
  .amdhsa_next_free_sgpr 16
  .amdhsa_accum_offset 8
  .amdhsa_user_sgpr_count 2
  .amdhsa_user_sgpr_kernarg_segment_ptr 1
  .amdhsa_system_sgpr_workgroup_id_x 1
.end_amdhsa_kernel
"""
    if TAILK:
        ls = t.split("\n"); last = max(i for i, l in enumerate(ls) if l.startswith("; @launch"))
        ls.insert(last + 1, "; @launch kernel=tl_kernel grid=(1,1,1) block=(64,1,1) lds=0")
        t = "\n".join(ls)
        code = f""".text
.globl tl_kernel
.p2align 8
.type tl_kernel,@function
tl_kernel:
    s_memrealtime s[8:9]
    s_load_dwordx2 s[4:5], s[0:1], 128
    s_waitcnt lgkmcnt(0)
    v_mov_b32 v1, {STAMP_OFF - 64}
    v_mov_b32 v2, s8
    global_store_dword v1, v2, s[4:5]
    s_endpgm
"""
        i = t.index(".text")
        t = t[:i] + code + t[i:]
        t += """.p2align 6
.amdhsa_kernel tl_kernel
  .amdhsa_next_free_vgpr 8
  .amdhsa_next_free_sgpr 16
  .amdhsa_accum_offset 8
  .amdhsa_user_sgpr_count 2
  .amdhsa_user_sgpr_kernarg_segment_ptr 1
  .amdhsa_system_sgpr_workgroup_id_x 1
.end_amdhsa_kernel
"""
    return t, names
```

```python
import sys, math, struct, re
from asmgen import Asm
import hazard, align
NAME = "sequential_preLN__ssm_conv_s4__mixer_gmlp__prompt"
O = dict(kgmarks=0, burst=12, hsleep=7, x0=2, hdelay=0, xt=0, xp=1, g1marks=0, g2marks=0, cvmarks=0, npre=3, xs_at=2, ct=1, wpre=0, ctpos=0, k00=12, wend=16,
         lead=6, l2_ld=18, nz=9, l3_at=9, l3_chk=14, nT=0, nS=15, nT2=2, pa=9, pb_ld=6, pb_chk=3, oC2=8, xw=16, xl=9, xsp=2, xfp=2, xfs=1, xfw=0, lat=1, rep=1, gate=1, s2sleep=1, f2s=4, r3=1, f4s=4, r4=0, f3s=4, tfirst=0, p1u=0, s1p=1, s1c=1, xat=0b101010101010, dm=5, dl=14, ue=3, rot=1, ab=0, ksplit=0, hrot=0, xs_ld=3, nwe=8, s4d=1, s4s=1, s3s=1, pf=0, g3m=1, bar2=0, nW=12, ctl=6, c0=6, tl=4, hpre=3, lw1=0, lw2=0, hs0=0, early=1, lt=1, pg=0, tw=0, al=2, rda=13, lm=99, vb=6, skip=0, e0=22, wu=3, po=0, inl=0, q0=6, wlo=0, whi=28)

WS_H, WS_WIN, WS_WOUT, WS_CS, WS_ST1 = 0x0, 0x280000, 0x460000, 0x550000, 0x558000
WS_FL = 0x560000
FL_L3X, FL_L2X, FL_F2, FL_F4, FL_F3, FL_F2P, FL_F1B = [WS_FL + x for x in (0, 0x40000, 0x50000, 0x60000, 0x52000, 0x56000, 0x5C000)]
FL_F2R = WS_FL + 0x6C000
FL_F3 = WS_FL + 0x52000
FL_F1B = WS_FL + 0x50000
FL_F4 = WS_FL + 0x5C000
WS_Z2, WS_P, WS_X = 0x600000, 0x900000, 0xC00000
WS_SIZE = 0xF00000
LOG2E = 1.4426950408889634
def f2u(x): return "0x%08x" % struct.unpack("<I", struct.pack("<f", x))[0]
def vr(b, n): return f"v[{b}:{b+n-1}]" if n > 1 else f"v{b}"
def ar(b, n): return f"a[{b}:{b+n-1}]"
def L(s): return ["    " + x.strip() for x in s.strip().split("\n") if x.strip()]
def emit(a, xs):
    for x in xs: a(x)
def srd(r, lo, size):
    return L(f"s_mov_b32 s{r}, s{lo}\ns_and_b32 s{r+1}, s{lo+1}, 0xffff\ns_mov_b32 s{r+2}, {hex(size)}\ns_mov_b32 s{r+3}, 0x20000")
def cmul(d, x, y):
    return [f"    v_pk_mul_f32 {vr(d,2)}, {vr(x,2)}, {vr(y,2)} op_sel:[0,0] op_sel_hi:[0,1]",
            f"    v_pk_fma_f32 {vr(d,2)}, {vr(x,2)}, {vr(y,2)}, {vr(d,2)} op_sel:[1,1,0] op_sel_hi:[1,0,1] neg_lo:[0,1,0]"]
def rbf(d, s): return [f"    v_cvt_pk_bf16_f32 v{d}, v{s}, v{s}", f"    v_lshlrev_b32 v{d}, 16, v{d}"]
def ln_scalars(vs, vq, n, vm, vrs, t):
    return (L(f"v_mul_f32 v{vm}, {f2u(1.0/n)}, v{vs}\nv_mul_f32 v{t}, {f2u(1.0/n)}, v{vq}\nv_fma_f32 v{t}, -v{vm}, v{vm}, v{t}\nv_max_f32 v{t}, 0, v{t}")
            + rbf(t, t) + L(f"v_add_f32 v{t}, {f2u(1e-5)}, v{t}") + rbf(t, t) + L(f"v_sqrt_f32 v{t}, v{t}") + rbf(vm, vm) + rbf(t, t)
            + L(f"v_rcp_f32 v{vrs}, v{t}\ns_nop 0\nv_mul_f32 v{vm}, v{vm}, v{vrs}"))
def allreduce_g(v, t):
    return L(f"v_mov_b32 v{t}, v{v}\nv_permlane16_swap_b32 v{v}, v{t}\nv_add_f32 v{v}, v{v}, v{t}\nv_mov_b32 v{t}, v{v}\nv_permlane32_swap_b32 v{v}, v{t}\nv_add_f32 v{v}, v{v}, v{t}")
def row_scalars(X, n, t):
    return (L(f"""v_permlane16_swap_b32 v{X}, v{X+2}
v_permlane16_swap_b32 v{X+1}, v{X+3}
v_add_f32 v{X}, v{X}, v{X+2}
v_add_f32 v{X+1}, v{X+1}, v{X+3}
v_mov_b32 v{X+2}, v{X}
v_mov_b32 v{X+3}, v{X+1}
s_nop 0
v_permlane32_swap_b32 v{X}, v{X+2}
v_permlane32_swap_b32 v{X+1}, v{X+3}
v_add_f32 v{X}, v{X}, v{X+2}
v_add_f32 v{X+1}, v{X+1}, v{X+3}""") + ln_scalars(X, X + 1, n, t + 1, t, X + 2))
def gelu_block(a, regs, T, KK, hook=lambda: None):
    ts = [T + 2 * n for n in range(len(regs))]
    for x, t in zip(regs, ts): a(f"    v_pk_mul_f32 {vr(t,2)}, {vr(x,2)}, {vr(x,2)}")
    for x, t in zip(regs, ts): a(f"    v_pk_fma_f32 {vr(t,2)}, {vr(t,2)}, {vr(KK,2)}, {vr(KK,2)} op_sel:[0,1,0] op_sel_hi:[1,1,0]")
    for x, t in zip(regs, ts): a(f"    v_pk_mul_f32 {vr(t,2)}, {vr(t,2)}, {vr(x,2)}")
    hook()
    for x, t in zip(regs, ts): a(f"    v_exp_f32 v{t}, v{t}\n    v_exp_f32 v{t+1}, v{t+1}")
    hook()
    for x, t in zip(regs, ts): a(f"    v_pk_add_f32 {vr(t,2)}, {vr(t,2)}, 1.0 op_sel_hi:[1,0]")
    for x, t in zip(regs, ts): a(f"    v_rcp_f32 v{t}, v{t}\n    v_rcp_f32 v{t+1}, v{t+1}")
    hook()
    for x, t in zip(regs, ts): a(f"    v_pk_mul_f32 {vr(x,2)}, {vr(x,2)}, {vr(t,2)}")

TAILS = []
def recheck(name, loads, check, sleep=1, post=()):
    TAILS.append([f"{name}_r:", "    s_movk_i32 s35, 0x7fff", f"{name}_l:", f"    s_sleep {sleep}"] + loads + ["    s_waitcnt vmcnt(0)"] + check +
                 L(f"s_cbranch_vccz {name}_x\ns_sub_u32 s35, s35, 1\ns_cbranch_scc0 {name}_l") + [f"{name}_x:"] + list(post) + [f"    s_branch {name}_d"])
    return check + [f"    s_cbranch_vccnz {name}_r\n{name}_d:"]
def spin(a, name, loads, check, sleep=1, post=()):
    emit(a, loads + ["    s_waitcnt vmcnt(0)"] + recheck(name, loads, check, sleep, post))

class Cnt:
    def __init__(s, name, mx): s.name, s.mx, s.q = name, mx, []
    def issue(s, tag): s.q.append(tag)
    def need(s, *tags):
        idx = max((i for i, t in enumerate(s.q) if t in tags), default=-1)
        if idx < 0: return []
        n = min(len(s.q) - 1 - idx, s.mx)
        s.q = s.q[len(s.q) - n:] if n else []
        return [f"    s_waitcnt {s.name}({n})"]
class Sched:
    def __init__(s, a): s.a = a; s.vm = Cnt("vmcnt", 63); s.lg = Cnt("lgkmcnt", 15); s.q = []
    def cost(s, x):
        if isinstance(x, tuple):
            if x[0] == 'need': return 4 if any(t in x[2] for t in (s.vm if x[1] == 'vm' else s.lg).q) else 0
            x = x[0]
        m = x.split()[0]
        if m.startswith(hazard.TRANS) or m.startswith("v_permlane"): return 8
        if m.startswith("buffer_store_dwordx4"): return 24
        if m.startswith("global_") or (m.startswith("buffer_") and re.search(r"s\[\d+:\d+\], s\d", x)): return 8
        if m.startswith("ds_write_b128"): return 20
        if m.startswith("ds_write2"): return 12
        return 4
    def put(s, x):
        if isinstance(x, tuple) and x[0] == 'need':
            emit(s.a, (s.vm if x[1] == 'vm' else s.lg).need(*x[2])); return
        tag = None
        if isinstance(x, tuple): x, tag = x
        m = x.split()[0]
        if m.startswith("ds_"): s.lg.issue(tag)
        elif m.startswith(("buffer_", "global_")): s.vm.issue(tag)
        s.a(x)
    def now(s, xs):
        for x in xs: s.put(x)
    def gap(s, budget=8, forced=()):
        for x in forced:
            budget -= s.cost(x); s.put(x)
        first = not forced
        while s.q and (s.cost(s.q[0]) <= budget or first):
            budget -= s.cost(s.q[0]); s.put(s.q.pop(0)); first = False
    def flush(s):
        while s.q: s.put(s.q.pop(0))

RS = 272; TW = 64 * RS
YO = 8448
L_U = 4 * TW
L_W = L_U + 4 * 4608
L_R = 98304
L_Z = 73728
L_S = 159744
VW, VWR, WV = 8, 12, 94
def win_addr(half, s, t):
    n = 3 * s + t
    if half: return L_R + 1024 * n
    w, i = divmod(n, 15)
    return TW * w + 1024 * i if i < 8 else L_U + 4096 * w + 1024 * (i - 8) if i < 12 else TW * w + YO + 1024 * (i - 12)
def lds_op(addr, bases=(2, 3, 4)):
    return f"v{bases[addr >> 16]} offset:{addr & 0xffff}"
KREST = "    s_load_dwordx16 s[52:67], s[0:1], 64\n    s_load_dwordx2 s[68:69], s[0:1], 128"
def lanes():
    return L("""v_mov_b32 v1, v0
v_lshrrev_b32 v4, 6, v0
v_and_b32 v0, 63, v0
v_readfirstlane_b32 s20, v4
s_and_b32 s21, s2, 7
s_lshr_b32 s22, s2, 3""")
def stage_base(stride, base):
    return L(f"""s_mul_i32 s75, s20, {stride}
s_add_u32 s75, s75, {base}
v_lshrrev_b32 v{VWR}, 1, v5
v_xor_b32 v{VWR}, v{VWR}, v6
v_lshlrev_b32 v{VWR}, 4, v{VWR}
v_lshl_add_u32 v{VWR}, v5, 7, v{VWR}
v_add_u32 v{VWR}, s75, v{VWR}
v_xor_b32 v{VWR+1}, 64, v{VWR}""")
def idmap():
    lat = "s_lshr_b32 s83, s81, 1\ns_add_u32 s82, s82, s83\ns_and_b32 s82, s82, 3\n" if O['lat'] else ""
    g3 = """s_and_b32 s72, s81, 1
s_lshl_b32 s83, s70, 1
s_add_u32 s72, s72, s83
s_lshr_b32 s73, s81, 1
s_lshl_b32 s83, s79, 2
s_add_u32 s73, s73, s83""" if not O['g3m'] else """s_lshl_b32 s72, s70, 1
s_add_u32 s72, s72, s79
s_mov_b32 s73, s81"""
    return f"""s_lshr_b32 s80, s21, 1
s_and_b32 s79, s21, 1
s_and_b32 s81, s22, 7
s_lshr_b32 s82, s22, 3
{lat}s_lshl_b32 s70, s80, 2
s_add_u32 s70, s70, s82
s_lshl_b32 s71, s81, 1
s_add_u32 s71, s71, s79
{g3}
s_lshl_b32 s89, s80, 10
s_add_u32 s89, s89, s79
s_lshl_b32 s89, s89, 11"""
def common_ids(stride, base):
    return L(f"""v_lshlrev_b32 v2, 4, v0
v_and_b32 v5, 15, v0
v_lshrrev_b32 v6, 4, v0
{idmap()}
s_lshl_b32 s78, s70, 2
s_add_u32 s78, s78, s20
s_lshl_b32 s74, s78, 17
s_lshl_b32 s79, s79, 11
s_add_u32 s74, s74, s79
s_lshl_b32 s85, s78, 4
s_add_u32 s85, s85, s71
s_mul_i32 s86, s85, 3072
s_add_u32 s86, s86, {WS_X}
s_xor_b32 s87, s85, 1
s_mul_i32 s87, s87, 3072
s_add_u32 s87, s87, {WS_X}
v_lshrrev_b32 v{VW}, 3, v0
v_lshrrev_b32 v{VW+1}, 1, v{VW}
v_and_b32 v{VW+2}, 7, v0
v_xor_b32 v{VW+2}, v{VW+2}, v{VW+1}
v_lshlrev_b32 v{VW}, 13, v{VW}
v_lshl_add_u32 v{VW}, v{VW+2}, 4, v{VW}
v_add_u32 v{VW}, s74, v{VW}
v_xor_b32 v{VW+1}, 64, v{VW}
v_add_u32 v{VW+2}, 4096-2048, v{VW}
v_add_u32 v{VW+3}, 65536+4096-3072, v{VW+1}
v_add_u32 v{VW+1}, 65536-1024, v{VW+1}""") + stage_base(stride, base) + srd(8, 68, WS_SIZE) + srd(12, 58, 2048 * 4096)
def wdma(u, slot):
    pre = [f"    v_add_u32 v{VW+q}, 1024, v{VW+q}" for q in range(4)] if u == 8 else []
    return (pre + [f"    s_add_u32 m0, s75, {slot * 4096 - 128 * (u & 7)}"],
            [(f"    buffer_load_dwordx4 v{VW+q}, s[12:15], 0 offen offset:{1024*q + 128*(u&7)} lds", ('w', u)) for q in range(4)])
def wreg(u, k, par): return ar(16 * u + 8 * k + 4 * par, 4)
def wread(u, slot):
    return [('need', 'vm', [('w', u)])] + [(f"    ds_read_b128 {wreg(u,k,p)}, v{VWR+k} offset:{slot*4096+2048*p}", ('wr', u)) for k in range(2) for p in range(2)]
def xfill(r):
    return [f"    v_mov_b32 v{r+k}, -1" for k in range(4)], [f"    buffer_store_dwordx4 {vr(r,4)}, v2, s[8:11], s87 offen offset:{1024*n} sc1" for n in range(3)]
def f1b_addr(v, t):
    return L(f"v_and_b32 v{v}, 31, v0\nv_lshlrev_b32 v{v}, 4, v{v}\ns_mov_b32 s29, {FL_F1B + 64*16}")
def wo_addr(w, n): return 18432 * w + 1024 * n if n < 18 else L_Z + 12288 * (2 + (n - 18) // 3) + 3072 * w + 1024 * ((n - 18) % 3)
def wo_pieces(lo, hi, tag):
    R = []
    while lo < hi:
        m = min(hi, lo + 4, 18) if lo < 18 else lo + 3
        R += [f"    s_add_u32 m0, s75, {1024*lo}" if lo < 18 else f"    s_add_u32 m0, s27, {wo_addr(0, lo) - L_Z}", f"    v_add_u32 v10, {1024*lo}, v9"]
        R += [(f"    buffer_load_dwordx4 v10, s[8:11], 0 offen offset:{1024*q} sc1 lds", tag) for q in range(m - lo)]
        lo = m
    return R
def lin_dma(n, tag, sreg=27):
    return [(f"    buffer_load_dwordx4 v2, s[8:11], s{sreg} offen offset:{1024*q} sc1 lds", tag) for q in range(n)]
def win_early(S, mid=lambda: None, cut=8):
    S.now(L(f"""s_mul_i32 s27, s71, 122880
s_and_b32 s77, s22, {O['hrot']}
s_add_u32 s25, s20, s77
s_and_b32 s25, s25, 3
s_mul_i32 s25, s25, 15360
s_add_u32 s27, s27, s25
s_mul_i32 s25, s20, 15360
s_add_u32 s27, s27, {WS_WIN}
s_mul_i32 s26, s20, {TW}
s_mov_b32 m0, s26
s_lshl_b32 s24, s20, 12"""))
    if cut == 0: mid()
    S.now(lin_dma(4, 'we') + L("s_add_u32 m0, m0, 4096\ns_add_u32 s27, s27, 4096"))
    if cut == 4: mid()
    S.now(lin_dma(4, 'we'))
    if cut == 8: mid()
    S.now(L(f"s_add_u32 m0, s24, {L_U}\ns_add_u32 s27, s27, 4096") + lin_dma(4, 'we'))

def conv_role(a):
    P0, P2, DT, VPL, CUR = 16, 22, 28, 29, 30
    Z1, Z8, Z256, CB, T = 36, 38, 40, 42, 44
    CV, FR, KA, XR, ST, XF = 88, 100, 164, 180, 32, 212
    AD, VY, VYR, VU, VT, VP = 244, 249, 250, 251, 252, 3
    S = Sched(a)
    a(f"""L_conv:
    s_mul_i32 s23, s21, 20
    s_add_u32 s23, s23, s22            ; quad
    s_lshl_b32 s24, s23, 2
    s_add_u32 s24, s24, s20            ; channel
    s_mul_i32 s25, s24, 384
    v_lshl_add_u32 v7, v0, 1, s25
    v_lshl_add_u32 v14, v0, 2, s25
    s_lshl_b32 s25, s24, 1
    v_mov_b32 v15, s25
    v_mov_b32 v{DT}, 0""")
    for k in range(6): a(f"    v_mov_b32 v{P2+k}, 0")
    a(f"""    s_lshl_b32 s25, s23, 3
    v_mul_u32_u24 v208, 2560, v1
    v_add_u32 v208, s25, v208
    s_and_b32 s4, s22, {3 if O['rot'] else 0}
    s_xor_b32 s5, s4, 1
    s_xor_b32 s6, s4, 2
    s_xor_b32 s7, s4, 3
    s_mul_i32 s16, s4, {512*1280}
    s_mul_i32 s17, s5, {512*1280}
    s_mul_i32 s18, s6, {512*1280}
    s_mul_i32 s19, s7, {512*1280}
    v_add_u32 v4, s16, v208
    s_waitcnt lgkmcnt(0)""")
    a("    s_load_dwordx2 s[30:31], s[52:53], s25")
    S.put((f"    global_load_short_d16_hi v{DT}, v15, s[50:51]", 'p2'))
    for k in range(6): S.put((f"    global_load_short_d16_hi v{P2+k}, v7, s[{38+2*k}:{39+2*k}] offset:256", 'p2' if (k < 2 or not O['early']) else 'p2b'))
    for k in range(6): S.put((f"    global_load_dword v{P0+k}, v14, s[{38+2*k}:{39+2*k}]", 'p0'))
    if O['xt']:
        a("""    s_mul_i32 s26, s22, 103
    v_lshrrev_b32 v48, 1, v1
    v_add_u32 v48, s26, v48
    v_min_u32 v48, 2047, v48
    v_mul_u32_u24 v48, 1280, v48
    v_and_b32 v49, 1, v1
    v_mul_u32_u24 v49, 156, v49
    s_mul_i32 s26, s21, 160
    v_add3_u32 v48, v48, v49, s26""")
    a("    s_barrier")
    if O['xt']: S.put("    global_load_dword v253, v48, s[36:37]")
    xq = []
    for j in range(4):
        xq += [(f"    global_load_dwordx2 {vr(XR+4*j,2)}, v4, s[36:37]", ('x', j)), (f"    global_load_dwordx2 {vr(XR+4*j+2,2)}, v4, s[36:37] offset:1280", ('x', j)),
               f"    v_add_u32 v4, s{17+j}, v208" if j < 3 else "    v_lshlrev_b32 v4, 4, v1"]
    def xnext(n):
        for _ in range(n):
            if xq:
                x = xq.pop(0)
                if not O['ab'] & 1: S.put(x)
            if xq and isinstance(xq[0], str): S.put(xq.pop(0))
    xnext(min(1, O['x0']))
    ci = common_ids(16384, L_W)
    emit(a, ci[:-8])
    a(f"""    s_mul_i32 s26, s20, {TW}
    s_mov_b32 m0, s26
    v_and_b32 v7, 31, v0
    v_mul_u32_u24 v7, {RS}, v7
    v_lshrrev_b32 v14, 5, v0
    v_lshl_add_u32 v7, v14, 4, v7
    v_add_u32 v7, s26, v7
    v_mov_b32 v48, 0x3f80
    v_mov_b32 v50, 0
    v_mov_b32 v51, 0
    s_mul_i32 s27, s20, 4608
    s_add_u32 s27, s27, {L_U}
    v_lshl_add_u32 v52, v0, 3, s27
    ds_write_addtid_b32 v48 offset:{32*RS}
    ds_write_b64 v52, v[50:51]
    v_add_u32 v14, 1, v5
    v_lshrrev_b32 v14, 1, v14
    v_lshlrev_b32 v14, 2, v14
    v_lshl_add_u32 v14, v6, 4, v14
    v_and_b32 v15, 1, v5
    v_mul_u32_u24 v15, 4160, v15
    v_add_u32 v14, v14, v15
    s_add_u32 s28, s26, {4160 + 4112 - 512 - 448}
    v_sub_u32 v{AD}, s28, v14
    v_subrev_u32 v{AD+1}, 1024, v{AD}
    v_subrev_u32 v{AD+2}, 2048, v{AD}
    v_lshlrev_b32 v14, 2, v5
    v_lshlrev_b32 v15, 4, v6
    v_sub_u32 v14, v15, v14
    s_add_u32 s28, s26, 60
    v_add_u32 v{AD+3}, s28, v14
    v_lshlrev_b32 v14, 5, v5
    v_lshlrev_b32 v15, 4, v6
    v_sub_u32 v14, v14, v15
    s_add_u32 s28, s27, {512 + 16 - 448}
    v_add_u32 v{AD+4}, s28, v14
    v_lshlrev_b32 v{VU}, 2, v1
    v_add_u32 v{VU}, {L_U + 512}, v{VU}
    v_bfe_u32 v14, v5, 1, 2
    v_xor_b32 v14, v14, v6
    v_lshlrev_b32 v14, 4, v14
    v_lshl_add_u32 v14, v5, 6, v14
    s_add_u32 s28, s26, {YO}
    v_add_u32 v{VY}, s28, v14
    v_bfe_u32 v14, v1, 4, 2
    v_lshlrev_b32 v14, 4, v14
    v_lshlrev_b32 v15, 3, v1
    v_xor_b32 v14, v14, v15
    v_add_u32 v{VYR}, {YO}, v14
    s_add_u32 s28, s26, 1008
    v_sub_u32 v{VT}, s28, v2
    v_and_b32 v{VP}, 3, v0
    v_lshlrev_b32 v{VP}, 6, v{VP}
    v_mov_b32 v{VPL}, 16
    s_mul_i32 s28, s22, {(512 * O['ctl'] + 19) // 20}
    v_min_u32 v14, {(512 * O['ctl'] + 19) // 20 - 1}, v1
    v_add_u32 v14, s28, v14
    v_mul_u32_u24 v15, {(65536 + O['ctl'] - 1) // O['ctl']}, v14
    v_lshrrev_b32 v15, 16, v15
    v_mul_u32_u24 v15, {4096 - O['ctl']*128}, v15
    v_lshl_add_u32 v254, v14, 7, v15
    s_add_u32 s34, s89, {O['c0']*128}""")
    a("    v_lshl_add_u32 v54, v6, 3, v5\n    s_mov_b32 s28, 0x10001")
    for n, (top, pat) in enumerate(((42, 0x1ff << 22), (43, 0x7f << 24))):
        a(f"    v_sub_u32 v55, {top}, v54\n    v_min_u32 v55, 31, v55\n    v_mov_b32 v56, {hex(pat)}\n    v_lshrrev_b32 v55, v55, v56")
        for k in range(4):
            a(f"""    v_bfe_u32 v56, v55, {2*k}, 2
    v_lshl_or_b32 v56, v56, 15, v56
    v_and_b32 v56, s28, v56
    v_mul_u32_u24 v56, 0x3f80, v56
    v_accvgpr_write_b32 a{248+4*n+k}, v56""")
    assert O['nW'] < 16
    emit(a, f1b_addr(15, 14))
    xnext(O['x0'] - 1)
    emit(a, ci[-8:])
    a("    ;WARM0\n    s_branch L_base\n    ;ALIGN\nL_base:")
    S.put(('need', 'vm', ['p2']))
    a(f"    ; MARK 0\n    v_mul_f32 v{DT}, {f2u(LOG2E)}, v{DT}\n    v_exp_f32 v{DT}, v{DT}")
    emit(a, rbf(DT, DT))
    def setup(c):
        R = []
        if c == 0: p = [P2 + k for k in range(6)]
        else:
            p = [CUR + k for k in range(6)]
            for k in range(6): R.append(f"    v_lshlrev_b32 v{CUR+k}, 16, v{P0+k}" if c == 1 else f"    v_and_b32 v{CUR+k}, 0xffff0000, v{P0+k}")
        R += L(f"v_mul_f32 v{T}, v{DT}, v{p[0]}\nv_mul_f32 v{T+1}, v{DT}, v{p[1]}\nv_mul_f32 v{T}, {f2u(LOG2E)}, v{T}\nv_mul_f32 v{T+1}, 0.15915494, v{T+1}")
        ex = L(f"""v_mul_f32 v{CB}, v{p[2]}, v{p[4]}
v_mul_f32 v{CB+1}, v{p[2]}, v{p[5]}
v_fma_f32 v{CB}, -v{p[3]}, v{p[5]}, v{CB}
v_fma_f32 v{CB+1}, v{p[3]}, v{p[4]}, v{CB+1}
v_mul_f32 v{CB}, v{CB}, v{DT}
v_mul_f32 v{CB+1}, v{CB+1}, v{DT}""")
        for z, e in ((Z8, 8), (Z1, 1), (Z256, 256)):
            if e == 1: R += L(f"v_fract_f32 v{T+3}, v{T+1}\nv_exp_f32 v{T+2}, v{T}")
            else: R += L(f"v_mul_f32 v{T+3}, {f2u(float(e))}, v{T+1}\nv_mul_f32 v{T+2}, {f2u(float(e))}, v{T}\nv_fract_f32 v{T+3}, v{T+3}\nv_exp_f32 v{T+2}, v{T+2}")
            R += L(f"v_cos_f32 v{z}, v{T+3}\nv_sin_f32 v{z+1}, v{T+3}") + [ex.pop(0), ex.pop(0)] + L(f"v_mul_f32 v{z}, v{z}, v{T+2}\nv_mul_f32 v{z+1}, v{z+1}, v{T+2}")
        return R
    row = lambda rho, h: 8 * (rho >> 2) + 4 * h + (rho & 3)
    grp = []; nfl = [0]; mq = []
    def mfma(c, kk):
        S.put(('need', 'lg', [('a', kk)]))
        a(f"    v_mfma_f32_32x32x16_bf16 {vr(KA,16)}, {vr(FR+8*kk,4)}, {vr(FR+8*kk+4,4)}, {vr(KA,16) if (c or kk) else '0'}")
    def flushw():
        S.q = [f"    v_cvt_pk_bf16_f32 v{CV+n}, v{reg}, {'-' if neg else ''}v{reg+1}" for n, (reg, rows, neg) in enumerate(grp)]
        S.q += [f"    ds_write_addtid_b32 v{CV+n} offset:{r*RS}" for n, (reg, rows, neg) in enumerate(grp) for r in rows]
        grp.clear()
        if O['ab'] & 2: S.q = [x if 'cvt' in x else '    v_mov_b32_e64 v99, v99' for x in S.q]
        while mq and len(S.q) >= 9: mfma(*mq.pop(0)); S.gap(24)
        S.flush()
        if O['xat'] >> nfl[0] & 1: xnext(1)
        nfl[0] += 1
    def chainB():
        grp.append((Z8, [33], False)); prev = Z8
        for j in range(2, 32):
            d = 48 + 2 * (j % 12); emit(a, cmul(d, prev, Z8)); grp.append((d, [32 + j], False)); prev = d
            if j % 10 == 1: flushw()
        assert not mq
    def chainA():
        grp.append((CB, [row(0, 0)], True)); X = {0: CB}; nd = [48]
        def mul(e, src, z, rows):
            X[e] = nd[0]; nd[0] += 2
            emit(a, cmul(X[e], X[src], z)); grp.append((X[e], rows, True))
        for k in range(1, 8): mul(k, k - 1, Z1, [row(k, 0)])
        pat = [0, 0, 2, 4, 4, 4, 6]
        for off in (0, 2, 4, 6):
            mul(256 + off, off, Z256, [row(r, 1) for r in range(7) if pat[r] == off])
            if off == 2: flushw()
        for blk in (2, 3):
            for n, off in enumerate((0, 4)): mul(256 * blk + off, 256 * (blk - 1) + off, Z256, [row(8 + n, blk & 1)])
        for blk in range(4, 9): mul(256 * blk, 256 * (blk - 1), Z256, [row(8 + blk // 2, blk & 1)])
        flushw()
    s0 = setup(0); cb0 = [x for x in s0 if O['early'] and re.match(rf'\s+v_\w+ v({CB}|{CB+1}),', x)]
    emit(a, [x for x in s0 if x not in cb0])
    poll1 = f"    global_load_dword v{VPL}, v{VP}, s[66:67] sc1"
    def unpack(j):
        R = [('need', 'vm', [('x', j)])]
        for par in range(2):
            for h in range(2):
                r = XR + 4 * j + 2 * par + h
                R += [f"    v_lshlrev_b32 v{XF+8*j+4*h+par}, 16, v{r}", f"    v_and_b32 v{XF+8*j+4*h+2+par}, 0xffff0000, v{r}"]
        return R
    after = [0]
    def s1poll():
        after[0] = sum(isinstance(x, tuple) for x in xq)
        a(f"    s_cmp_lg_u32 s20, 0\n    s_cbranch_scc1 L_np1\n{poll1}\nL_np1:")
    def s1check():
        assert not xq
        a(f"    s_cmp_lg_u32 s20, 0\n    s_cbranch_scc1 S1_d\n    s_waitcnt vmcnt({after[0]})")
        emit(a, recheck("S1", [poll1], [f"    v_cmp_gt_u32 vcc, 16, v{VPL}"]))
        a("    s_barrier\n    ; MARK 1")
        S.now([(f"    buffer_load_dwordx4 {vr(ST+4*j,4)}, v86, s[8:11], s{16+j} offen sc1", ('st', j)) for j in range(4)])
    for c in range(3):
        chainB()
        S.now([(f"    ds_read_b128 {vr(FR+8*kk+4,4)}, v7 offset:{32*kk+32*RS}", ('b', kk)) for kk in range(8)])
        if c == 2 and O['s1p'] == 0: s1poll()
        if c == 0: S.now([('need', 'vm', ['p2b'])] + cb0)
        chainA()
        S.now([(f"    ds_read_b128 {vr(FR+8*kk,4)}, v7 offset:{32*kk}", ('a', kk)) for kk in range(8)])
        if O['kgmarks']: a(f"    ; MARK {25 + c}")
        if c == 0: S.put(('need', 'vm', ['p0']))
        if c < 2:
            S.q = setup(c + 1); S.gap(4 * O['dl'])
            for kk in range(O['dm']): mfma(c, kk); S.gap(24)
            S.flush()
            mq.extend((c, kk) for kk in range(O['dm'], 8))
        if O['kgmarks'] and c < 2: a(f"    ; MARK {28 + c}")
    assert not xq
    if O['s1p'] == 1: s1poll()
    S.now(L(f"""s_lshl_b32 s16, s4, 12
s_lshl_b32 s17, s5, 12
s_lshl_b32 s18, s6, 12
s_lshl_b32 s19, s7, 12
v_add_u32 v86, {WS_ST1}, v4
v_lshl_add_u32 v84, v0, 2, s26
v_lshlrev_b32 v85, 1, v0
s_add_u32 s28, s26, 126
v_sub_u32 v85, s28, v85
v_mov_b32 v81, 0
v_mov_b32 v64, 0
v_mov_b32 v68, 0
v_mov_b32 v69, 0
v_cmp_eq_u32 s[24:25], 0, v0"""))
    if O['s1c'] == 0: s1check()
    S.q += [f"    v_lshl_add_u32 v{208+j}, s{4+j}, 10, v{VU}" for j in range(4)]
    for j in range(O['ue']): S.q += unpack(j)
    for kk in range(8): mfma(2, kk); S.gap(24)
    S.flush()
    if O['s1c'] == 1: s1check()
    a("    ; MARK 2")
    V = lambda r: KA + r
    N = [90, 91, 92, 93]; first = [V(0), V(8), V(10), V(11), V(12)]
    for G in range(4): a(f"    v_mov_b32_dpp v{N[G]}, v{first[G+1]} wave_rol:1 row_mask:0xf bank_mask:0xf")
    for G in range(4): a(f"    v_mov_b32_dpp v{N[G]}, v{first[G]} wave_shl:1 row_mask:0xf bank_mask:0xf")
    a(f"""    v_cvt_pk_bf16_f32 v80, v{V(0)}, v81
    v_mov_b32_dpp v{V(7)}, v{N[0]} quad_perm:[0,1,2,3] row_mask:0xc bank_mask:0xf
    v_cvt_pk_bf16_f32 v66, v{V(10)}, v{V(10)}
    v_cvt_pk_bf16_f32 v82, v{N[3]}, v{N[2]}
    v_cndmask_b32 v80, v81, v80, s[24:25]
    v_cndmask_b32 v66, v81, v66, s[24:25]
    v_and_b32 v65, 0xffff0000, v66
    v_mov_b32 v67, v66
    v_mov_b32 v70, v66
    v_mov_b32 v71, v66""")
    S.now(["    ds_write_b16 v85, v82", "    ds_write_b16_d16_hi v85, v82 offset:128", "    s_mov_b64 exec, 0xffff",
           "    ds_write_b32 v84, v81 offset:256", "    ds_write_b32 v84, v81 offset:4096", f"    ds_write_b32 v84, v80 offset:{4160+4096}",
           f"    ds_write_b128 v{VT}, v[64:67] offset:1024", f"    ds_write_b128 v{VT}, v[68:71] offset:{4160+1024}", "    s_mov_b64 exec, -1"])
    touch = ["    buffer_load_dword v253, v254, s[12:15], s34 offen"] * O['ct']
    if O['s1c'] < 2 and O['ctpos'] == 0: S.now(touch)
    emap = [[V(k) for k in range(8)] + [N[0]], [V(8)] * 3 + [V(9)] * 3 + [N[1]] * 3]
    tw = []
    for G in range(2):
        e = emap[G]; o = 48 + 8 * G
        for k in range(4): a(f"    v_cvt_pk_bf16_f32 v{o+k}, v{e[7-2*k]}, v{e[6-2*k]}")
        for k in range(4): a(f"    v_cvt_pk_bf16_f32 v{o+4+k}, v{e[8-2*k]}, v{e[7-2*k]}")
        tw += [f"    ds_write_b128 v{VT}, {vr(o,4)} offset:{3072-1024*G}", f"    ds_write_b128 v{VT}, {vr(o+4,4)} offset:{4160+3072-1024*G}"]
        S.put(tw.pop(0))
        if O['s1c'] < 2 and O['ctpos'] == G + 1: S.now(touch)
    if O['s1c'] == 2: s1check()
    for j in range(O['ue'], 4): S.now(unpack(j) + tw[:1]); tw = tw[1:]
    if O['s1c'] == 2: S.now(touch)
    S.now(tw)
    ACC, SET, UF = 16, [48, 112], 176
    def rdA(r):
        R = []
        for p in range(4 if r else 5):
            o = (128 if p % 2 == 0 else 0) + 16 * (7 - r); d = SET[r & 1] + 4 * p
            R += [(f"    ds_read2_b32 {vr(d,2)}, v{AD+p//2} offset0:{o} offset1:{o+1}", ('A', r, p)),
                  (f"    ds_read2_b32 {vr(d+2,2)}, v{AD+p//2} offset0:{o+2} offset1:{o+3}", ('A', r, p))]
        return R
    def rdB(r): return [(f"    ds_read_b128 {vr(SET[r&1]+32+4*q,4)}, v{AD+4} offset:{512*q+64*(7-r)}", ('B', r, q)) for q in range(8)]
    S.now(rdA(0))
    a("    ; MARK 3")
    for j in range(4):
        S.put(('need', 'vm', [('st', j)]))
        for c in range(4):
            a(f"    v_pk_fma_f32 {vr(UF+8*j+2*c,2)}, {vr(XF+8*j+2*c,2)}, {vr(ST+4*j,2)}, {vr(ST+4*j+2,2)} neg_lo:[0,0,1] neg_hi:[0,0,1]")
        for c in range(4): a(f"    v_cvt_pk_bf16_f32 v{144+4*j+c}, v{UF+8*j+2*c}, v{UF+8*j+2*c+1}")
        if j & 1:
            for jj in (j - 1, j):
                for c in (0, 2): S.put((f"    ds_write2st64_b32 v{208+jj}, v{144+4*jj+c}, v{144+4*jj+c+1} offset0:{18*c} offset1:{18*c+18}", 'uw'))
    if O['ctpos'] == 5: S.now(touch)
    a("""    s_waitcnt lgkmcnt(0)
    s_barrier
    ; MARK 4
    s_and_b32 s33, s31, 0xffff0000
    s_lshl_b32 s32, s31, 16
    s_and_b32 s31, s30, 0xffff0000
    s_lshl_b32 s30, s30, 16""".replace("    ; MARK 4\n", "    ; MARK 4\n" + "\n".join(x[0] for x in rdB(0)) + "\n"))
    S.lg.q = [x[1] for x in rdB(0)]
    basef = [f"    v_fmac_f32 v{XF+r}, s{30+((r>>1)&3)}, v{UF+r}" for r in range(32)]
    basef += [f"    v_lshl_add_u32 v{208+j}, s{4+j}, 11, v{VYR}" for j in range(4)] + [f"    v_lshl_add_u32 v4, s23, 14, v4"]
    poll1b = f"    buffer_load_dword v14, v15, s[8:11], s29 offen sc1"
    NP = O['wpre']; ev = {}
    def at(k, xs): ev.setdefault(k, []).extend(xs)
    NG = 230
    span = (NG - O['wend'] - O['k00'] + 14) // (O['nW'] - NP)
    for u in range(NP, O['nW']):
        k0 = O['k00'] + span * (u - NP)
        pre, d = wdma(u, u & 3)
        if u >= 4:
            w = wread(u - 4, u & 3)
            at(k0 - O['rda'], w[:1])
            for q, o in enumerate((1, 2, 5, 6)): at(k0 - O['rda'] + o, w[1+q:2+q])
            at(k0 - 1, [('need', 'lg', [('wr', u - 4)])])
        at(k0 - 3, pre[:-3]); at(k0 - 2, pre[-3:])
        for q in range(4): at(k0 + (q * (span - 4)) // 3, d[q:q+1])
    late = []
    for n, u in enumerate(range(O['nW'] - 4, O['nW'])):
        w = wread(u, u & 3); k0 = max(NG - 31 + 7 * n, O['k00'] + span * (u - NP + 1) + O['lm'])
        if k0 + 5 > NG: late += w; continue
        at(k0, w[:1])
        for q in range(4): at(k0 + 1 + q, w[1+q:2+q])
    assert max(ev) < NG and min(ev) >= 0
    UW, DW, AH, VF = 128, 136, 176, 192
    kk = 0; seen = set()
    for r in range(8):
        st = r & 1
        M = []
        for q in range(8):
            for p in range(min(4 if r else 5, 8 - q)):
                nd = [('A', r, p), ('B', r, q)] if r == 0 else [('A', r, 3), ('B', r, 1)] if (p, q) == (0, 0) else [('B', r, 7)] if (p, q) == (0, 2) else []
                c = vr(ACC + 4 * (p + q), 4)
                M.append((nd, f"{c}, {vr(SET[st]+4*p,4)}, {vr(SET[st]+32+4*q,4)}, {c if p + q in seen else '0'}",
                          [f"    ds_write_b128 v{VY}, {vr(ACC+4*(q-1),4)} offset:{1024*(q-1)}"] if (r == 7 and p == 1 and q >= 1) else []))
                seen.add(p + q)
        pre = []
        if 2 <= r <= 5:
            pre = [(f"    ds_read_b128 {vr(UW+4*n,4)}, v{AD+4} offset:{512*(r-2)+448-16*(1-n)}", ('U', r)) for n in range(2)]
            M += [([('U', r)], f"{vr(DW+4*n,4)}, {vr(UW+4*n,4)}, {ar(248+4*n,4)}, 0", []) for n in range(2)]
        if r == O['vb']:
            for d in range(4):
                o = 16 * (3 - d)
                pre += [(f"    ds_read2_b32 {vr(VF+4*d+2*h,2)}, v{AD+3} offset0:{o+2*h} offset1:{o+2*h+1}", 'V') for h in range(2)]
        if r == 6:
            for sh in range(4):
                for d in range(4 - sh):
                    c = vr(ACC + 4 * (4 + sh + d), 4)
                    M.append((['V'], f"{c}, {vr(AH+4*sh,4)}, {vr(VF+4*d,4)}, {c}", []))
        if 3 <= r <= 6:
            assert not basef
            basef = [None] * 4 + [f"    v_cvt_pk_bf16_f32 v{AH+4*(r-3)+k}, v{DW+k}, v{DW+4+k}" for k in range(4)]
        S.q += (pre + rdA(7) + rdB(7) if r == 6 else rdA(r + 1)[4 if O['ab'] & 16 else 0:] + rdB(r + 1)[:2] + pre + rdB(r + 1)[2:] if r < 7 else [])
        if r == 6: S.q.insert(0, (poll1b, 'p1b'))
        for n, (nd, ops, post) in enumerate(M):
            S.put(('need', 'lg', nd))
            a("    v_mfma_f32_16x16x32_bf16 " + ops)
            S.now(post)
            e = ev.get(kk, [])
            if O['ab'] & 32: e = [x for x in e if not (isinstance(x, tuple) and x[0].endswith('lds'))]
            if O['ab'] & 64: e = [x for x in e if not (isinstance(x, tuple) and x[0].strip().startswith('ds_'))]
            nxtw = n + 1 == len(M) or bool(M[n + 1][0] and r)
            if basef and (basef[0] is None or (not e and not nxtw)):
                x = basef.pop(0)
                if x: e = [x]
            isds = any(isinstance(x, tuple) and x[0].split()[0].startswith("ds_") for x in e)
            left = len(M) - n - 4
            if kk < O['q0']: S.now(e)
            else: S.gap(4 if ((not e or isds) and len(S.q) < left - 2) else 8, e)
            kk += 1
        S.flush()
        if 3 <= r: assert not basef
        if O['cvmarks'] == 1 and r in (0, 1, 2, 3, 4): a(f"    ; MARK {25 + r}")
        if O['cvmarks'] == 2 and r in (4, 5, 6): a(f"    ; MARK {25 + r - 4}")
    assert kk == NG
    a("    ; MARK 5")
    S.put(('need', 'vm', ['p1b']))
    emit(a, recheck("S1b", [poll1b], ["    v_cmp_eq_u32 vcc, -1, v14"]))
    for J in range(6, 8): S.put(f"    ds_write_b128 v{VY}, {vr(ACC+4*J,4)} offset:{1024*J}")
    a("    s_waitcnt lgkmcnt(0)\n    s_barrier")
    S.lg.q = []
    for j in range(4):
        for c in range(4): S.put((f"    ds_read_b64 {vr(48+8*j+2*c,2)}, v{208+j} offset:{TW*c}", ('y', j)))
    for j in range(4):
        S.put(('need', 'lg', [('y', j)]))
        b = 48 + 8 * j
        for c in range(4): a(f"    v_pk_add_f32 {vr(b+2*c,2)}, {vr(b+2*c,2)}, {vr(XF+8*j+2*c,2)}")
        for par in range(2):
            for h in range(2): a(f"    v_cvt_pk_bf16_f32 v{80+4*j+2*par+h}, v{b+4*h+par}, v{b+4*h+2+par}")
        S.put((f"    buffer_store_dwordx4 {vr(80+4*j,4)}, v4, s[8:11], s{16+j} offen sc1", 'h'))
    a("    ; MARK 6")
    S.now(late)
    rest = []
    if O['nwe'] == 12: win_early(S)
    else:
        class Q:
            on = True
            def now(self, xs): (S.now if self.on else rest.extend)(xs)
        q = Q(); win_early(q, lambda: setattr(q, 'on', False), O['nwe'])
    a(f"""    s_lshl_b32 s28, s2, {O['f2s']}
    s_add_u32 s28, s28, {FL_F2R}
    s_lshl_b32 s29, s2, 7
    s_add_u32 s29, s29, {FL_F2P}
    v_mul_u32_u24 v14, 10240, v0
    v_add_u32 v14, s28, v14
    v_mov_b32 v15, 1
    v_writelane_b32 v14, s29, 8""")
    a("    ;WARM1")
    S.put(('need', 'vm', ['h']))
    a(f"""    s_waitcnt lgkmcnt(0)
    s_barrier
    ; MARK 7
    s_cmp_lg_u32 s20, 0
    s_cbranch_scc1 L_cf
    s_mov_b64 exec, {(0xff if O['rep'] else 1) + (0x100 if O['gate'] else 0)}
    buffer_store_dword v15, v14, s[8:11], 0 offen sc1
    s_mov_b64 exec, -1
L_cf:""")
    S.now(rest)

def flag_store(a, skip, saddr):
    a(f"""    s_barrier
    s_cmp_lg_u32 s20, 0
    s_cbranch_scc1 {skip}
    s_mov_b64 exec, {15 if O['r3'] else 1}
    buffer_store_dword v0, v7, s[8:11], s{saddr} offen sc1
    s_mov_b64 exec, -1
{skip}:""")

TL = "    buffer_load_dword v61, v60, s[12:15], s33 offen"
def touch_set(line0, lg, rows):
    return L(f"""{rows}
s_add_u32 s33, s89, s34
s_add_u32 s33, s33, {128*line0}
v_lshrrev_b32 v60, {lg}, v1
v_lshlrev_b32 v60, 12, v60
v_and_b32 v61, {(1 << lg) - 1}, v1
v_lshl_add_u32 v60, v61, 7, v60""")
def helper_role(a):
    HS, HB, HN = 20480, 81920, 5
    a("L_help:")
    ci = common_ids(HS, HB)
    emit(a, ci[:-8] + ["    s_waitcnt lgkmcnt(0)"] + ci[-8:])
    a(f"""    v_mov_b32 v56, -1
    v_mov_b32 v57, -1
    v_mov_b32 v58, -1
    v_mov_b32 v59, -1
    v_lshlrev_b32 v4, 4, v1
    s_lshl_b32 s28, s23, 13
    s_add_u32 s28, s28, {WS_FL}
    s_add_u32 s29, s28, 4096
    buffer_store_dwordx4 v[56:59], v4, s[8:11], s28 offen sc1
    buffer_store_dwordx4 v[56:59], v4, s[8:11], s29 offen sc1
    v_mov_b32 v62, 0x3f803f80
    v_lshrrev_b32 v7, 1, v3
    v_lshlrev_b32 v7, 4, v7
    v_and_b32 v15, 1, v3
    v_lshl_add_u32 v7, v15, 2, v7
    v_lshl_add_u32 v7, v14, 3, v7
    v_cmp_eq_u32 vcc, 1, v14
    s_mov_b32 s28, {WS_ST1}""")
    for q in range(10):
        a(f"    s_waitcnt vmcnt({11-q})")
        if q == 9: a("    ; MARK 0")
        for k in range(4):
            z = (q or k)
            a(f"    v_dot2_f32_bf16 v60, v{16+4*q+k}, v62, {'v60' if z else '0'}")
            a(f"    v_dot2_f32_bf16 v61, v{16+4*q+k}, v{16+4*q+k}, {'v61' if z else '0'}")
    for m in ("row_half_mirror", "quad_perm:[2,3,0,1]", "quad_perm:[1,0,3,2]"):
        a(f"    v_add_f32_dpp v60, v60, v60 {m} row_mask:0xf bank_mask:0xf")
        a(f"    v_add_f32_dpp v61, v61, v61 {m} row_mask:0xf bank_mask:0xf")
    emit(a, ln_scalars(60, 61, 640, 64, 63, 65))
    a(f"""    v_cndmask_b32 v63, v63, v64, vcc
    s_mov_b32 exec_lo, 0x03030303
    s_mov_b32 exec_hi, 0x03030303
    buffer_store_dword v63, v7, s[8:11], s28 offen sc1
    s_mov_b64 exec, -1
    s_and_b32 s29, s2, 3
    s_lshl_b32 s29, s29, 6
    v_mov_b32 v66, s29
    v_mov_b32 v67, 1
    s_waitcnt vmcnt(0)
    s_barrier
    s_cmp_lg_u32 s20, 0
    s_cbranch_scc1 L_ar
    s_mov_b64 exec, 1
    global_atomic_add v66, v67, s[66:67] sc1
    s_mov_b64 exec, -1
L_ar:
    ; MARK 1
    s_cmp_lt_u32 s23, 48
    s_cbranch_scc1 L_hout""")
    emit(a, touch_set(0, 2, "s_sub_u32 s34, s22, 20\ns_lshl_b32 s34, s34, 18"))
    a(TL)
    emit(a, [x.replace("v61", "v62") for x in touch_set(O['tl'], 1, "s_sub_u32 s34, s22, 26\ns_lshl_b32 s34, s34, 20")])
    a(f"{TL}\n    s_add_u32 s33, s33, {128*4096}\n{TL}")
    a(f"""    s_waitcnt vmcnt(0)
    s_branch L_hdone
L_nostat:""")
    if O['ksplit']: a(KREST)
    emit(a, ci[:-8] + ["    s_waitcnt lgkmcnt(0)"] + ci[-8:])
    if O['hdelay']: a("    s_waitcnt vmcnt(0)")
    a("    ; MARK 1")
    emit(a, srd(16, 56, 640 * 1536 * 2))
    a(f"""    s_and_b32 s25, s23, 7
    s_bfe_u32 s26, s23, 0x20003
    s_mul_i32 s27, s26, {160*3072}
    s_mul_i32 s28, s20, {8*3072}
    s_add_u32 s27, s27, s28
    s_mul_i32 s28, s25, 384
    s_add_u32 s27, s27, s28
    s_mul_i32 m0, s20, 3072""")
    for q in range(3):
        a(f"""    v_add_u32 v7, {64*q}, v0
    v_mul_u32_u24 v3, 2731, v7
    v_lshrrev_b32 v3, 16, v3
    v_mul_u32_u24 v3, {3072-384}, v3
    v_add_u32 v{100+q}, v2, v3""")
    for ks in range(5):
        for q in range(3): a(f"    buffer_load_dwordx4 v{100+q}, s[16:19], s27 offen offset:{1024*q} lds")
        if ks < 4: a(f"    s_add_u32 m0, m0, 12288\n    s_add_u32 s27, s27, {32*3072}")
    a(f"""    v_bfe_u32 v7, v0, 2, 2
    v_lshl_add_u32 v7, v6, 3, v7
    v_mul_u32_u24 v7, 384, v7
    v_and_b32 v3, 3, v0
    v_lshl_add_u32 v7, v3, 3, v7
    s_mul_i32 s28, s20, 96
    v_add_u32 v7, s28, v7
    s_lshl_b32 s27, s25, 2
    s_add_u32 s27, s27, s20
    s_and_b32 s30, s27, 15
    s_mul_i32 s30, s30, 120
    s_cmp_ge_u32 s27, 16
    s_cselect_b32 s29, 0, 60
    s_add_u32 s30, s30, s29
    s_mul_i32 s29, s26, 15
    s_add_u32 s30, s30, s29
    s_lshl_b32 s30, s30, 10
    s_add_u32 s30, s30, {WS_WIN}
    v_mov_b32 v99, 0x3f803f80
    s_waitcnt vmcnt(0)
    s_barrier""")
    for n in range(15):
        ks, t = divmod(n, 3)
        a(f"    ds_read_b64_tr_b16 {vr(16+4*n,2)}, v7 offset:{12288*ks+32*t}")
        a(f"    ds_read_b64_tr_b16 {vr(18+4*n,2)}, v7 offset:{12288*ks+32*t+4*384}")
    for n in range(15):
        ks, t = divmod(n, 3)
        a(f"    s_waitcnt lgkmcnt({min(15,28-2*n)})")
        a(f"    buffer_store_dwordx4 {vr(16+4*n,4)}, v2, s[8:11], s30 offen offset:{1024*t} sc1")
        if t == 2: a(f"    s_add_u32 s30, s30, 3072")
        for k in range(4): a(f"    v_dot2_f32_bf16 v{96+t}, v{16+4*n+k}, v99, {'v%d' % (96+t) if (ks or k) else '0'}")
    for t in range(3): emit(a, allreduce_g(96 + t, 100))
    a(f"""    s_mul_i32 s27, s27, 768
    s_lshl_b32 s28, s26, 4
    s_add_u32 s27, s27, s28
    s_add_u32 s27, s27, {WS_CS}
    v_cmp_eq_u32 vcc, 1, v6
    v_cmp_eq_u32 s[30:31], 2, v6
    v_and_b32 v7, 60, v0
    v_lshlrev_b32 v7, 4, v7
    v_lshl_add_u32 v7, v3, 2, v7
    v_cndmask_b32 v96, v96, v97, vcc
    v_cndmask_b32 v96, v96, v98, s[30:31]
    s_mov_b32 exec_hi, 0xffff
    buffer_store_dword v96, v7, s[8:11], s27 offen sc1
    s_mov_b32 exec_hi, -1""")
    if O['tw']:
        emit(a, [x.replace("v6", "v10").replace("v10,", "v6,") if False else x.replace("v60", "v104").replace("v61", "v105") for x in touch_set(6, O['tw'], "s_sub_u32 s34, s22, 28\ns_lshl_b32 s34, s34, 19") + [TL] + ([f"    s_add_u32 s33, s33, {64*4096}", TL] if O['tw'] == 2 else [])])
    a("""    s_branch L_hdone
L_hout:""")
    S = Sched(a)
    if O['tfirst']:
        emit(a, touch_set(0, 2, "s_sub_u32 s34, s22, 20\ns_lshl_b32 s34, s34, 18"))
        S.put((TL, 't'))
    emit(a, srd(16, 62, 768 * 640 * 2))
    a(f"""    s_and_b32 s24, s23, 7              ; d block
    s_lshr_b32 s25, s23, 3
    s_lshl_b32 s25, s25, 2
    s_add_u32 s25, s25, s20            ; k step
    s_mul_i32 s30, s25, 43691
    s_lshr_b32 s30, s30, 17
    s_mul_i32 s31, s30, 3
    s_sub_u32 s31, s25, s31            ; 0 / 1 (mixed) / 2
    s_mul_i32 s30, s30, 96
    s_mul_i32 s32, s31, 24
    s_cmp_eq_u32 s31, 1
    s_cselect_b32 s32, 32, s32
    s_cselect_b32 s33, {32*1280}, 0
    s_movk_i32 s34, {4*160}
    s_cmovk_i32 s34, {8*160}
    s_movk_i32 s79, {16*160}
    s_cmovk_i32 s79, {4*160}
    s_add_u32 s30, s30, s32
    s_mul_i32 s26, s30, 1280
    s_mul_i32 s27, s24, 160
    s_add_u32 s26, s26, s27
    s_mul_i32 s27, s20, 5120
    s_mov_b32 m0, s27""")
    for q in range(5):
        a(f"""    v_add_u32 v7, {64*q}, v0
    v_mul_u32_u24 v3, 6554, v7
    v_lshrrev_b32 v3, 16, v3
    v_lshrrev_b32 v15, 4, v3
    v_mul_u32_u24 v3, 1120, v3
    v_lshl_add_u32 v7, v7, 4, v3
    v_mad_u32_u24 v7, v15, s33, v7""")
        S.put(("    buffer_load_dwordx4 v7, s[16:19], s26 offen lds", 'r'))
        if q < 4: a("    s_add_u32 m0, m0, 1024")
    a(f"""    v_bfe_u32 v56, v0, 2, 2
    v_mul_u32_u24 v56, 160, v56
    v_mad_u32_u24 v56, v6, s34, v56
    v_add_u32 v56, s27, v56
    v_and_b32 v3, 3, v0
    v_lshl_add_u32 v57, v3, 3, v56
    v_lshl_add_u32 v56, v3, 4, v56
    v_add_u32 v58, s79, v56
    v_add_u32 v59, s79, v57""")
    if not O['tfirst']:
        emit(a, touch_set(0, 2, "s_sub_u32 s34, s22, 20\ns_lshl_b32 s34, s34, 18"))
        S.put((TL, 't'))
    a(f"""    s_mul_i32 s28, s25, 43691
    s_lshr_b32 s28, s28, 18
    s_mul_i32 s28, s28, 6
    s_sub_u32 s29, s25, s28
    s_lshl_b32 s29, s29, 2
    s_lshr_b32 s29, 0x352140, s29
    s_and_b32 s29, s29, 15
    s_add_u32 s25, s28, s29
    s_mul_i32 s28, s24, 24
    s_add_u32 s28, s28, s25
    s_mul_i32 s28, s28, 5120
    s_add_u32 s28, s28, {WS_WOUT}
    s_add_u32 s29, s28, 4096""")
    S.put(('need', 'vm', ['r']))
    for t in range(5):
        ad, o = (56, 64 * (t >> 1) + 8 * (t & 1)) if t < 4 else (57, 128)
        a(f"    ds_read_b64_tr_b16 {vr(16+4*t,2)}, v{ad} offset:{o}")
        a(f"    ds_read_b64_tr_b16 {vr(18+4*t,2)}, v{ad+2} offset:{o}")
    for t in range(5):
        a(f"    s_waitcnt lgkmcnt({8-2*t})")
        if t < 4: a(f"    buffer_store_dwordx4 {vr(16+4*t,4)}, v2, s[8:11], s28 offen offset:{1024*t} sc1")
        else: a(f"    buffer_store_dwordx4 {vr(16+4*t,4)}, v2, s[8:11], s29 offen sc1")
    a("L_hdone:\n    ; MARK 2")
    S = Sched(a)
    p1 = "    global_load_dword v14, v7, s[66:67] sc1"
    p1b = "    buffer_load_dword v14, v3, s[8:11], s29 offen sc1"
    a(f"""    v_and_b32 v7, 3, v0
    v_lshlrev_b32 v7, 6, v7""")
    emit(a, f1b_addr(3, 4))

    if O['hpre'] == 0: S.put((p1, 'p1'))
    for u in range(O['hpre']):
        if u == O['p1u']: S.put((p1, 'p1'))
        pre, d = wdma(u, u); S.now(pre + d)
    S.put(('need', 'vm', ['p1']))
    emit(a, recheck("H1", [p1], ["    v_cmp_gt_u32 vcc, 16, v14"], sleep=8))
    a(f"""    s_barrier
    s_cmp_lg_u32 s20, 0
    s_cbranch_scc1 L_f1b
    s_lshl_b32 s28, s23, 4
    s_add_u32 s28, s28, {FL_F1B}
    s_mov_b64 exec, 1
    buffer_store_dword v0, v0, s[8:11], s28 offen sc1
    s_mov_b64 exec, -1
L_f1b:
""")
    if not O['lt']:
        a("    s_bitcmp0_b32 s22, 2\n    s_cbranch_scc1 L_nt")
        emit(a, touch_set(12, 2, "s_lshr_b32 s34, s22, 1\ns_and_b32 s34, s34, 4\ns_and_b32 s33, s22, 3\ns_add_u32 s34, s34, s33\ns_lshl_b32 s34, s34, 18"))
        a(TL)
    a("L_nt:\n    ; MARK 3")
    for u in range(O['hpre'], HN):
        pre, d = wdma(u, u); S.now(pre + d)
    for u in range(O['nW'] - HN):
        S.now(wread(u, u % HN))
        if u + HN == O['nW'] - 2: S.put((p1b, 'p1b'))
        pre, d = wdma(u + HN, u % HN)
        S.now([('need', 'lg', [('wr', u)])] + pre + d)
    S.put(('need', 'vm', ['p1b']))
    emit(a, recheck("H1b", [p1b], ["    v_cmp_eq_u32 vcc, -1, v14"], sleep=4))
    a("    ; MARK 4")
    def mid():
        for u in range(O['nW'] - HN, O['nW']): S.now(wread(u, u % HN))
        a("    s_waitcnt lgkmcnt(0)\n    s_barrier\n    ; MARK 7")
    win_early(S, mid)
    a("    ;WARM2")
    a(f"    s_lshl_b32 s34, s2, 7\n    s_add_u32 s34, s34, {FL_F2P - 160 * 128}")
    if O['pg']: a("    buffer_load_dword v42, off, s[8:11], s34 sc1")
    a("    s_branch L_common")

def g1(a, S):
    A2, BF, RR, CS2, SX, SA, T0, VB = 16, [40, 52], 64, 80, 84, 88, 92, 91
    A1, CS1, RL, X3, R3 = 64, 206, 218, 222, 238
    XS, VA, KK = RR, 1, 14
    HB = lambda s: WV + 8 * s
    def z1dma(lo, hi):
        R = []
        while lo < hi:
            m = min(hi, lo + 4)
            R += L(f"s_add_u32 m0, s25, {L_R + 1024*lo}\ns_add_u32 s76, s27, {1024*lo}") + lin_dma(m - lo, 'w1', 76); lo = m
        return R
    a("L_common:")
    S.now(L(f"s_add_u32 m0, s26, {YO}\ns_add_u32 s27, s27, 4096") + lin_dma(3, 'wl') + L(f"s_add_u32 s27, s27, {61440 - 12288}") + z1dma(0, O['nz']))
    a(f"""    s_mul_i32 s79, s71, 768
    s_add_u32 s79, s79, {WS_CS}
    v_lshlrev_b32 v{SA}, 2, v5
    v_lshlrev_b32 v{SA+1}, 4, v6""")
    a(f"    v_and_b32 v7, 12, v0\n    v_mul_u32_u24 v7, 12, v7\n    v_add3_u32 v7, v7, v{SA}, v{SA+1}\n    v_add_u32 v7, 12288, v7")
    for t in range(3): a(f"    buffer_load_dword v{CS2+t}, v7, s[8:11], s79 offen offset:{256*t} sc1")
    emit(a, stage_base(18432, 1024))
    a(f"""    s_mul_i32 s84, s73, 122880
    s_mul_i32 s76, s20, 30720
    s_add_u32 s84, s84, s76
    s_add_u32 s84, s84, {WS_WOUT}""")
    a(f"""    v_subrev_u32 v41, 40, v0
    v_min_u32 v41, 5, v41
    v_lshl_add_u32 v41, v41, 3, s73
    v_lshlrev_b32 v41, 4, v41
    v_add_u32 v41, {FL_F1B}, v41
    v_cmp_gt_u32 vcc, 40, v0
    s_mul_i32 s28, s20, {40 << O['f2s']}
    s_add_u32 s28, s28, {FL_F2R}
    s_mul_i32 s30, s21, {10240 if O['rep'] else 0}
    s_add_u32 s28, s28, s30
    v_lshl_add_u32 v40, v0, {O['f2s']}, s28
    v_cndmask_b32 v40, v41, v40, vcc
    v_lshlrev_b32 v14, 15, v6
    v_lshl_add_u32 v14, v5, 4, v14       ; quad 2g
    s_lshl_b32 s26, s78, 8
    s_mul_i32 s4, s77, {40*16384}
    s_add_u32 s26, s26, s4
    s_mov_b32 s4, {8*16384}
    s_cmp_eq_u32 s77, 3
    s_cselect_b32 s5, {(8-160)*16384}, s4
    s_cmp_eq_u32 s77, 2
    s_cselect_b32 s6, {(8-160)*16384}, s4
    s_cmp_eq_u32 s77, 1
    s_cselect_b32 s7, {(8-160)*16384}, s4
    v_add_u32 v14, s26, v14
    v_add_u32 v15, 16384, v14            ; quad 2g+1
    v_lshrrev_b32 v7, 2, v0
    v_lshlrev_b32 v7, 14, v7
    v_and_b32 v4, 3, v0
    v_lshl_add_u32 v7, v4, 4, v7
    v_lshlrev_b32 v{T0}, 4, v4
    v_cmp_eq_u32 s[80:81], 1, v4
    v_cmp_eq_u32 s[82:83], 2, v4
    v_cmp_eq_u32 s[18:19], 3, v4
    v_lshlrev_b32 v{VA}, 4, v4
    v_lshl_add_u32 v{VA}, v6, 6, v{VA}
    v_bfe_u32 v4, v0, 2, 1
    v_lshl_add_u32 v{VA}, v4, 3, v{VA}
    v_bfe_u32 v4, v0, 3, 1
    v_lshl_add_u32 v{VA}, v4, 2, v{VA}
    v_and_b32 v4, 12, v0
    v_add_u32 v{T0}, v{T0}, v4
    v_add_u32 v3, 65536, v2
    v_add_u32 v4, 131072, v2
    v_mov_b32 v{T0+1}, 0x3f803f80
    s_lshl_b32 s29, s70, 1
    s_and_b32 s30, s71, 1
    s_add_u32 s29, s29, s30
    s_lshl_b32 s29, s29, 3
    s_lshr_b32 s30, s71, 1
    s_add_u32 s29, s29, s30
    s_lshl_b32 s30, s29, 6
    s_mul_i32 s31, s20, {40*16384}
    s_add_u32 s30, s30, s31
    s_add_u32 s31, s30, {16*16384}
    s_add_u32 s32, s30, {32*16384}
    s_and_b32 s33, s29, 3
    s_lshl_b32 s33, s33, 6
    s_and_b32 s29, s29, -4
    s_add_u32 s29, s29, s20
    s_lshl_b32 s29, s29, 8
    s_add_u32 s29, s29, s33
    s_add_u32 s29, s29, {FL_L2X}
    s_lshl_b32 s33, s78, 10
    s_add_u32 s33, s33, {FL_L2X}
    s_lshl_b32 s24, s20, 8
    s_add_u32 s24, s24, {L_S}""")
    for k in range(4): a(f"    v_mov_b32 v{XS+8+k}, 0")
    if O['gate']:
        a(f"""    s_cmp_lt_u32 s2, 160
    s_cbranch_scc1 L_s2""")
        if O['pg']: a(f"    s_waitcnt vmcnt({6 + O['nz']})\n    v_cmp_eq_u32 vcc, -1, v42\n    s_cbranch_vccz L_s2")
        spin(a, "H2p", [f"    buffer_load_dword v41, off, s[8:11], s34 sc1"], [f"    v_cmp_eq_u32 vcc, -1, v41"], sleep=4, post=[f"    s_sleep {O['hsleep']}"])
        a(f"L_s2:\n    ; MARK 8")
    spin(a, "S2", [f"    buffer_load_dword v41, v40, s[8:11], 0 offen sc1"], [f"    v_cmp_eq_u32 vcc, -1, v41"], sleep=O['s2sleep'])
    a("    s_barrier\n    ; MARK 9")
    S.vm.q = []; S.lg.q = []
    xsl = [(f"    buffer_load_dwordx4 {vr(XS,4)}, v7, s[8:11], s30 offen sc1", 'x'), (f"    buffer_load_dwordx4 {vr(XS+4,4)}, v7, s[8:11], s31 offen sc1", 'x'),
           "    s_mov_b32 exec_hi, 0", (f"    buffer_load_dwordx4 {vr(XS+8,4)}, v7, s[8:11], s32 offen sc1", 'x'), "    s_mov_b32 exec_hi, -1"]
    def aload(s):
        d = {4: 5, 9: 6, 14: 7}.get(s, 4)
        return [(f"    buffer_load_dwordx4 {vr(HB(s),4)}, v14, s[8:11], 0 offen sc1", s), f"    v_add_u32 v14, s{d}, v14",
                (f"    buffer_load_dwordx4 {vr(HB(s)+4,4)}, v15, s[8:11], 0 offen sc1", s), f"    v_add_u32 v15, s{d}, v15"]
    NPRE = O['npre']
    for s in range(NPRE): S.now(aload(s))
    if O['xs_ld'] <= NPRE: S.now(xsl)
    def bread(half, idx, s, t): return (f"    ds_read_b128 {vr(BF[idx&1]+4*t,4)}, {lds_op(win_addr(half, s, t))}", ('b', half, idx, t))
    S.now([bread(0, s, s, t) for s in range(2) for t in range(3)])
    a(f"""    v_add_u32 v{SA}, s24, v{SA}          ; scratch + 4i
    v_add_u32 v{SA+1}, s24, v{SA+1}      ; scratch + 16g
    v_and_b32 v{SA+2}, 1, v6
    v_lshl_add_u32 v{SA+2}, v{SA+2}, 6, v{SA}""")
    for t in range(3): emit(a, allreduce_g(CS2 + t, CS2 + 3))
    def dots():
        S.put(('need', 'vm', ['x']))
        for k in range(6):
            e = XS + 4 * (k >> 1) + (k & 1); o = e + 2
            z = lambda r: f"v{r}" if k else "0"
            a(f"    v_dot2_f32_bf16 v{SX}, v{e}, v{T0+1}, {z(SX)}\n    v_dot2_f32_bf16 v{SX+1}, v{e}, v{e}, {z(SX+1)}")
            a(f"    v_dot2_f32_bf16 v{SX+2}, v{o}, v{T0+1}, {z(SX+2)}\n    v_dot2_f32_bf16 v{SX+3}, v{o}, v{o}, {z(SX+3)}")
        S.now(L(f"""v_add_f32_dpp v{SX}, v{SX}, v{SX} row_ror:8 row_mask:0xf bank_mask:0x3
v_add_f32_dpp v{SX+1}, v{SX+1}, v{SX+1} row_ror:8 row_mask:0xf bank_mask:0x3
v_add_f32_dpp v{SX}, v{SX+2}, v{SX+2} row_ror:8 row_mask:0xf bank_mask:0xc
v_add_f32_dpp v{SX+1}, v{SX+3}, v{SX+3} row_ror:8 row_mask:0xf bank_mask:0xc
v_add_f32_dpp v{SX}, v{SX}, v{SX} row_shl:4 row_mask:0xf bank_mask:0x5
v_add_f32_dpp v{SX}, v{SX+1}, v{SX+1} row_shr:4 row_mask:0xf bank_mask:0xa""") + allreduce_g(SX, SX + 1)
              + [f"    buffer_store_dword v{SX}, v{T0}, s[8:11], s29 offen sc1"])
    def swaps(s): return [('need', 'vm', [s]), f"    v_swap_b32 v{HB(s)+2}, v{HB(s)+4}", f"    v_swap_b32 v{HB(s)+3}, v{HB(s)+5}"]
    S.now(swaps(0))
    a("    ; MARK 10")
    l2load = f"    buffer_load_dwordx4 {vr(SX,4)}, v2, s[8:11], s33 offen sc1"
    l2chk = L(f"v_max3_u32 v{T0}, v{SX}, v{SX+1}, v{SX+2}\nv_max_u32 v{T0}, v{T0}, v{SX+3}\nv_cmp_eq_u32 vcc, -1, v{T0}")
    def bcast(t, R):
        return [(f"    ds_write2_b32 v{SA+2}, v{t}, v{t+1} offset1:32", 'sw')] + [(f"    ds_read_b128 {vr(R+4*k,4)}, v{SA+1} offset:{64*k}", 'rr') for k in range(4)]
    c0 = -2.0 * math.sqrt(2.0 / math.pi) * LOG2E
    nxt = NPRE
    tailq = z1dma(O['nz'], 15)
    if O['lt']:
        tailq += L(f"""s_and_b32 s76, s22, 7
s_lshl_b32 s76, s76, 14
s_add_u32 s76, s76, s74
v_and_b32 v7, 12, v0
v_lshlrev_b32 v7, 10, v7
v_and_b32 v{VB}, 3, v0
v_lshl_add_u32 v7, v{VB}, 7, v7
buffer_load_dword v{VB}, v7, s[12:15], s76 offen offset:{12*128}""")
    for s in range(20):
        forced = {k: [] for k in range(6)}
        for n in range(2):
            if nxt < 20 and nxt - s <= O['lead']:
                x = aload(nxt); forced[n] += x[:2]; forced[n + 2] += x[2:]
                if nxt + 1 == O['xs_ld']: forced[3] += xsl
                if nxt == O['l2_ld']: forced[3].append((l2load, 'l2'))
                nxt += 1
        if nxt == 20 and not forced[0]:
            for k in ((0, 1, 2, 3) if len(tailq) > 8 else (0, 2)): forced[k] += tailq[:1]; tailq = tailq[1:]
        if s + 2 < 20:
            for t in range(3): forced[2 * t + 1].append(bread(0, s + 2, s + 2, t))
        if s < 19: forced[4] += swaps(s + 1)
        S.put(('need', 'lg', [('b', 0, s, 2)]))
        for t in range(3):
            for par in range(2):
                c = vr(A2 + 8 * t + 4 * par, 4)
                a(f"    v_mfma_f32_16x16x32_bf16 {c}, {vr(HB(s)+4*par,4)}, {vr(BF[s&1]+4*t,4)}, {c if s else '0'}")
                S.gap(0, forced[2 * t + par])
        if s == O['xs_at']: dots()
        if s == O['l2_ld']:
            S.now([('need', 'vm', ['l2'])] + recheck("L2", [l2load], l2chk) + row_scalars(SX, 640, T0) + bcast(T0, RR))
        if O['g1marks'] == 1 and s in (3, 7, 11, 15): a(f"    ; MARK {25 + s // 4}")
    S.now(tailq)
    a(f"""    v_mov_b32 v{KK}, {f2u(c0)}
    v_mov_b32 v{KK+1}, {f2u(c0*0.044715)}
    s_lshr_b32 s30, s70, 3
    s_and_b32 s34, s71, 14
    s_add_u32 s34, s34, s30
    s_cmp_eq_u32 s34, s71
    s_cselect_b32 s30, 96, 0
    s_mul_i32 s31, s34, 192
    s_add_u32 s30, s30, s31
    s_add_u32 s30, s30, {WS_Z2 >> 10}
    s_and_b32 s31, s78, 31
    s_add_u32 s33, s30, s31
    s_add_u32 s29, s33, s31
    s_add_u32 s33, s33, 64
    s_lshl_b32 s29, s29, 10
    s_lshl_b32 s33, s33, 10
    s_lshl_b32 s32, s78, 12
    s_add_u32 s32, s32, {FL_L3X}
    s_lshl_b32 s31, s71, 8
    s_add_u32 s31, s31, s32""")
    S.put(('need', 'lg', ['rr']))
    a("    ; MARK 11")
    mv, stx = xfill(84); S.now(mv)
    hk = [[(x, 'xf')] for x in stx] if O['xfs'] else [[(x, 'xf') for x in stx]]; S.hk = hk
    def hook():
        if hk: S.now(hk.pop(0))
    def singles(xs):
        R = [[]]
        for x in xs:
            R[-1].append(x)
            if isinstance(x, tuple): R.append([])
        return R[:-1]
    GT, QQ, SS = 40, 48, 56
    for t in range(3):
        prs = [A2 + 8 * t + 2 * k for k in range(4)]
        hook()
        for k, x in enumerate(prs): a(f"    v_pk_mul_f32 {vr(x,2)}, {vr(x,2)}, {vr(RR+2*k,2)}")
        for k, x in enumerate(prs): a(f"    v_pk_fma_f32 {vr(x,2)}, {vr(RR+8+2*k,2)}, {vr(CS2+(t&2),2)}, {vr(x,2)} op_sel:[0,{t&1},0] op_sel_hi:[1,{t&1},1] neg_lo:[1,0,0] neg_hi:[1,0,0]")
        gelu_block(a, prs, GT, KK)
        for k, x in enumerate(prs):
            if t == 0: a(f"    v_pk_mul_f32 {vr(QQ+2*k,2)}, {vr(x,2)}, {vr(x,2)}")
            else:
                a(f"    v_pk_add_f32 {vr(SS+2*k,2)}, {vr(x,2)}, {vr(SS+2*k if t == 2 else A2+2*k,2)}")
                a(f"    v_pk_fma_f32 {vr(QQ+2*k,2)}, {vr(x,2)}, {vr(x,2)}, {vr(QQ+2*k,2)}")
    assert not hk
    order = list(range(14, 20)) + list(range(14))
    for k in range(8): a(f"    v_add_f32_dpp v{SS+k}, v{SS+k}, v{SS+k} row_ror:8 row_mask:0xf bank_mask:0x3")
    for k in range(8): a(f"    v_add_f32_dpp v{SS+k}, v{QQ+k}, v{QQ+k} row_ror:8 row_mask:0xf bank_mask:0xc")
    for k in range(4): a(f"    v_add_f32_dpp v{SS+k}, v{SS+k}, v{SS+k} row_half_mirror row_mask:0xf bank_mask:0x5")
    for k in range(4): a(f"    v_add_f32_dpp v{SS+k}, v{SS+4+k}, v{SS+4+k} row_half_mirror row_mask:0xf bank_mask:0xa")
    for k in range(4): a(f"    v_add_f32_dpp v{SS+k}, v{SS+k}, v{SS+k} quad_perm:[2,3,0,1] row_mask:0xf bank_mask:0xf")
    for k in range(4): a(f"    v_add_f32_dpp v{SS+k}, v{SS+k}, v{SS+k} quad_perm:[1,0,3,2] row_mask:0xf bank_mask:0xf")
    a(f"""    v_cndmask_b32 v{T0}, v{SS}, v{SS+1}, s[80:81]
    v_cndmask_b32 v{T0}, v{T0}, v{SS+2}, s[82:83]
    v_cndmask_b32 v{T0}, v{T0}, v{SS+3}, s[18:19]""")
    if O['xfw']: S.put(('need', 'vm', ['xf']))
    S.put(f"    buffer_store_dword v{T0}, v{VA}, s[8:11], s31 offen sc1")
    a("    v_add_u32 v1, s32, v2")
    S.put(('need', 'vm', ['w1'])); a("    s_barrier")
    a("    ; MARK 13")
    S.now([bread(1, i, order[i], t) for i in range(2) for t in range(3)])
    wq = [x for u in range(O['nW'], 16) for part in wdma(u, u & 3) for x in part]
    l3 = [f"    buffer_load_dwordx4 {vr(X3+4*j,4)}, v1, s[8:11], 0 offen offset:{1024*j} sc1" for j in range(4)]
    chk = [f"    v_max3_u32 v{T0}, v{X3}, v{X3+1}, v{X3+2}"]
    for k in range(3, 15, 2): chk.append(f"    v_max3_u32 v{T0}, v{T0}, v{X3+k}, v{X3+k+1}")
    chk += [f"    v_max_u32 v{T0}, v{T0}, v{X3+15}", f"    v_cmp_eq_u32 vcc, -1, v{T0}"]
    side = {}; sb = O['l3_at'] + 1
    side[sb] = L(f"s_lshl_b32 s30, s78, 6\nv_lshl_add_u32 v7, v5, 2, s30") + [(f"    global_load_dword v{VB}, v7, s[60:61]", 'bias')] + L("v_and_b32 v7, 3, v0\nv_lshlrev_b32 v7, 4, v7\nv_lshl_add_u32 v7, v6, 6, v7")
    side[sb] += [(f"    buffer_load_dwordx4 {vr(CS1+4*t,4)}, v7, s[8:11], s79 offen offset:{256*t} sc1", 'bias') for t in range(3)]
    side[sb] += [(f"    ds_read2_b32 {vr(RL,2)}, v{SA} offset0:0 offset1:16", 'rl'), (f"    ds_read2_b32 {vr(RL+2,2)}, v{SA} offset0:32 offset1:48", 'rl')]
    side.setdefault(O['l3_at'], []).extend([(x, 'l3') for x in l3])
    side.setdefault(O['l3_chk'], []).extend([('need', 'vm', ['l3'])] + recheck("L3", l3, chk)
        + [f"    v_add_f32 v{X3+k}, v{X3+k}, v{X3+8+k}" for k in range(8)] + [f"    v_add_f32 v{X3+k}, v{X3+k}, v{X3+4+k}" for k in range(4)]
        + row_scalars(X3, 768, T0) + bcast(T0, R3))
    side.setdefault(max(O['nS'] + 1, 13), []).extend([('need', 'vm', ['bias'])] + [f"    v_add_f32_dpp v{CS1+k}, v{CS1+k}, v{CS1+k} quad_perm:{m} row_mask:0xf bank_mask:0xf"
        for m in ("[2,3,0,1]", "[1,0,3,2]") for k in range(12)])
    assert O['nS'] < 19
    def z2out():
        a("    ; MARK 14")
        S.q += side.get(O['nS'], [])
        S.flush()
        S.put(('need', 'lg', ['rr']))
        a("    ; MARK 15")
        for t in range(3):
            for k in range(4):
                x = A2 + 8 * t + 2 * k
                a(f"    v_pk_fma_f32 {vr(x,2)}, {vr(x,2)}, {vr(R3+2*k,2)}, {vr(R3+8+2*k,2)} neg_lo:[0,0,1] neg_hi:[0,0,1]")
            o = X3 + 4 + 4 * t
            for r in range(4): a(f"    v_cvt_pk_bf16_f32 v{o+r}, v{A2+8*t+r}, v{A2+8*t+4+r}")
            S.put((f"    buffer_store_dwordx4 {vr(o,4)}, v2, s[8:11], {'s29' if t < 2 else 's33'} offen offset:{1024*(t&1)} sc1", 'z2'))
        a("    ; MARK 16")
    assert O['l3_chk'] <= O['nS']
    nw = len(wq); put = 0
    for i, s in enumerate(order):
        forced = {k: [] for k in range(6)}
        if i + 2 < 20:
            for t in range(3): forced[2 * t + 1].append(bread(1, i + 2, order[i + 2], t))
        for k in (1, 3):
            if put < nw and put * (O['whi'] - O['wlo']) <= (2 * i + (k >> 1) - O['wlo']) * nw: forced[k].append(wq[put]); put += 1
        if i != O['nS']: S.q += side.get(i, [])
        for t in range(3):
            for par in range(2):
                if par == 0: S.put(('need', 'lg', [('b', 1, i, 2 if i else t)]))
                c = vr(A1 + 8 * t + 4 * par, 4)
                if not (O['ab'] & 8 and i >= O['nS']): a(f"    v_mfma_f32_16x16x32_bf16 {c}, {vr(BF[i&1]+4*t,4)}, {vr(HB(s)+4*par,4)}, {c if i else '0'}")
                S.gap(4 if (t, par) == (2, 1) else 8, forced[2 * t + par])
        if i + 1 == O['nS']: z2out()
    assert put == nw
    S.flush()
    def z1tile(t):
        prs = [A1 + 8 * t + 2 * k for k in range(4)]
        hook()
        for k, x in enumerate(prs): a(f"    v_pk_mul_f32 {vr(x,2)}, {vr(x,2)}, {vr(RL,2)} op_sel:[0,{k>>1}] op_sel_hi:[1,{k>>1}]")
        for k, x in enumerate(prs): a(f"    v_pk_fma_f32 {vr(x,2)}, {vr(CS1+4*t+2*(k&1),2)}, {vr(RL+2,2)}, {vr(x,2)} op_sel:[0,{k>>1},0] op_sel_hi:[1,{k>>1},1] neg_lo:[1,0,0] neg_hi:[1,0,0]")
        if O['ab'] & 4: hook(); hook(); hook()
        else: gelu_block(a, prs, 52, KK, hook)
        for k in (3, 2, 1, 0): a(f"    v_cvt_pk_bf16_f32 v{76+4*t+k}, v{prs[k]}, v{prs[k]+1}")
    a(f"""    s_lshl_b32 s25, s71, {4 + O['f3s']}
    s_lshr_b32 s88, s70, 2
    s_mul_i32 s88, s88, {4096 if O['r3'] else 0}
    s_add_u32 s25, s25, s88
    v_lshlrev_b32 v7, 12, v0
    s_add_u32 s25, s25, {FL_F3}
    s_lshl_b32 s28, s34, 1
    s_and_b32 s30, s71, 1
    s_add_u32 s28, s28, s30
    s_lshl_b32 s28, s28, 3
    s_and_b32 s30, s70, 7
    s_add_u32 s28, s28, s30
    s_lshl_b32 s28, s28, {O['f3s']}
    s_add_u32 s28, s28, {FL_F3}""")
    S.put(('need', 'vm', ['bias']))
    S.nwo = O['oC2']
    a('    v_add_u32 v9, s84, v2\n    s_sub_u32 s75, s75, 1024')
    tiles = [2, 1, 0]
    for t in tiles[:O['nT']]: z1tile(t)
    while hk: hook()
    S.put(('need', 'vm', ['z2']))
    flag_store(a, "L_f3", 28)
    a("    ; MARK 17")
    hk += [wread(u, u & 3) for u in range(O['nW'], 16)] + [[('need', 'lg', [('wr', 15)])]] + singles(wo_pieces(0, S.nwo, 'wo'))
    for t in tiles[O['nT']:3-O['nT2']]: z1tile(t)
    while hk: hook()
    S.rest = lambda: [z1tile(t) for t in tiles[3-O['nT2']:]]

def g2(a, S):
    NS, ACC, ZF, Z1P, AX, XI, ZU = 7, 16, 40, 76, 96, 120, 144
    half = [(k, t) for k in range(32) for t in range(2)] + [(k, 2) for k in range(32)]
    seq = [(k, t, AX) for k, t in half] + [(k, t, ACC) for k, t in half]
    for par in range(2):
        a(f"    v_lshlrev_b32 v{ACC}, 16, v91" if par == 0 else f"    v_and_b32 v{ACC+12}, 0xffff0000, v91")
        for k in range(1, 12): a(f"    v_mov_b32 v{ACC+12*par+k}, v{ACC+12*par}")
    a(f"""    v_lshl_add_u32 v7, v5, {O['f3s']}, s25
    s_xor_b32 s28, s28, {8 << O['f3s']}
    s_add_u32 s28, s28, s88
    v_mov_b32 v89, s28
    v_cmp_gt_u32 vcc, 16, v0
    s_mul_i32 s27, s20, 3072
    s_mul_i32 s26, s71, {64*3072}
    s_add_u32 s26, s26, s27
    s_add_u32 s26, s26, {WS_Z2}
    s_add_u32 s27, s27, {L_Z}
    v_cndmask_b32 v7, v89, v7, vcc
    s_mul_i32 s30, s78, 49152
    s_lshr_b32 s31, s71, 1
    s_mul_i32 s31, s31, 3072
    s_add_u32 s30, s30, s31
    s_add_u32 s30, s30, {WS_P}
    s_and_b32 s32, s71, 1
    s_lshl_b32 s31, s32, 9
    s_add_u32 s31, s31, s30
    s_add_u32 s31, s31, 1024
    s_lshl_b32 s32, s32, 11
    s_add_u32 s30, s30, s32
    s_add_u32 s32, s30, 24576
    v_and_b32 v88, 1, v6
    v_mul_u32_u24 v88, 24576, v88
    v_lshrrev_b32 v89, 1, v6
    v_lshl_add_u32 v88, v89, 8, v88
    v_lshl_add_u32 v88, v5, 4, v88
    v_lshlrev_b32 v12, 14, v0
    s_lshl_b32 s28, s85, 4
    s_add_u32 s28, s28, {FL_F4}""")
    a("    s_cmp_lg_u32 s20, 0\n    s_cbranch_scc1 S3_d")
    spin(a, "S3", ["    buffer_load_dword v89, v7, s[8:11], 0 offen sc1"], ["    v_cmp_eq_u32 vcc, -1, v89"], sleep=O["s3s"])
    a("    s_barrier\n    ; MARK 18")
    def dma(st):
        pre = [f"    s_add_u32 m0, s27, {(st % NS) * 12288}", "    v_add_u32 v13, 12288, v13" if st else "    v_add_u32 v13, s26, v2"]
        return pre, [(f"    buffer_load_dwordx4 v13, s[8:11], 0 offen offset:{1024*k} sc1 lds", ('z', st)) for k in range(3)]
    def zreads(s):
        return [(f"    ds_read_b128 {vr(ZF+12*(s%3)+4*ft,4)}, {lds_op(L_Z + ((s >> 2) % NS) * 12288 + (s & 3) * 3072 + 1024 * ft)}", ('zr', s, ft)) for ft in range(3)]
    def wopiece(n):
        return [f"    s_add_u32 m0, s75, {1024*n}", f"    s_add_u32 s76, s33, {1024*n}", ("    buffer_load_dwordx4 v2, s[8:11], s76 offen sc1 lds", 'wo')]
    pre, d = dma(0); S.now(pre + d)
    for st in range(1, 4):
        pre, d = dma(st); S.hk.extend([pre + d[:1], d[1:2], d[2:]])
    S.rest()
    while S.hk: S.now(S.hk.pop(0))
    S.put(('need', 'vm', [('z', 0)]))
    a("    s_barrier\n    ; MARK 19")
    S.now(zreads(0) + zreads(1))
    nwo = S.nwo
    side = {}
    def at(s, xs): side.setdefault(s, []).extend(xs)
    one = lambda x: ["    s_mov_b64 exec, 1\n" + x + "\n    s_mov_b64 exec, -1"]
    unp = []
    for r in range(12): unp += [f"    v_lshlrev_b32 v{ZU+2*r}, 16, v{Z1P+r}", f"    v_and_b32 v{ZU+2*r+1}, 0xffff0000, v{Z1P+r}"]
    at(2, unp)
    flags = {}
    XO, XP = 168, 180
    for e, (s0, tiles) in enumerate(((O['e0'], (0, 1)), (33, (2,)))):
        for n, ft in enumerate(tiles):
            at(s0 + n * O['xsp'], [f"    v_cvt_pk_bf16_f32 v{XO+4*ft+2*par+h}, v{AX+12*par+4*ft+2*h}, v{AX+12*par+4*ft+2*h+1}" for par in range(2) for h in range(2)]
               + [(f"    buffer_store_dwordx4 {vr(XO+4*ft,4)}, v2, s[8:11], s87 offen offset:{1024*ft} sc1", ('xs', e))])
        ld = [f"    buffer_load_dwordx4 {vr(XP+4*ft,4)}, v2, s[8:11], s86 offen offset:{1024*ft} sc1" for ft in tiles]
        for n, x in enumerate(ld): flags[s0 + O['xw'] + n * O['xsp']] = (x, ('xl', e))
        b = XP + 4 * tiles[0]; nr = 4 * len(tiles)
        chk = [f"    v_max_u32 v92, v{b}, v{b+1}"] + [f"    v_max3_u32 v92, v92, v{b+r}, v{b+r+1}" for r in range(2, nr, 2)] + ["    v_cmp_eq_u32 vcc, -1, v92"]
        s1 = s0 + O['xw'] + (len(tiles) - 1) * O['xsp'] + O['xl']
        assert s1 < (54, 64)[e]
        R = [('need', 'vm', [('xl', e)])] + recheck(f"X{e}", ld, chk)
        for r in range(4 * tiles[0], 4 * tiles[-1] + 4):
            R += L(f"v_lshlrev_b32 v{XI+2*r}, 16, v{XP+r}\nv_and_b32 v{XI+2*r+1}, 0xffff0000, v{XP+r}\nv_mul_f32 v{XI+2*r}, v{XI+2*r}, v{ZU+2*r}\nv_mul_f32 v{XI+2*r+1}, v{XI+2*r+1}, v{ZU+2*r+1}")
        at(s1, R)
    R = []
    for par in range(2):
        for ft in range(2):
            c = ACC + 12 * par + 4 * ft; o = 8 * ft + 4 * par
            R += [f"    v_fma_f32 v{c+r}, v{c+r}, v{ZU+o+r}, v{XI+o+r}" for r in range(4)]
            R += [f"    v_cvt_pk_bf16_f32 v{ACC+12*par+2*ft+h}, v{c+2*h}, v{c+2*h+1}" for h in range(2)]
        R.append((f"    buffer_store_dwordx4 {vr(ACC+12*par,4)}, v2, s[8:11], s{30+2*par} offen sc1", 'pa'))
    at(54, R)
    plan = []
    dcar = []; zn = 4; lastbar = 0; free = -2
    for s in range(64):
        st, ph = s >> 2, s & 3
        forced = {k: [] for k in range(6)}
        if s + 2 < 64:
            for k, x in enumerate(zreads(s + 2)): forced[k].append(x)
        B2 = O['bar2'] and st >= 2
        if ph == 1 and st < 15 and not (B2 and st & 1):
            forced[4].append(('need', 'vm', [('z', st + 1)] + ([('z', st + 2)] if B2 else []))); forced[5].append("    s_barrier"); lastbar = -1 - st
        if ph == 2 and lastbar < 0: lastbar = -1 - lastbar; free = lastbar - 1
        w = None
        if O['skip'] >> (s >> 1) & 1: pass
        elif zn < 16 and ph in (0, 2) and zn <= free + NS:
            pre, d = dma(zn); w = pre + d; zn += 1
        elif ph in (0, 2) and nwo < 18:
            w = wo_pieces(nwo, min(18, nwo + 2), 'wo'); nwo = min(18, nwo + 2)
        elif ph in (0, 2) and 18 <= nwo < 30 - O['lw1'] - O['lw2'] and 9 + (nwo - 18) // 3 <= free:
            w = wo_pieces(nwo, nwo + 3, 'wo'); nwo += 3
        if w:
            assert not dcar
            plan.append((s, w[-1][1]))
            forced[0] += w[:1]; forced[1] += w[1:2]; forced[2] += w[2:3]; dcar = w[3:]
        elif dcar:
            forced[0] += dcar[:1]; forced[3] += dcar[1:]; dcar = []
        S.q += side.get(s, [])
        if s in flags: forced[3].append(flags[s])
        if O['ab'] >> 8:
            def keep(x):
                t = x[0] if isinstance(x, tuple) else x
                tag = x[1] if isinstance(x, tuple) else None
                if O['ab'] & 256 and isinstance(tag, tuple) and tag[0] == 'xs': return False
                if O['ab'] & 512 and tag == 'wo': return False
                if O['ab'] & 1024 and "s_barrier" in t: return False
                if O['ab'] & 2048 and t.startswith("    v_add_u32 v13"): return False
                return True
            fixb = lambda x: x.split("\n")[1] if (isinstance(x, str) and "vccnz X" in x) else x
            forced = {k: [x for x in v if keep(x)] for k, v in forced.items()}
            S.q = [fixb(x) for x in S.q if keep(x)]
        k = 0
        for j in range(3):
            ks, ft, base = seq[3 * s + j]
            for par in range(2):
                S.put(('need', 'lg', [('zr', s, j if s == 0 else 2)]))
                c = vr(base + 12 * par + 4 * ft, 4)
                a(f"    v_mfma_f32_16x16x32_bf16 {c}, {vr(ZF+12*(s%3)+4*j,4)}, {wreg(ks >> 1, ks & 1, par)}, {'0' if (base == AX and ks == 0) else c}")
                S.gap(4 if k == 5 else 8, forced[k]); k += 1
        if O['g2marks'] and (s - O['g2marks']) % 2 == 0 and 0 <= s - O['g2marks'] < 10: a(f"    ; MARK {25 + (s - O['g2marks']) // 2}")
    S.flush()
    assert nwo == 30 - O['lw1'] - O['lw2'] >= 21
    a("    ; MARK 20")
    a(f"""    s_lshl_b32 s25, s72, 2
    s_add_u32 s25, s25, s20            ; t tile
    s_lshr_b32 s30, s25, 1
    s_lshl_b32 s24, s30, {4 + O['f4s']}
    s_lshr_b32 s29, s73, 2
    s_mul_i32 s29, s29, {16384 if O['r4'] else 0}
    s_add_u32 s24, s24, s29
    s_add_u32 s24, s24, {FL_F4}
    v_lshlrev_b32 v48, {O['f4s']}, v5
    v_lshlrev_b32 v7, 4, v5""")
    PO = 40
    for par in range(2):
        c = ACC + 12 * par + 8
        for h in range(2): a(f"    v_pk_fma_f32 {vr(c+2*h,2)}, {vr(c+2*h,2)}, {vr(ZU+16+4*par+2*h,2)}, {vr(XI+16+4*par+2*h,2)}")
    for par in range(2):
        c = ACC + 12 * par + 8
        for h in range(2): a(f"    v_cvt_pk_bf16_f32 v{PO+2*par+h}, v{c+2*h}, v{c+2*h+1}")
    a(f"    v_permlane16_swap_b32 v{PO}, v{PO+2}\n    v_permlane16_swap_b32 v{PO+1}, v{PO+3}")
    S.put((f"    buffer_store_dwordx4 {vr(PO,4)}, v88, s[8:11], s31 offen sc1", 'pb'))
    S.now([('need', 'vm', ['pa']), f"    s_mov_b64 exec, {3 if O['r4'] else 1}", "    buffer_store_dword v0, v12, s[8:11], s28 offen sc1", "    s_mov_b64 exec, -1"])
    a("    ; MARK 21")
    return nwo

def g3(a, S, nwo):
    PF, ACC, WF, HR = 56, 16, [152, 172, 192], 212
    order = [k for k in range(24) if k % 3 != 1] + [k for k in range(24) if k % 3 == 1]
    def waddr(k, t): return wo_addr(k // 6, [0, 4, 1, 2, 5, 3][k % 6] * 5 + t)
    def wreads(i): return [(f"    ds_read_b128 {vr(WF[i%3]+4*t,4)}, {lds_op(waddr(order[i], t))}", i) for t in range(5)]
    def pre3():
        S.now(wreads(0) + wreads(1))
        for t in range(5):
            for h in range(2):
                r = HR + 2 * t + h
                a(f"    v_lshlrev_b32 v{ACC+4*t+2*h}, 16, v{r}\n    v_and_b32 v{ACC+4*t+2*h+1}, 0xffff0000, v{r}")
        R = L("""s_mul_i32 s30, s20, 2816
s_add_u32 s30, s30, 147456
v_mul_u32_u24 v8, 176, v5
v_add_u32 v8, s30, v8
v_lshl_add_u32 v46, v6, 3, v8
v_lshl_add_u32 v8, v6, 4, v8""")
        for q, (vl, vg) in enumerate(((12, 10), (13, 11), (1, 14))):
            R += L(f"""v_add_u32 v15, {64*q}, v0
v_min_u32 v15, 159, v15
v_mul_u32_u24 v47, 6554, v15
v_lshrrev_b32 v47, 16, v47
v_add_u32 v{vl}, v15, v47
v_lshl_add_u32 v{vl}, v{vl}, 4, s30
v_mul_u32_u24 v47, {2560-160}, v47
v_lshl_add_u32 v{vg}, v15, 4, v47""")
        S.now(R)
    pA = "    buffer_load_dword v49, v48, s[8:11], s24 offen sc1"
    pB = "    buffer_load_dword v44, v45, s[8:11], s24 offen sc1"
    a(f"""    s_lshl_b32 s30, s30, 5
    s_and_b32 s31, s25, 1
    s_add_u32 s30, s30, s31
    s_lshl_b32 s29, s30, 3
    s_mul_i32 s32, s73, {20*16384}
    s_add_u32 s29, s29, s32
    v_lshl_add_u32 v15, v6, 14, v7
    v_lshl_add_u32 v14, v6, 15, v7""")
    for t in range(5):
        qd = 8 * (t >> 1) + (t & 1)
        S.now([f"    s_add_u32 s32, s29, {WS_H + qd*16384}", (f"    buffer_load_dwordx2 {vr(HR+2*t,2)}, v{14 if t < 4 else 15}, s[8:11], s32 offen sc1", 'wo')])
    S.now(wo_pieces(nwo, nwo + O['lw1'], 'w2'))
    emit(a, srd(16, 64, 2048 * 1280))
    a(f"""    s_mul_i32 s40, s25, 24576
    s_add_u32 s40, s40, {WS_P}
    s_mul_i32 s31, s30, 1280
    s_mul_i32 s32, s73, 160
    s_add_u32 s31, s31, s32
    s_add_u32 s28, s28, 32768
    v_add_u32 v45, 32768, v48""")
    a("    v_add_u32 v50, s40, v2")
    for j in range(1, 6): a(f"    v_add_u32 v{50+j}, {4096*j}, v50")
    if O['s4d'] < 0: S.put((pA, 'fa'))
    S.put(('need', 'vm', ['pb']))
    if O['s4d'] == 0: S.put((pA, 'fa'))
    a(f"    s_mov_b64 exec, {3 if O['r4'] else 1}")
    S.put("    buffer_store_dword v0, v12, s[8:11], s28 offen sc1")
    a("    s_mov_b64 exec, -1\n    ; MARK 22")
    S.now([('need', 'vm', ['wo']), "    s_barrier"])
    if O['s4d'] == 1: S.put((pA, 'fa'))
    S.now(wo_pieces(nwo + O['lw1'], 30, 'w2'))
    pre3()
    if O['s4d'] == 2: S.put((pA, 'fa'))
    S.put(('need', 'vm', ['fa']))
    emit(a, recheck("S4", [pA], ["    v_cmp_eq_u32 vcc, -1, v49"], sleep=O["s4s"]))
    a("    ; MARK 23")
    def pl(i):
        k = order[i]
        return (f"    buffer_load_dwordx4 {vr(PF+4*i,4)}, v{50+(k>>2)}, s[8:11], 0 offen offset:{1024*(k&3)} sc1", i)
    if O['pb_ld'] < 0: S.put((pB, 'fb'))
    for i in range(O['pa']):
        S.put(pl(i))
        if i == O['pb_ld']: S.put((pB, 'fb'))
    for i in range(O['pa'], 16):
        S.q.append(pl(i))
        if i == O['pb_ld']: S.q.append((pB, 'fb'))
    if O['pb_ld'] >= 16: S.q.append((pB, 'fb'))
    for i in range(24):
        if i == O['pb_chk']:
            if any(isinstance(x, tuple) and x[1] == 'fb' for x in S.q): S.flush()
            S.now([('need', 'vm', ['fb'])] + recheck("S5", [pB], ["    v_cmp_eq_u32 vcc, -1, v44"]))
            a("    ; MARK 12")
            S.q += [pl(j) for j in range(16, 24)]
        S.now([('need', 'vm', [i]), ('need', 'lg', [i])])
        if i == 8 and nwo < 30: S.now([('need', 'vm', ['w2']), '    s_barrier'])
        rd = wreads(i + 2) if i < 22 else []
        for t in range(5):
            c = vr(ACC + 4 * t, 4)
            a(f"    v_mfma_f32_16x16x32_bf16 {c}, {vr(WF[i%3]+4*t,4)}, {vr(PF+4*i,4)}, {c}")
            S.gap(8 if t < 3 else 4, rd[t:t+1])
    assert not S.q
    a("    ; MARK 24")
    for t in range(5):
        for h in range(2): a(f"    v_cvt_pk_bf16_f32 v{36+2*t+h}, v{ACC+4*t+2*h}, v{ACC+4*t+2*h+1}")
    a(f"""    ds_write_b128 v8, v[36:39]
    ds_write_b128 v8, v[40:43] offset:64
    ds_write_b64 v46, v[44:45] offset:128
    ds_read_b128 v[52:55], v12
    ds_read_b128 v[56:59], v13
    ds_read_b128 v[60:63], v1
    s_waitcnt lgkmcnt(2)
    buffer_store_dwordx4 v[52:55], v10, s[16:19], s31 offen
    s_waitcnt lgkmcnt(1)
    buffer_store_dwordx4 v[56:59], v11, s[16:19], s31 offen
    s_mov_b32 exec_hi, 0
    s_waitcnt lgkmcnt(0)
    buffer_store_dwordx4 v[60:63], v14, s[16:19], s31 offen
L_end:
    s_endpgm""")

def paginate(lines):
    k = lines.index("    ;ALIGN")
    head, body = lines[:k], lines[k + 1:]
    def visit(name, chains):
        R = ["    s_mov_b64 exec, 0"]
        for w, ch in enumerate(chains):
            if ch: R += [f"    s_cmp_eq_u32 s20, {w}", f"    s_cbranch_scc1 L_pg{ch[0]}"]
        return R + [f"{name}:", "    s_mov_b64 exec, -1"]
    c0 = [[], [1], [2], [3]] if O['wu'] & 1 else []
    c1 = [[4], [5, 8], [6], [7]] if O['wu'] & 2 else []
    tgt = {}
    for chains, ret in ((c0, "L_w0"), (c1, "L_wr")):
        for ch in chains:
            for n, p in enumerate(ch): tgt[p] = f"L_pg{ch[n+1]}" if n + 1 < len(ch) else ret
    sub = {"    ;WARM0": visit("L_w0", c0) if c0 else [], "    ;WARM1": visit("L_w1", c1) if c1 else [], "    ;WARM2": visit("L_w2", c1) if c1 else []}
    head = [y for x in head for y in sub.get(x, [x])]
    body = [y for x in body for y in sub.get(x, [x])]
    if c1:
        e = body.index("L_help:")
        body[e:e] = ["L_wr:", "    s_cmp_lt_u32 s2, 160", "    s_cbranch_scc1 L_w1", "    s_branch L_w2"]
    undef = lambda b: [f"L_pg{p}:" for p in tgt if f"L_pg{p}:" not in b]
    ext = ["L_w0:", "L_conv:"]
    off = O['po']
    for p in sorted(tgt):
        tagged = [l + f" ;#{i}" if align.is_instr(l) else l for i, l in enumerate(body)]
        al = align.fix2(tagged + undef(body) + ext)
        addr = off; at = None
        for l, n in zip([l for l in al if align.is_instr(l)], align.sizes(al)):
            if addr >= 4096 * p + 8 and ";#" in l: at = int(l.rsplit(";#", 1)[1]); break
            addr += n
        body[at:at] = [f"L_pg{p}:", f"    s_cbranch_execz {tgt[p]}"]
    body = align.fix2(body + ext, verbose=True)[:-len(ext)]
    labs = [l for l in body if l.endswith(":") and not l.startswith(" ")]
    head = align.fix2(head + labs)[:-len(labs)]
    assert 4096 + off + sum(align.sizes(body + ext)) <= 96 * 512
    return head + [".p2align 12"] + ([f".fill {off // 4}, 4, 0xbf800000"] if off else []) + body

def build(**kw):
    O.update(kw); TAILS.clear()
    a = Asm()
    a.begin_kernel(NAME + "_kernel", 256, 256, 163840, 512, accum=256)
    a(f"""    s_load_dwordx16 s[36:51], s[0:1], 0
{'' if O['ksplit'] else KREST}
    s_cmp_lt_u32 s2, 224
    s_cbranch_scc1 L_e1
    s_cmp_ge_u32 s2, 256
    s_cbranch_scc1 L_end
    s_getpc_b64 s[30:31]
    s_and_b32 s3, s2, 24
    s_lshl_b32 s3, s3, 4
    v_min_u32 v7, 95, v0
    v_lshl_add_u32 v7, v7, 9, s3
    global_load_dword v14, v7, s[30:31]
L_e1:""")
    emit(a, lanes())
    a(f"""    s_cmp_lt_u32 s2, 160
    s_cbranch_scc1 L_conv
    s_sub_u32 s23, s2, 160
    s_cmp_ge_u32 s23, 64
    s_cbranch_scc1 L_nostat
    s_lshl_b32 s24, s23, 5
    v_lshrrev_b32 v3, 3, v1
    v_add_u32 v3, s24, v3              ; row
    v_mul_u32_u24 v7, 1280, v3
    v_and_b32 v14, 7, v0
    v_lshl_add_u32 v7, v14, 4, v7
    s_waitcnt lgkmcnt(0)""")
    if O['ksplit']: a(KREST)
    for q in range(10): a(f"    global_load_dwordx4 {vr(16+4*q,4)}, v7, s[36:37] offset:{128*q}")
    a("    s_branch L_help")
    conv_role(a)
    S = Sched(a)
    g1(a, S); nwo = g2(a, S); g3(a, S, nwo)
    for t in TAILS: emit(a, t)
    TAILS.clear(); helper_role(a)
    for t in TAILS: emit(a, t)
    a.end_kernel()
    fl = {0: "sc1", 1: "sc0 sc1", 2: "sc1 nt", 3: "sc0 sc1 nt"}[O['pf']]
    a.lines = [re.sub(r"sc1$", fl, l) if re.match(r"\s+buffer_load_dword v(41|89|9|44),", l) else l for l in a.lines]
    a.lines = hazard.fix(a.lines, verbose=True)
    if O['inl']:
        import instr
        instr.CLK = "s_memtime" if O['inl'] == 2 else "s_memrealtime"
        a.lines = [y for x in a.lines for y in (instr.stamp(2 + int(x.split()[-1])) if "; MARK" in x else [x])]
    a.lines = paginate(a.lines)
    a(".p2align 8\n.fill 3072, 4, 0xbf800000")
    return a.text("S4 conv + gMLP block in one persistent launch; written with the author's own generator script", single=True)
if __name__ == "__main__":
    out = sys.argv[1] if len(sys.argv) > 1 else "v20.s"
    kw = {k: int(v, 0) for k, v in (x.split("=") for x in sys.argv[2:])}
    open(out, "w").write(build(**kw))
```
